```python
import torch

def _softmax(x, axis=-1):
    return torch.softmax(x, dim=axis)

def _gelu(x):
    return torch.nn.functional.gelu(x, approximate='tanh')

def _silu(x):
    return torch.nn.functional.silu(x)

def _sigmoid(x):
    return torch.sigmoid(x)

def _layernorm(x, axis=-1, eps=1e-05):
    m = x.mean(dim=axis, keepdim=True)
    v = x.var(dim=axis, keepdim=True, unbiased=False)
    return (x - m) / torch.sqrt(v + eps)

def _scatter_add(tgt, idx, src, axis=0):
    return tgt.clone().index_add_(axis, idx, src)

def _segment_sum(src, seg, n):
    out = torch.zeros((n,) + src.shape[1:], dtype=src.dtype)
    return out.index_add_(0, seg, src)

def _pad(x, pw):
    flat = tuple((v for pair in reversed(pw) for v in pair))
    return torch.nn.functional.pad(x, flat)
kernel_name = 'adaLN_cond__spectral_fnet__dense_activation_relu__prompt'

def setup_inputs():

    _w = lambda a: (lambda t: t.to(torch.bfloat16) if t.is_floating_point() else t)(torch.as_tensor(a))

    def _A_setup():
        B, S, D = (1, 2048, 640)
        ns = torch.arange(S)[:, None] * torch.arange(S)[None, :]
        nd = torch.arange(D)[:, None] * torch.arange(D)[None, :]
        Ws_re = torch.cos(-2.0 * torch.pi * ns / S).to(float)
        Ws_im = torch.sin(-2.0 * torch.pi * ns / S).to(float)
        Wd_re = torch.cos(-2.0 * torch.pi * nd / D).to(float)
        Wd_im = torch.sin(-2.0 * torch.pi * nd / D).to(float)
        return {'x': _w((lambda *s: torch.randn(*s, dtype=torch.bfloat16) * 0.1)(B, S, D)), 'dft_seq_re': _w(Ws_re), 'dft_seq_im': _w(Ws_im), 'dft_hid_re': _w(Wd_re), 'dft_hid_im': _w(Wd_im)}
    _A_in = _A_setup()

    def _B_setup():
        B, S, D, Dff = (1, 2048, 640, 1536)
        return {'x': _w((lambda *s: torch.randn(*s, dtype=torch.bfloat16) * 0.1)(B, S, D)), 'w1': _w((lambda *s: torch.randn(*s, dtype=torch.bfloat16) * 3.2)(D, Dff)), 'w2': _w((lambda *s: torch.randn(*s, dtype=torch.bfloat16) * 3.2)(Dff, D))}
    _B_in = _B_setup()
    return {'A_x': _A_in['x'], 'A_dft_seq_re': _A_in['dft_seq_re'], 'A_dft_seq_im': _A_in['dft_seq_im'], 'A_dft_hid_re': _A_in['dft_hid_re'], 'A_dft_hid_im': _A_in['dft_hid_im'], 'B_x': _B_in['x'], 'B_w1': _B_in['w1'], 'B_w2': _B_in['w2'], 'c': _w((lambda *s: torch.randn(*s, dtype=torch.bfloat16) * 0.4)(1, 640) * 8.0), 'w_mod': _w((lambda *s: torch.randn(*s, dtype=torch.bfloat16) * 0.4)(640, 6 * 640) * 640 ** (-0.5) * 8.0)}

def reference(A_x, A_dft_seq_re, A_dft_seq_im, A_dft_hid_re, A_dft_hid_im, B_x, B_w1, B_w2, c, w_mod):

    def _A_ref(x, dft_seq_re, dft_seq_im, dft_hid_re, dft_hid_im):
        a = torch.einsum('bsd,ed->bse', x, dft_hid_re)
        b = torch.einsum('bsd,ed->bse', x, dft_hid_im)
        y = torch.einsum('ts,bse->bte', dft_seq_re, a) - torch.einsum('ts,bse->bte', dft_seq_im, b)
        return y

    def _B_ref(x, w1, w2):
        h = torch.einsum('bsd,df->bsf', x, w1)
        zero = torch.zeros_like(h)
        h = torch.maximum(h, zero)
        return torch.einsum('bsf,fd->bsd', h, w2)
    x = A_x
    mod = (_silu(c) @ w_mod).reshape(c.shape[0], 6, 1, -1)
    sa, ca, ga, sb, cb, gb = (mod[:, 0].clone(), mod[:, 1].clone(), mod[:, 2].clone(), mod[:, 3].clone(), mod[:, 4].clone(), mod[:, 5].clone())
    h = _layernorm(x, axis=-1) * (1 + ca) + sa
    x = x + ga * _A_ref(h, A_dft_seq_re, A_dft_seq_im, A_dft_hid_re, A_dft_hid_im)
    h = _layernorm(x, axis=-1) * (1 + cb) + sb
    x = x + gb * _B_ref(h, B_w1, B_w2)
    return x
```

```python
import re
class Asm:
    def __init__(self):
        self.lines = []
        self.lbl = 0
    def __call__(self, s):
        for l in s.strip('\n').split('\n'):
            l = l.strip()
            m = re.search(r'offset:(\d+)', l)
            if m:
                o = int(m.group(1))
                if l.startswith('buffer_'):
                    assert o <= 4095, l
                elif l.startswith('ds_'):
                    assert o <= 65535, l
            self.lines.append('    ' + l)
    def label(self, name):
        self.lines.append(name + ':')
    def newlabel(self, p='L'):
        self.lbl += 1
        return f'{p}_{self.lbl}'
    def raw(self, s):
        self.lines.append(s)
    def comment(self, s):
        self.lines.append('    ; ' + s)
    def text(self):
        return '\n'.join(self.lines) + '\n'

class Regs:
    def __init__(self, start=1):
        self.n = start
    def alloc(self, cnt=1, align=1):
        while self.n % align:
            self.n += 1
        r = self.n
        self.n += cnt
        return r

def vr(base, cnt):
    return f'v[{base}:{base+cnt-1}]' if cnt > 1 else f'v{base}'
def sr(base, cnt):
    return f's[{base}:{base+cnt-1}]' if cnt > 1 else f's{base}'

KA = dict(x=0, cs=8, ss=16, ch=24, sh=32, bx=40, w1=48, w2=56, c=64, wmod=72, out=80, dbg=88, ws=96)

S, D, F = 2048, 640, 1536
MB1 = 1 << 20
WS_MOD = 0
WS_NT = 1 * MB1
WS_W1T = 4 * MB1
WS_W2T = 6 * MB1
WS_PQ = 8 * MB1
WS_X1 = 14 * MB1
WS_H2 = 17 * MB1
WS_HH = 20 * MB1
WS_CSH = 27 * MB1
WS_ST = 30 * MB1
WS_UW = 31 * MB1

def srd(a, d, ptr, off, size):
    if off:
        a(f's_add_u32 s{d}, s{ptr}, 0x{off:x}')
        a(f's_addc_u32 s{d+1}, s{ptr+1}, 0')
    else:
        a(f's_mov_b32 s{d}, s{ptr}')
        a(f's_mov_b32 s{d+1}, s{ptr+1}')
    a(f's_mov_b32 s{d+2}, 0x{size:x}')
    a(f's_mov_b32 s{d+3}, 0x00020000')

def kernel_header(a, name):
    a.raw(f'.globl {name}')
    a.raw('.p2align 8')
    a.raw(f'.type {name},@function')
    a.label(name)

def kernel_desc(name, nv, ns=96):
    nv4 = (nv + 3) // 4 * 4
    return f'''.p2align 6
.amdhsa_kernel {name}
  .amdhsa_next_free_vgpr {nv}
  .amdhsa_next_free_sgpr {ns}
  .amdhsa_accum_offset {nv4}
  .amdhsa_group_segment_fixed_size 0
  .amdhsa_kernarg_size 104
  .amdhsa_user_sgpr_count 2
  .amdhsa_user_sgpr_kernarg_segment_ptr 1
  .amdhsa_system_sgpr_workgroup_id_x 1
  .amdhsa_float_denorm_mode_32 3
.end_amdhsa_kernel
'''
```

```python
from common import *

class G:
    pass

def gen_gemm(a, name, cfg):
    c = cfg
    NB, WM, WK, NST = c['NB'], c['WM'], c['WK'], c['NST']
    BM, BN = WM * 32, NB * 16
    GSZ = NB * 4096
    BUFSZ = GSZ * WK
    NBUF = 3
    XCH = NBUF * BUFSZ
    lds_total = XCH + (4 * NB * 1024 if WK == 2 else 0)
    NDMA = NB * WK
    NLD = NDMA + 8
    end = name + '_end'
    kernel_header(a, name)
    a(f's_cmp_ge_u32 s2, {c["NWG"]}')
    a(f's_cbranch_scc1 {end}')
    a(f's_load_dwordx2 s[4:5], s[0:1], {KA["ws"]}')
    for (reg, slot) in c['kargs']:
        a(f's_load_dwordx2 s[{reg}:{reg+1}], s[0:1], {KA[slot]}')
    R = Regs(1)
    vlane = R.alloc(); vi16 = R.alloc(); vg = R.alloc(); vt0 = R.alloc(); vt1 = R.alloc(); vt2 = R.alloc()
    a(f'v_lshrrev_b32 v{vt0}, 6, v0')
    a(f'v_and_b32 v{vlane}, 63, v0')
    a(f'v_and_b32 v{vi16}, 15, v0')
    a(f'v_readfirstlane_b32 s40, v{vt0}')
    a(f'v_lshrrev_b32 v{vg}, 4, v{vlane}')
    ntl = c['NT'].bit_length() - 1
    a('s_and_b32 s41, s2, 7')
    a('s_lshr_b32 s42, s2, 3')
    a(f's_lshr_b32 s43, s42, {ntl}')
    a(f's_mul_i32 s41, s41, {c["MPX"]}')
    a('s_add_u32 s41, s41, s43')
    a(f's_and_b32 s42, s42, {c["NT"]-1}')
    a(f's_mul_i32 s44, s42, {BN}')
    if WK == 2:
        a(f's_and_b32 s45, s40, {WM-1}')
        a(f's_lshr_b32 s46, s40, {WM.bit_length()-1}')
    else:
        a('s_mov_b32 s45, s40')
        a('s_mov_b32 s46, 0')
    a('s_waitcnt lgkmcnt(0)')
    c['setup'](a, c)
    va = [R.alloc(), R.alloc()]
    a('s_lshl_b32 s48, s45, 5')
    a('s_add_u32 s48, s48, s47')
    a(f'v_add_u32 v{vt0}, s48, v{vi16}')
    a(f's_mov_b32 s49, {c["lda"]}')
    a(f'v_mul_lo_u32 v{vt0}, v{vt0}, s49')
    a(f'v_lshl_add_u32 v{vt0}, v{vg}, 4, v{vt0}')
    a(f's_mul_i32 s49, s46, {c["a_goff"]}')
    a(f'v_add_u32 v{va[0]}, s49, v{vt0}')
    a(f'v_add_u32 v{va[1]}, {16*c["lda"]}, v{va[0]}')
    vb = [R.alloc() for _ in range(NB)]
    a(f's_lshl_b32 s50, s40, 2')
    a(f'v_add_u32 v{vt0}, s50, v{vg}')
    a(f'v_xor_b32 v{vt1}, v{vt0}, v{vi16}')
    a(f'v_lshlrev_b32 v{vt1}, 4, v{vt1}')
    a(f's_mov_b32 s51, {c["ldb"]}')
    npair = NB // 2
    if npair:
        a(f's_lshl_b32 s52, s40, 3')
        a(f's_add_u32 s52, s52, s44')
        a(f'v_add_u32 v{vt2}, s52, v{vg}')
        a(f'v_mul_lo_u32 v{vt2}, v{vt2}, s51')
        a(f'v_add_u32 v{vt2}, v{vt2}, v{vt1}')
        for j in range(2 * npair):
            p, h = j >> 1, j & 1
            off = (32 * p + 4 * h) * c['ldb']
            a(f'v_add_u32 v{vb[j]}, {off}, v{vt2}')
    if NB & 1:
        j = NB - 1
        a(f'v_add_u32 v{vt2}, s44, v{vt0}')
        a(f'v_mul_lo_u32 v{vt2}, v{vt2}, s51')
        a(f'v_add_u32 v{vt2}, v{vt2}, v{vt1}')
        a(f'v_add_u32 v{vb[j]}, {16*j*c["ldb"]}, v{vt2}')
    vd = [[R.alloc() for ks in range(4)] for b in range(NBUF)]
    a(f'v_xor_b32 v{vt0}, v{vg}, v{vi16}')
    a(f's_mul_i32 s53, s46, {GSZ}')
    for ks in range(4):
        a(f'v_xor_b32 v{vt1}, {ks<<2}, v{vt0}')
        a(f'v_lshlrev_b32 v{vt1}, 4, v{vt1}')
        a(f'v_lshl_add_u32 v{vt1}, v{vi16}, 8, v{vt1}')
        a(f'v_add_u32 v{vd[0][ks]}, s53, v{vt1}')
        for b in range(1, NBUF):
            a(f'v_add_u32 v{vd[b][ks]}, {b*BUFSZ}, v{vd[0][ks]}')
    a('s_lshl_b32 s54, s40, 10')
    A = [[[R.alloc(4, 4) for ks in range(4)] for rb in range(2)] for b in range(NBUF)]
    Bf = [[R.alloc(4, 4) for nb in range(NB)] for s in range(2)]
    acc = [[R.alloc(4, 4) for nb in range(NB)] for rb in range(2)]
    if c.get('rowsum'):
        rs = [R.alloc(4, 4) for rb in range(2)]
        ones = R.alloc(4, 4)
        for q in range(4):
            a(f'v_mov_b32 v{ones+q}, 0x3f803f80')
        for rb in range(2):
            for q in range(4):
                a(f'v_mov_b32 v{rs[rb]+q}, 0')
    for rb in range(2):
        for nb in range(NB):
            for q in range(4):
                a(f'v_mov_b32 v{acc[rb][nb]+q}, 0')

    def issue_dma(st):
        b = st % NBUF
        a(f's_mov_b32 s55, {st*256}')
        for grp in range(WK):
            srdb = 12 + 4 * grp
            for j in range(NB):
                a(f's_add_u32 m0, s54, {b*BUFSZ + grp*GSZ + j*4096}')
                a('s_nop 0')
                a(f'buffer_load_dwordx4 v{vb[j]}, s[{srdb}:{srdb+3}], s55 offen lds')
    def issue_a(st):
        b = st % NBUF
        a(f's_mov_b32 s56, {st*256}')
        for ks in range(4):
            for rb in range(2):
                r = A[b][rb][ks]
                a(f'buffer_load_dwordx4 v[{r}:{r+3}], v{va[rb]}, s[8:11], s56 offen offset:{ks*64}')
    def read_b(st, ks, setid):
        b = st % NBUF
        for nb in range(NB):
            r = Bf[setid][nb]
            a(f'ds_read_b128 v[{r}:{r+3}], v{vd[b][ks]} offset:{nb*4096}')
    def mfmas(st, ks, setid):
        b = st % NBUF
        for rb in range(2):
            ar = A[b][rb][ks]
            for nb in range(NB):
                br = Bf[setid][nb]
                d = acc[rb][nb]
                a(f'v_mfma_f32_16x16x32_bf16 v[{d}:{d+3}], v[{br}:{br+3}], v[{ar}:{ar+3}], v[{d}:{d+3}]')
            if c.get('rowsum'):
                d = rs[rb]
                a(f'v_mfma_f32_16x16x32_bf16 v[{d}:{d+3}], v[{ones}:{ones+3}], v[{ar}:{ar+3}], v[{d}:{d+3}]')

    g = G()
    g.R, g.acc, g.vi16, g.vg, g.vlane = R, acc, vi16, vg, vlane
    g.tmp = (vt0, vt1, vt2)
    g.A, g.Bf = A, Bf
    g.NB = NB
    g.WK = WK
    if c.get('rowsum'):
        g.rs = rs
    c['pre'](a, c, g)
    npre = min(NBUF, NST)
    for st in range(npre):
        issue_dma(st)
        issue_a(st)
    a(f's_waitcnt vmcnt({(npre-1)*NLD})')
    a('s_barrier')
    read_b(0, 0, 0)
    for st in range(NST):
        for ks in range(3):
            read_b(st, ks + 1, (ks + 1) & 1)
            a(f's_waitcnt lgkmcnt({NB})')
            mfmas(st, ks, ks & 1)
        if st + 1 < NST:
            nout = min(st + 2, NST - 1) - (st + 1)
            a(f's_waitcnt vmcnt({nout*NLD}) lgkmcnt(0)')
            a('s_barrier')
            read_b(st + 1, 0, 0)
            if st + 3 < NST:
                issue_dma(st + 3)
            mfmas(st, 3, 1)
            if st + 3 < NST:
                issue_a(st + 3)
        else:
            a('s_waitcnt lgkmcnt(0)')
            mfmas(st, 3, 1)
    a('s_nop 7')
    a('s_nop 7')
    if WK == 2:
        lk0, lk1 = a.newlabel(name), a.newlabel(name)
        a(f'v_lshlrev_b32 v{vt0}, 4, v{vlane}')
        a(f's_mul_i32 s57, s40, {NB*1024}')
        a(f's_add_u32 s57, s57, {XCH}')
        a(f'v_add_u32 v{vt1}, s57, v{vt0}')
        a(f's_xor_b32 s57, s40, {WM}')
        a(f's_mul_i32 s57, s57, {NB*1024}')
        a(f's_add_u32 s57, s57, {XCH}')
        a(f'v_add_u32 v{vt2}, s57, v{vt0}')
        T = Bf[0]
        a('s_cmp_eq_u32 s46, 0')
        a(f's_cbranch_scc0 {lk1}')
        for nb in range(NB):
            d = acc[1][nb]
            a(f'ds_write_b128 v{vt1}, v[{d}:{d+3}] offset:{nb*1024}')
        a('s_waitcnt lgkmcnt(0)')
        a('s_barrier')
        for nb in range(NB):
            a(f'ds_read_b128 v[{T[nb]}:{T[nb]+3}], v{vt2} offset:{nb*1024}')
        a('s_waitcnt lgkmcnt(0)')
        for nb in range(NB):
            for q in range(4):
                a(f'v_add_f32 v{acc[0][nb]+q}, v{acc[0][nb]+q}, v{T[nb]+q}')
        a(f's_branch {lk0}')
        a.label(lk1)
        for nb in range(NB):
            d = acc[0][nb]
            a(f'ds_write_b128 v{vt1}, v[{d}:{d+3}] offset:{nb*1024}')
        a('s_waitcnt lgkmcnt(0)')
        a('s_barrier')
        for nb in range(NB):
            a(f'ds_read_b128 v[{T[nb]}:{T[nb]+3}], v{vt2} offset:{nb*1024}')
        a('s_waitcnt lgkmcnt(0)')
        for nb in range(NB):
            for q in range(4):
                a(f'v_add_f32 v{acc[0][nb]+q}, v{acc[1][nb]+q}, v{T[nb]+q}')
        a.label(lk0)
        g.rbs = [0]
    else:
        g.rbs = [0, 1]
    c['epi'](a, c, g)
    a.label(end)
    a('s_endpgm')
    return R.n, lds_total
```

```python
from common import *

K0_NMOD = 120
K0_NLN = 64
K0_NTR = 240
K0_GRID = K0_NMOD + K0_NLN + 2 * K0_NTR
K0_LDS = 40960

def dpp_allreduce16(a, v, tmp):
    for r in (8, 4, 2, 1):
        a('s_nop 1')
        a(f'v_add_f32_dpp v{tmp}, v{v}, v{v} row_ror:{r} row_mask:0xf bank_mask:0xf')
        a(f'v_mov_b32 v{v}, v{tmp}')

def gen_k0(a, name):
    kernel_header(a, name)
    a(f's_cmp_ge_u32 s2, {K0_GRID}')
    a('s_cbranch_scc1 k0_end')
    a(f's_load_dwordx2 s[4:5], s[0:1], {KA["ws"]}')
    a(f's_cmp_lt_u32 s2, {K0_NMOD}')
    a('s_cbranch_scc1 k0_mod')
    a(f's_cmp_lt_u32 s2, {K0_NMOD+K0_NLN}')
    a('s_cbranch_scc1 k0_ln')
    a(f's_load_dwordx2 s[6:7], s[0:1], {KA["w1"]}')
    a(f's_load_dwordx2 s[8:9], s[0:1], {KA["w2"]}')
    a(f's_sub_u32 s3, s2, {K0_NMOD+K0_NLN}')
    a('s_waitcnt lgkmcnt(0)')
    a(f's_cmp_lt_u32 s3, {K0_NTR}')
    a('s_cbranch_scc1 k0_tr_w1')
    a(f's_sub_u32 s3, s3, {K0_NTR}')
    srd(a, 12, 8, 0, F * D * 2)
    srd(a, 16, 4, WS_W2T, F * D * 2)
    a('s_mul_i32 s20, s3, 6554')
    a('s_lshr_b32 s20, s20, 16')
    a('s_mul_i32 s21, s20, 10')
    a('s_sub_u32 s21, s3, s21')
    a(f's_mov_b32 s22, {D*2}')
    a(f's_mov_b32 s23, {F*2}')
    a('s_branch k0_tr_go')
    a.label('k0_tr_w1')
    srd(a, 12, 6, 0, F * D * 2)
    srd(a, 16, 4, WS_W1T, F * D * 2)
    a('s_mul_i32 s20, s3, 2731')
    a('s_lshr_b32 s20, s20, 16')
    a('s_mul_i32 s21, s20, 24')
    a('s_sub_u32 s21, s3, s21')
    a(f's_mov_b32 s22, {F*2}')
    a(f's_mov_b32 s23, {D*2}')
    a.label('k0_tr_go')
    a('v_lshrrev_b32 v1, 3, v0')
    a('v_and_b32 v2, 7, v0')
    a('s_lshl_b32 s24, s20, 6')
    a('v_add_u32 v3, s24, v1')
    a('v_mul_lo_u32 v3, v3, s22')
    a('s_lshl_b32 s25, s21, 7')
    a('v_lshlrev_b32 v4, 4, v2')
    a('v_add3_u32 v3, v3, v4, s25')
    a('s_lshl_b32 s26, s22, 5')
    a('buffer_load_dwordx4 v[8:11], v3, s[12:15], 0 offen')
    a('buffer_load_dwordx4 v[12:15], v3, s[12:15], s26 offen')
    a('v_mul_u32_u24 v5, 1056, v2')
    a('v_lshl_add_u32 v5, v1, 1, v5')
    a('s_waitcnt vmcnt(1)')
    for p in range(2):
        if p == 1:
            a('s_waitcnt vmcnt(0)')
        for q in range(4):
            reg = 8 + 4 * p + q
            a(f'ds_write_b16 v5, v{reg} offset:{(2*q)*132 + p*64}')
            a(f'ds_write_b16_d16_hi v5, v{reg} offset:{(2*q+1)*132 + p*64}')
    a('s_waitcnt lgkmcnt(0)')
    a('s_barrier')
    a('v_lshrrev_b32 v1, 2, v0')
    a('v_and_b32 v2, 3, v0')
    a('v_mul_u32_u24 v5, 132, v1')
    a('v_lshl_add_u32 v5, v2, 5, v5')
    for q in range(4):
        a(f'ds_read2_b32 v[{8+2*q}:{9+2*q}], v5 offset0:{2*q} offset1:{2*q+1}')
    a('s_lshl_b32 s24, s21, 6')
    a('v_add_u32 v3, s24, v1')
    a('v_mul_lo_u32 v3, v3, s23')
    a('s_lshl_b32 s25, s20, 7')
    a('v_lshlrev_b32 v4, 5, v2')
    a('v_add3_u32 v3, v3, v4, s25')
    a('s_waitcnt lgkmcnt(0)')
    a('buffer_store_dwordx4 v[8:11], v3, s[16:19], 0 offen')
    a('buffer_store_dwordx4 v[12:15], v3, s[16:19], 0 offen offset:16')
    a('s_endpgm')

    a.label('k0_mod')
    a(f's_load_dwordx2 s[6:7], s[0:1], {KA["c"]}')
    a(f's_load_dwordx2 s[8:9], s[0:1], {KA["wmod"]}')
    a('v_and_b32 v1, 3, v0')
    a('v_lshrrev_b32 v2, 2, v0')
    a('v_lshlrev_b32 v3, 1, v2')
    a('v_mul_u32_u24 v4, 7680, v2')
    a('v_lshl_add_u32 v4, v1, 4, v4')
    a('s_lshl_b32 s3, s2, 6')
    a('v_add_u32 v4, s3, v4')
    a('s_waitcnt lgkmcnt(0)')
    srd(a, 12, 6, 0, D * 2)
    srd(a, 16, 8, 0, D * 6 * D * 2)
    srd(a, 20, 4, WS_MOD, 6 * D * 2)
    CB = 10
    WB = 20
    AC = 60
    T0 = 70
    for j in range(10):
        a(f'buffer_load_ushort v{CB+j}, v3, s[12:15], 0 offen offset:{j*128}')
    for j in range(10):
        a(f's_mov_b32 s24, {j*64*7680}')
        a(f'buffer_load_dwordx4 v[{WB+4*j}:{WB+4*j+3}], v4, s[16:19], s24 offen')
    for e in range(8):
        a(f'v_mov_b32 v{AC+e}, 0')
    a('s_waitcnt vmcnt(10)')
    for j in range(10):
        a(f'v_lshlrev_b32 v{CB+j}, 16, v{CB+j}')
    for j in range(10):
        a(f'v_mul_f32 v{T0+j}, 0xbfb8aa3b, v{CB+j}')
    for j in range(10):
        a(f'v_exp_f32 v{T0+j}, v{T0+j}')
    a('s_nop 0')
    for j in range(10):
        a(f'v_add_f32 v{T0+j}, 1.0, v{T0+j}')
    for j in range(10):
        a(f'v_rcp_f32 v{T0+j}, v{T0+j}')
    a('s_nop 0')
    for j in range(10):
        a(f'v_mul_f32 v{CB+j}, v{CB+j}, v{T0+j}')
    for j in range(10):
        a(f'v_cvt_pk_bf16_f32 v{CB+j}, v{CB+j}, v{CB+j}')
    for j in range(10):
        a(f'v_lshlrev_b32 v{CB+j}, 16, v{CB+j}')
    for j in range(10):
        a(f's_waitcnt vmcnt({9-j})')
        for q in range(4):
            w = WB + 4 * j + q
            a(f'v_lshlrev_b32 v{T0}, 16, v{w}')
            a(f'v_and_b32 v{T0+1}, 0xffff0000, v{w}')
            a(f'v_fmac_f32 v{AC+2*q}, v{CB+j}, v{T0}')
            a(f'v_fmac_f32 v{AC+2*q+1}, v{CB+j}, v{T0+1}')
    a('v_lshlrev_b32 v5, 7, v2')
    a('v_lshl_add_u32 v5, v1, 5, v5')
    a(f'ds_write_b128 v5, v[{AC}:{AC+3}]')
    a(f'ds_write_b128 v5, v[{AC+4}:{AC+7}] offset:16')
    a('s_waitcnt lgkmcnt(0)')
    a('s_barrier')
    a('v_and_b32 v1, 31, v0')
    a('v_lshrrev_b32 v2, 5, v0')
    a('v_lshlrev_b32 v5, 10, v2')
    a('v_lshl_add_u32 v5, v1, 2, v5')
    for i in range(8):
        a(f'ds_read_b32 v{10+i}, v5 offset:{i*128}')
    a('s_waitcnt lgkmcnt(0)')
    for i in range(1, 8):
        a(f'v_add_f32 v10, v10, v{10+i}')
    a('v_lshlrev_b32 v5, 7, v2')
    a('v_lshl_add_u32 v5, v1, 2, v5')
    a('ds_write_b32 v5, v10 offset:8192')
    a('s_waitcnt lgkmcnt(0)')
    a('s_barrier')
    a('v_cmp_gt_u32 vcc, 32, v0')
    a('s_and_saveexec_b64 s[26:27], vcc')
    a('s_cbranch_execz k0_end')
    a('v_lshlrev_b32 v5, 2, v0')
    for i in range(8):
        a(f'ds_read_b32 v{10+i}, v5 offset:{8192+i*128}')
    a('s_waitcnt lgkmcnt(0)')
    for i in range(1, 8):
        a(f'v_add_f32 v10, v10, v{10+i}')
    a('v_cvt_pk_bf16_f32 v10, v10, v10')
    a('s_lshl_b32 s3, s2, 6')
    a('v_lshl_add_u32 v5, v0, 1, s3')
    a('buffer_store_short v10, v5, s[20:23], 0 offen')
    a('s_endpgm')

    a.label('k0_ln')
    a(f's_load_dwordx2 s[6:7], s[0:1], {KA["x"]}')
    a(f's_sub_u32 s3, s2, {K0_NMOD}')
    a('v_and_b32 v1, 15, v0')
    a('v_lshrrev_b32 v2, 4, v0')
    a('s_mul_i32 s24, s3, 32*1280')
    a('v_mul_u32_u24 v3, 2560, v2')
    a('v_lshl_add_u32 v3, v1, 4, v3')
    a('v_add_u32 v3, s24, v3')
    a('s_waitcnt lgkmcnt(0)')
    srd(a, 12, 6, 0, S * D * 2)
    srd(a, 16, 4, WS_NT, S * D * 2)
    XB = 10
    FB = 50
    ST = 130
    for p in range(2):
        for j in range(5):
            r = XB + 20 * p + 4 * j
            a(f'buffer_load_dwordx4 v[{r}:{r+3}], v3, s[12:15], 0 offen offset:{p*1280 + j*256}')
    for p in range(2):
        a(f's_waitcnt vmcnt({5-5*p})')
        for i in range(20):
            r = XB + 20 * p + i
            f = FB + 40 * p + 2 * i
            a(f'v_lshlrev_b32 v{f}, 16, v{r}')
            a(f'v_and_b32 v{f+1}, 0xffff0000, v{r}')
    for p in range(2):
        sm = ST + 8 * p
        a(f'v_add_f32 v{sm}, v{FB+40*p}, v{FB+40*p+1}')
        a(f'v_add_f32 v{sm+1}, v{FB+40*p+2}, v{FB+40*p+3}')
        for i in range(4, 40, 2):
            a(f'v_add_f32 v{sm}, v{sm}, v{FB+40*p+i}')
            a(f'v_add_f32 v{sm+1}, v{sm+1}, v{FB+40*p+i+1}')
        a(f'v_add_f32 v{sm}, v{sm}, v{sm+1}')
        dpp_allreduce16(a, sm, sm + 1)
        a(f'v_mul_f32 v{sm}, 0x3acccccd, v{sm}')
        a(f'v_mov_b32 v{sm+2}, 0')
        a(f'v_mov_b32 v{sm+3}, 0')
        for i in range(0, 40, 2):
            a(f'v_sub_f32 v{sm+4}, v{FB+40*p+i}, v{sm}')
            a(f'v_sub_f32 v{sm+5}, v{FB+40*p+i+1}, v{sm}')
            a(f'v_fmac_f32 v{sm+2}, v{sm+4}, v{sm+4}')
            a(f'v_fmac_f32 v{sm+3}, v{sm+5}, v{sm+5}')
        a(f'v_add_f32 v{sm+2}, v{sm+2}, v{sm+3}')
        dpp_allreduce16(a, sm + 2, sm + 3)
        a(f'v_mul_f32 v{sm+2}, 0x3acccccd, v{sm+2}')
        a(f'v_cvt_pk_bf16_f32 v{sm+3}, v{sm}, v{sm+2}')
        a(f'v_lshlrev_b32 v{sm}, 16, v{sm+3}')
        a(f'v_and_b32 v{sm+2}, 0xffff0000, v{sm+3}')
        a(f'v_add_f32 v{sm+2}, 0x3727c5ac, v{sm+2}')
        a(f'v_cvt_pk_bf16_f32 v{sm+2}, v{sm+2}, v{sm+2}')
        a(f'v_lshlrev_b32 v{sm+2}, 16, v{sm+2}')
        a(f'v_sqrt_f32 v{sm+2}, v{sm+2}')
        a('s_nop 0')
        a(f'v_cvt_pk_bf16_f32 v{sm+2}, v{sm+2}, v{sm+2}')
        a(f'v_lshlrev_b32 v{sm+2}, 16, v{sm+2}')
        a(f'v_rcp_f32 v{sm+2}, v{sm+2}')
        a('s_nop 0')
    a('v_lshrrev_b32 v4, 2, v2')
    a('v_and_b32 v5, 3, v1')
    a('v_xor_b32 v4, v4, v5')
    a('v_lshlrev_b32 v4, 4, v4')
    a('v_and_b32 v5, 3, v2')
    a('v_lshl_add_u32 v4, v5, 2, v4')
    a('v_lshl_add_u32 v4, v1, 9, v4')
    T = 150
    for j in range(5):
        for e in range(8):
            i = j * 8 + e
            t = T + 4 * (i % 4)
            a(f'v_sub_f32 v{t}, v{FB+i}, v{ST}')
            a(f'v_sub_f32 v{t+1}, v{FB+40+i}, v{ST+8}')
            a(f'v_cvt_pk_bf16_f32 v{t+2}, v{t}, v{t+1}')
            a(f'v_lshlrev_b32 v{t}, 16, v{t+2}')
            a(f'v_and_b32 v{t+1}, 0xffff0000, v{t+2}')
            a(f'v_mul_f32 v{t}, v{t}, v{ST+2}')
            a(f'v_mul_f32 v{t+1}, v{t+1}, v{ST+8+2}')
            a(f'v_cvt_pk_bf16_f32 v{t+3}, v{t}, v{t+1}')
            a(f'ds_write_b32 v4, v{t+3} offset:{j*8192 + e*64}')
    a('s_waitcnt lgkmcnt(0)')
    a('s_barrier')
    a('v_lshlrev_b32 v4, 4, v0')
    for i in range(10):
        a(f'ds_read_b128 v[{10+4*i}:{13+4*i}], v4 offset:{i*4096}')
    a('v_lshrrev_b32 v5, 5, v0')
    a('v_xor_b32 v5, v5, v0')
    a('v_and_b32 v5, 3, v5')
    a('v_lshrrev_b32 v6, 2, v0')
    a('v_lshlrev_b32 v6, 12, v6')
    a('v_lshl_add_u32 v6, v5, 4, v6')
    a('s_lshl_b32 s24, s3, 6')
    a('v_add_u32 v6, s24, v6')
    for i in range(10):
        a(f's_mov_b32 s25, {i*262144}')
        a(f's_waitcnt lgkmcnt({9-i})')
        a(f'buffer_store_dwordx4 v[{10+4*i}:{13+4*i}], v6, s[16:19], s25 offen')
    a.label('k0_end')
    a('s_endpgm')
    return 170
```

```python
import sys
from common import *
from k0 import *
from gemm import *

MASK = '0xffff0000'

def col_offsets(a, g, vcol, vcol1, base_bytes_sgpr=None):
    NB = g.NB
    a('s_lshl_b32 s60, s44, 1')
    a(f'v_lshl_add_u32 v{vcol}, v{g.vg}, 4, s60')
    if NB & 1:
        a(f's_add_u32 s61, s60, {32*(NB-1)}')
        a(f'v_lshl_add_u32 v{vcol1}, v{g.vg}, 3, s61')

def out_row(a, g, vrow, rb, stride, row_sgpr):
    a(f'v_add_u32 v{vrow}, {row_sgpr}, v{g.vi16}')
    if rb:
        a(f'v_add_u32 v{vrow}, 16, v{vrow}')
    a(f's_mov_b32 s62, {stride}')
    a(f'v_mul_lo_u32 v{vrow}, v{vrow}, s62')

def load_cols(a, g, dst, vcol, vcol1, srd_, off):
    NB = g.NB
    a(f's_mov_b32 s67, {off}')
    for p in range(NB // 2):
        a(f'buffer_load_dwordx4 v[{dst+4*p}:{dst+4*p+3}], v{vcol}, s[{srd_}:{srd_+3}], s67 offen offset:{64*p}')
    if NB & 1:
        p = NB // 2
        a(f'buffer_load_dwordx2 v[{dst+4*p}:{dst+4*p+1}], v{vcol1}, s[{srd_}:{srd_+3}], s67 offen')

def ndw(NB):
    return NB * 2

def unpack(a, src, dst, n):
    for i in range(n):
        a(f'v_lshlrev_b32 v{dst+2*i}, 16, v{src+i}')
        a(f'v_and_b32 v{dst+2*i+1}, {MASK}, v{src+i}')

def acc_list(g, rb):
    l = []
    for nb in range(g.NB):
        for q in range(4):
            l.append(g.acc[rb][nb] + q)
    return l

def store_row(a, g, src, vrow, vcol, vcol1, vtmp, srd_, extra=0):
    NB = g.NB
    a(f'v_add_u32 v{vtmp}, v{vrow}, v{vcol}')
    for p in range(NB // 2):
        a(f'buffer_store_dwordx4 v[{src+4*p}:{src+4*p+3}], v{vtmp}, s[{srd_}:{srd_+3}], {extra} offen offset:{64*p}')
    if NB & 1:
        p = NB // 2
        a(f'v_add_u32 v{vtmp+1}, v{vrow}, v{vcol1}')
        a(f'buffer_store_dwordx2 v[{src+4*p}:{src+4*p+1}], v{vtmp+1}, s[{srd_}:{srd_+3}], {extra} offen')

def l1_setup(a, c):
    a('s_cmp_ge_u32 s41, 16')
    a('s_cselect_b32 s30, s32, s30')
    a('s_cselect_b32 s31, s33, s31')
    a('s_cselect_b32 s63, 0x80000000, 0')
    a('s_cselect_b32 s64, 1280, 0')
    srd(a, 8, 30, 0, S * S * 2)
    srd(a, 12, 4, WS_NT, S * D * 2)
    srd(a, 20, 4, WS_MOD, 6 * D * 2)
    srd(a, 24, 4, WS_PQ, S * 2 * D * 2)
    a('s_and_b32 s47, s41, 15')
    a('s_lshl_b32 s47, s47, 7')

def l1_pre(a, c, g):
    R = g.R
    g.vcol, g.vcol1 = R.alloc(), R.alloc()
    col_offsets(a, g, g.vcol, g.vcol1)
    g.sa = R.alloc(12, 4); g.ca = R.alloc(12, 4)
    load_cols(a, g, g.sa, g.vcol, g.vcol1, 20, 0)
    load_cols(a, g, g.ca, g.vcol, g.vcol1, 20, 1280)

def l1_epi(a, c, g):
    SB = g.A[0][0][0]
    n = ndw(g.NB)
    saf, caf, t, o = SB, SB + 20, SB + 40, SB + 60
    unpack(a, g.sa, saf, n)
    unpack(a, g.ca, caf, n)
    for i in range(2 * n):
        a(f'v_add_f32 v{caf+i}, 1.0, v{caf+i}')
    for i in range(n):
        a(f'v_cvt_pk_bf16_f32 v{t+i}, v{caf+2*i}, v{caf+2*i+1}')
    unpack(a, t, caf, n)
    for i in range(2 * n):
        a(f'v_xor_b32 v{caf+i}, s63, v{caf+i}')
        a(f'v_xor_b32 v{saf+i}, s63, v{saf+i}')
    a('s_lshl_b32 s65, s45, 5')
    a('s_add_u32 s65, s65, s47')
    vrow, vtmp = SB + 84, SB + 86
    for rb in g.rbs:
        al = acc_list(g, rb)
        for i in range(2 * n):
            a(f'v_mul_f32 v{t+i}, v{al[i]}, v{caf+i}')
            a(f'v_fmac_f32 v{t+i}, v{g.rs[rb]}, v{saf+i}')
        oo = o + 10 * rb
        oo = SB + 60 + 12 * rb
        for i in range(n):
            a(f'v_cvt_pk_bf16_f32 v{oo+i}, v{t+2*i}, v{t+2*i+1}')
        out_row(a, g, vrow, rb, 2 * D * 2, 's65')
        store_row(a, g, oo, vrow, g.vcol, g.vcol1, vtmp + 2 * rb + 2, 24, 's64')

L1 = dict(NWG=256, MPX=4, NT=8, WM=4, WK=1, NB=5, NST=16, lda=S * 2, ldb=S * 2, a_goff=0,
          kargs=[(30, 'cs'), (32, 'ss')], setup=l1_setup, pre=l1_pre, epi=l1_epi, rowsum=True)

def l2_setup(a, c):
    srd(a, 8, 4, WS_PQ, S * 2 * D * 2)
    srd(a, 12, 30, 0, D * D * 2)
    srd(a, 16, 32, 0, D * D * 2)
    srd(a, 20, 4, WS_MOD, 6 * D * 2)
    srd(a, 24, 4, WS_X1, S * D * 2)
    srd(a, 28, 34, 0, S * D * 2)
    a('s_lshl_b32 s47, s41, 6')

def res_pre(goff, xsrd):
    def pre(a, c, g):
        R = g.R
        g.vcol, g.vcol1 = R.alloc(), R.alloc()
        col_offsets(a, g, g.vcol, g.vcol1)
        g.ga = R.alloc(12, 4); g.x = R.alloc(12, 4)
        g.vrow = R.alloc(); vt = R.alloc(2)
        load_cols(a, g, g.ga, g.vcol, g.vcol1, 20, goff)
        a('s_lshl_b32 s65, s45, 5')
        a('s_add_u32 s65, s65, s47')
        a('s_lshl_b32 s66, s46, 4')
        a('s_add_u32 s65, s65, s66')
        out_row(a, g, g.vrow, 0, D * 2, 's65')
        a(f'v_add_u32 v{vt}, v{g.vrow}, v{g.vcol}')
        a(f'v_add_u32 v{vt+1}, v{g.vrow}, v{g.vcol1}')
        load_cols(a, g, g.x, vt, vt + 1, xsrd, 0)
    return pre

def res_epi(osrd):
    def epi(a, c, g):
        SB = g.A[0][0][0]
        n = ndw(g.NB)
        gaf, xf, t, u = SB, SB + 20, SB + 40, SB + 60
        unpack(a, g.ga, gaf, n)
        unpack(a, g.x, xf, n)
        al = acc_list(g, 0)
        for i in range(n):
            a(f'v_cvt_pk_bf16_f32 v{u+i}, v{al[2*i]}, v{al[2*i+1]}')
        unpack(a, u, t, n)
        for i in range(2 * n):
            a(f'v_mul_f32 v{t+i}, v{t+i}, v{gaf+i}')
        for i in range(n):
            a(f'v_cvt_pk_bf16_f32 v{u+i}, v{t+2*i}, v{t+2*i+1}')
        unpack(a, u, t, n)
        for i in range(2 * n):
            a(f'v_add_f32 v{t+i}, v{t+i}, v{xf+i}')
        for i in range(n):
            a(f'v_cvt_pk_bf16_f32 v{u+i}, v{t+2*i}, v{t+2*i+1}')
        store_row(a, g, u, g.vrow, g.vcol, g.vcol1, SB + 80, osrd)
    return epi

L2 = dict(NWG=256, MPX=4, NT=8, WM=2, WK=2, NB=5, NST=5, lda=2 * D * 2, ldb=D * 2, a_goff=D * 2,
          kargs=[(30, 'ch'), (32, 'sh'), (34, 'x')], setup=l2_setup, pre=res_pre(2 * D * 2, 28), epi=res_epi(24))

def l3_setup(a, c):
    srd(a, 8, 4, WS_H2, S * D * 2)
    srd(a, 12, 4, WS_W1T, F * D * 2)
    srd(a, 24, 4, WS_HH, S * F * 2)
    a('s_lshl_b32 s47, s41, 7')

def l3_pre(a, c, g):
    R = g.R
    g.vcol, g.vcol1 = R.alloc(), R.alloc()
    col_offsets(a, g, g.vcol, g.vcol1)

def l3_epi(a, c, g):
    SB = g.A[0][0][0]
    n = ndw(g.NB)
    a('s_lshl_b32 s65, s45, 5')
    a('s_add_u32 s65, s65, s47')
    for rb in g.rbs:
        al = acc_list(g, rb)
        for r in al:
            a(f'v_max_f32 v{r}, 0, v{r}')
        oo = SB + 16 * rb
        for i in range(n):
            a(f'v_cvt_pk_bf16_f32 v{oo+i}, v{al[2*i]}, v{al[2*i+1]}')
        out_row(a, g, SB + 40 + rb, rb, F * 2, 's65')
        store_row(a, g, oo, SB + 40 + rb, g.vcol, g.vcol1, SB + 44 + 2 * rb, 24)

L3 = dict(NWG=256, MPX=2, NT=16, WM=4, WK=1, NB=6, NST=5, lda=D * 2, ldb=D * 2, a_goff=0,
          kargs=[], setup=l3_setup, pre=l3_pre, epi=l3_epi)

def l4_setup(a, c):
    srd(a, 8, 4, WS_HH, S * F * 2)
    srd(a, 12, 4, WS_W2T, F * D * 2)
    srd(a, 16, 4, WS_W2T + F, F * D * 2 - F)
    srd(a, 20, 4, WS_MOD, 6 * D * 2)
    srd(a, 24, 30, 0, S * D * 2)
    srd(a, 28, 4, WS_X1, S * D * 2)
    a('s_lshl_b32 s47, s41, 6')

L4 = dict(NWG=256, MPX=4, NT=8, WM=2, WK=2, NB=5, NST=6, lda=F * 2, ldb=F * 2, a_goff=F,
          kargs=[(30, 'out')], setup=l4_setup, pre=res_pre(5 * D * 2, 28), epi=res_epi(24))

def gen_ln2(a, name):
    kernel_header(a, name)
    a('s_cmp_ge_u32 s2, 128')
    a('s_cbranch_scc1 ln2_end')
    a(f's_load_dwordx2 s[4:5], s[0:1], {KA["ws"]}')
    a('v_and_b32 v1, 15, v0')
    a('v_lshrrev_b32 v2, 4, v0')
    a('s_mul_i32 s24, s2, 16*1280')
    a('v_mul_u32_u24 v3, 1280, v2')
    a('v_lshl_add_u32 v3, v1, 4, v3')
    a('v_add_u32 v3, s24, v3')
    a('v_lshlrev_b32 v4, 4, v1')
    a('s_waitcnt lgkmcnt(0)')
    srd(a, 12, 4, WS_X1, S * D * 2)
    srd(a, 16, 4, WS_H2, S * D * 2)
    srd(a, 20, 4, WS_MOD, 6 * D * 2)
    XB, SBb, CBb, FB, ST = 8, 28, 48, 68, 108
    for j in range(5):
        a(f'buffer_load_dwordx4 v[{XB+4*j}:{XB+4*j+3}], v3, s[12:15], 0 offen offset:{j*256}')
    a('s_mov_b32 s26, 3840')
    for j in range(5):
        a(f'buffer_load_dwordx4 v[{SBb+4*j}:{SBb+4*j+3}], v4, s[20:23], s26 offen offset:{j*256}')
    a('s_mov_b32 s25, 5120')
    for j in range(5):
        a(f'buffer_load_dwordx4 v[{CBb+4*j}:{CBb+4*j+3}], v4, s[20:23], s25 offen offset:{j*256}')
    a('s_waitcnt vmcnt(10)')
    unpack(a, XB, FB, 20)
    sm = ST
    a(f'v_add_f32 v{sm}, v{FB}, v{FB+1}')
    a(f'v_add_f32 v{sm+1}, v{FB+2}, v{FB+3}')
    for i in range(4, 40, 2):
        a(f'v_add_f32 v{sm}, v{sm}, v{FB+i}')
        a(f'v_add_f32 v{sm+1}, v{sm+1}, v{FB+i+1}')
    a(f'v_add_f32 v{sm}, v{sm}, v{sm+1}')
    dpp_allreduce16(a, sm, sm + 1)
    a(f'v_mul_f32 v{sm}, 0x3acccccd, v{sm}')
    a(f'v_mov_b32 v{sm+2}, 0')
    a(f'v_mov_b32 v{sm+3}, 0')
    for i in range(0, 40, 2):
        a(f'v_sub_f32 v{sm+4}, v{FB+i}, v{sm}')
        a(f'v_sub_f32 v{sm+5}, v{FB+i+1}, v{sm}')
        a(f'v_fmac_f32 v{sm+2}, v{sm+4}, v{sm+4}')
        a(f'v_fmac_f32 v{sm+3}, v{sm+5}, v{sm+5}')
    a(f'v_add_f32 v{sm+2}, v{sm+2}, v{sm+3}')
    dpp_allreduce16(a, sm + 2, sm + 3)
    a(f'v_mul_f32 v{sm+2}, 0x3acccccd, v{sm+2}')
    a(f'v_cvt_pk_bf16_f32 v{sm+3}, v{sm}, v{sm+2}')
    a(f'v_lshlrev_b32 v{sm}, 16, v{sm+3}')
    a(f'v_and_b32 v{sm+2}, {MASK}, v{sm+3}')
    a(f'v_add_f32 v{sm+2}, 0x3727c5ac, v{sm+2}')
    a(f'v_cvt_pk_bf16_f32 v{sm+2}, v{sm+2}, v{sm+2}')
    a(f'v_lshlrev_b32 v{sm+2}, 16, v{sm+2}')
    a(f'v_sqrt_f32 v{sm+2}, v{sm+2}')
    a('s_nop 0')
    a(f'v_cvt_pk_bf16_f32 v{sm+2}, v{sm+2}, v{sm+2}')
    a(f'v_lshlrev_b32 v{sm+2}, 16, v{sm+2}')
    a(f'v_rcp_f32 v{sm+2}, v{sm+2}')
    a('s_waitcnt vmcnt(0)')
    T = 116
    for i in range(20):
        t = T + 8 * (i % 2)
        f0, f1 = FB + 2 * i, FB + 2 * i + 1
        a(f'v_sub_f32 v{t}, v{f0}, v{sm}')
        a(f'v_sub_f32 v{t+1}, v{f1}, v{sm}')
        a(f'v_cvt_pk_bf16_f32 v{t+2}, v{t}, v{t+1}')
        a(f'v_lshlrev_b32 v{t}, 16, v{t+2}')
        a(f'v_and_b32 v{t+1}, {MASK}, v{t+2}')
        a(f'v_mul_f32 v{t}, v{t}, v{sm+2}')
        a(f'v_mul_f32 v{t+1}, v{t+1}, v{sm+2}')
        a(f'v_cvt_pk_bf16_f32 v{t+2}, v{t}, v{t+1}')
        a(f'v_lshlrev_b32 v{t+3}, 16, v{CBb+i}')
        a(f'v_and_b32 v{t+4}, {MASK}, v{CBb+i}')
        a(f'v_add_f32 v{t+3}, 1.0, v{t+3}')
        a(f'v_add_f32 v{t+4}, 1.0, v{t+4}')
        a(f'v_cvt_pk_bf16_f32 v{t+5}, v{t+3}, v{t+4}')
        a(f'v_lshlrev_b32 v{t+3}, 16, v{t+5}')
        a(f'v_and_b32 v{t+4}, {MASK}, v{t+5}')
        a(f'v_lshlrev_b32 v{t}, 16, v{t+2}')
        a(f'v_and_b32 v{t+1}, {MASK}, v{t+2}')
        a(f'v_mul_f32 v{t}, v{t}, v{t+3}')
        a(f'v_mul_f32 v{t+1}, v{t+1}, v{t+4}')
        a(f'v_cvt_pk_bf16_f32 v{t+2}, v{t}, v{t+1}')
        a(f'v_lshlrev_b32 v{t}, 16, v{t+2}')
        a(f'v_and_b32 v{t+1}, {MASK}, v{t+2}')
        a(f'v_lshlrev_b32 v{t+3}, 16, v{SBb+i}')
        a(f'v_and_b32 v{t+4}, {MASK}, v{SBb+i}')
        a(f'v_add_f32 v{t}, v{t}, v{t+3}')
        a(f'v_add_f32 v{t+1}, v{t+1}, v{t+4}')
        a(f'v_cvt_pk_bf16_f32 v{XB+i}, v{t}, v{t+1}')
    for j in range(5):
        a(f'buffer_store_dwordx4 v[{XB+4*j}:{XB+4*j+3}], v3, s[16:19], 0 offen offset:{j*256}')
    a.label('ln2_end')
    a('s_endpgm')
    return 136

def main(out):
    hdr = open('adaLN_cond__spectral_fnet__dense_activation_relu__prompt.s.ref').read().split('\n')
    hdr = [l for l in hdr if l.startswith(';') and '@launch' not in l and 'Override' not in l and 'grid=ceil' not in l]
    a = Asm()
    descs = []
    launches = []
    nv = gen_k0(a, 'k0_kernel'); descs.append(kernel_desc('k0_kernel', nv)); launches.append(('k0_kernel', K0_GRID, K0_LDS))
    nv, lds = gen_gemm(a, 'l1_kernel', L1); descs.append(kernel_desc('l1_kernel', nv)); launches.append(('l1_kernel', 256, lds))
    nv, lds = gen_gemm(a, 'l2_kernel', L2); descs.append(kernel_desc('l2_kernel', nv)); launches.append(('l2_kernel', 256, lds))
    nv = gen_ln2(a, 'ln2_kernel'); descs.append(kernel_desc('ln2_kernel', nv)); launches.append(('ln2_kernel', 128, 0))
    nv, lds = gen_gemm(a, 'l3_kernel', L3); descs.append(kernel_desc('l3_kernel', nv)); launches.append(('l3_kernel', 256, lds))
    nv, lds = gen_gemm(a, 'l4_kernel', L4); descs.append(kernel_desc('l4_kernel', nv)); launches.append(('l4_kernel', 256, lds))
    txt = '\n'.join(hdr) + '\n'
    for (k, g, l) in launches:
        txt += f'; @launch kernel={k} grid=({g},1,1) block=(256,1,1) lds={l}\n'
    txt += '.amdgcn_target "amdgcn-amd-amdhsa--gfx950"\n.text\n'
    txt += a.text()
    txt += '.section .rodata,"a"\n'
    txt += ''.join(descs)
    open(out, 'w').write(txt)

if __name__ == '__main__':
    main(sys.argv[1] if len(sys.argv) > 1 else 'adaLN_cond__spectral_fnet__dense_activation_relu__prompt.s')
```

```python
from common import *

class G:
    pass

def gen_gemm(a, name, cfg):
    c = cfg
    NB, WM, WK, NST = c['NB'], c['WM'], c['WK'], c['NST']
    BM, BN = WM * 32, NB * 16
    GSZ = NB * 4096
    BUFSZ = GSZ * WK
    NBUF = 3
    XCH = NBUF * BUFSZ
    lds_total = XCH + (4 * NB * 1024 if WK == 2 else 0)
    NDMA = NB * WK
    NLD = NDMA + 8
    end = name + '_end'
    kernel_header(a, name)
    a(f's_cmp_ge_u32 s2, {c["NWG"]}')
    a(f's_cbranch_scc1 {end}')
    if c.get('stamp'):
        a('s_memtime s[70:71]')
        a('s_memrealtime s[72:73]')
        a(f's_load_dwordx2 s[78:79], s[0:1], {KA["dbg"]}')
    a(f's_load_dwordx2 s[4:5], s[0:1], {KA["ws"]}')
    for (reg, slot) in c['kargs']:
        a(f's_load_dwordx2 s[{reg}:{reg+1}], s[0:1], {KA[slot]}')
    R = Regs(1)
    vlane = R.alloc(); vi16 = R.alloc(); vg = R.alloc(); vt0 = R.alloc(); vt1 = R.alloc(); vt2 = R.alloc()
    a(f'v_lshrrev_b32 v{vt0}, 6, v0')
    a(f'v_and_b32 v{vlane}, 63, v0')
    a(f'v_and_b32 v{vi16}, 15, v0')
    a(f'v_readfirstlane_b32 s40, v{vt0}')
    a(f'v_lshrrev_b32 v{vg}, 4, v{vlane}')
    ntl = c['NT'].bit_length() - 1
    a('s_and_b32 s41, s2, 7')
    a('s_lshr_b32 s42, s2, 3')
    a(f's_lshr_b32 s43, s42, {ntl}')
    a(f's_mul_i32 s41, s41, {c["MPX"]}')
    a('s_add_u32 s41, s41, s43')
    a(f's_and_b32 s42, s42, {c["NT"]-1}')
    a(f's_mul_i32 s44, s42, {BN}')
    if WK == 2:
        a(f's_and_b32 s45, s40, {WM-1}')
        a(f's_lshr_b32 s46, s40, {WM.bit_length()-1}')
    else:
        a('s_mov_b32 s45, s40')
        a('s_mov_b32 s46, 0')
    a('s_waitcnt lgkmcnt(0)')
    c['setup'](a, c)
    va = [R.alloc(), R.alloc()]
    a('s_lshl_b32 s48, s45, 5')
    a('s_add_u32 s48, s48, s47')
    a(f'v_add_u32 v{vt0}, s48, v{vi16}')
    a(f's_mov_b32 s49, {c["lda"]}')
    a(f'v_mul_lo_u32 v{vt0}, v{vt0}, s49')
    a(f'v_lshl_add_u32 v{vt0}, v{vg}, 4, v{vt0}')
    a(f's_mul_i32 s49, s46, {c["a_goff"]}')
    a(f'v_add_u32 v{va[0]}, s49, v{vt0}')
    a(f'v_add_u32 v{va[1]}, {16*c["lda"]}, v{va[0]}')
    vb = [R.alloc() for _ in range(NB)]
    a(f's_lshl_b32 s50, s40, 2')
    a(f'v_add_u32 v{vt0}, s50, v{vg}')
    a(f'v_xor_b32 v{vt1}, v{vt0}, v{vi16}')
    a(f'v_lshlrev_b32 v{vt1}, 4, v{vt1}')
    a(f's_mov_b32 s51, {c["ldb"]}')
    npair = NB // 2
    if npair:
        a(f's_lshl_b32 s52, s40, 3')
        a(f's_add_u32 s52, s52, s44')
        a(f'v_add_u32 v{vt2}, s52, v{vg}')
        a(f'v_mul_lo_u32 v{vt2}, v{vt2}, s51')
        a(f'v_add_u32 v{vt2}, v{vt2}, v{vt1}')
        for j in range(2 * npair):
            p, h = j >> 1, j & 1
            off = (32 * p + 4 * h) * c['ldb']
            a(f'v_add_u32 v{vb[j]}, {off}, v{vt2}')
    if NB & 1:
        j = NB - 1
        a(f'v_add_u32 v{vt2}, s44, v{vt0}')
        a(f'v_mul_lo_u32 v{vt2}, v{vt2}, s51')
        a(f'v_add_u32 v{vt2}, v{vt2}, v{vt1}')
        a(f'v_add_u32 v{vb[j]}, {16*j*c["ldb"]}, v{vt2}')
    vd = [[R.alloc() for ks in range(4)] for b in range(NBUF)]
    a(f'v_xor_b32 v{vt0}, v{vg}, v{vi16}')
    a(f's_mul_i32 s53, s46, {GSZ}')
    for ks in range(4):
        a(f'v_xor_b32 v{vt1}, {ks<<2}, v{vt0}')
        a(f'v_lshlrev_b32 v{vt1}, 4, v{vt1}')
        a(f'v_lshl_add_u32 v{vt1}, v{vi16}, 8, v{vt1}')
        a(f'v_add_u32 v{vd[0][ks]}, s53, v{vt1}')
        for b in range(1, NBUF):
            a(f'v_add_u32 v{vd[b][ks]}, {b*BUFSZ}, v{vd[0][ks]}')
    a('s_lshl_b32 s54, s40, 10')
    A = [[[R.alloc(4, 4) for ks in range(4)] for rb in range(2)] for b in range(NBUF)]
    Bf = [[R.alloc(4, 4) for nb in range(NB)] for s in range(2)]
    acc = [[R.alloc(4, 4) for nb in range(NB)] for rb in range(2)]
    if c.get('rowsum'):
        rs = [R.alloc(4, 4) for rb in range(2)]
        ones = R.alloc(4, 4)
        for q in range(4):
            a(f'v_mov_b32 v{ones+q}, 0x3f803f80')
        for rb in range(2):
            for q in range(4):
                a(f'v_mov_b32 v{rs[rb]+q}, 0')
    for rb in range(2):
        for nb in range(NB):
            for q in range(4):
                a(f'v_mov_b32 v{acc[rb][nb]+q}, 0')

    koff = {'mode': 'imm'}
    rot = c.get('rot')
    if rot:
        a('s_lshr_b32 s59, s2, 3')
        a(f's_mul_i32 s59, s59, {rot*256}')
        a(f's_and_b32 s59, s59, {NST*256-1}')
    def set_k(sreg, st):
        if rot:
            if koff['mode'] == 'imm':
                a(f's_add_u32 s{sreg}, s59, {st*256}')
            else:
                a(f's_add_u32 s{sreg}, s58, s59')
                a(f's_add_u32 s{sreg}, s{sreg}, {(st - koff["base"])*256}')
            a(f's_and_b32 s{sreg}, s{sreg}, {NST*256-1}')
        elif koff['mode'] == 'imm':
            a(f's_mov_b32 s{sreg}, {st*256}')
        else:
            a(f's_add_u32 s{sreg}, s58, {(st - koff["base"])*256}')
    def issue_dma(st):
        b = st % NBUF
        set_k(55, st)
        for grp in range(WK):
            srdb = 12 + 4 * grp
            for j in range(NB):
                a(f's_add_u32 m0, s54, {b*BUFSZ + grp*GSZ + j*4096}')
                a('s_nop 0')
                a(f'buffer_load_dwordx4 v{vb[j]}, s[{srdb}:{srdb+3}], s55 offen lds')
    def issue_a(st):
        b = st % NBUF
        set_k(56, st)
        for ks in range(4):
            for rb in range(2):
                r = A[b][rb][ks]
                a(f'buffer_load_dwordx4 v[{r}:{r+3}], v{va[rb]}, s[8:11], s56 offen offset:{ks*64}')
    def read_b(st, ks, setid):
        b = st % NBUF
        for nb in range(NB):
            r = Bf[setid][nb]
            a(f'ds_read_b128 v[{r}:{r+3}], v{vd[b][ks]} offset:{nb*4096}')
    def mfmas(st, ks, setid):
        b = st % NBUF
        for rb in range(2):
            ar = A[b][rb][ks]
            for nb in range(NB):
                br = Bf[setid][nb]
                d = acc[rb][nb]
                a(f'v_mfma_f32_16x16x32_bf16 v[{d}:{d+3}], v[{br}:{br+3}], v[{ar}:{ar+3}], v[{d}:{d+3}]')
            if c.get('rowsum'):
                d = rs[rb]
                a(f'v_mfma_f32_16x16x32_bf16 v[{d}:{d+3}], v[{ones}:{ones+3}], v[{ar}:{ar+3}], v[{d}:{d+3}]')

    g = G()
    g.R, g.acc, g.vi16, g.vg, g.vlane = R, acc, vi16, vg, vlane
    g.tmp = (vt0, vt1, vt2)
    g.A, g.Bf = A, Bf
    g.NB = NB
    g.WK = WK
    if c.get('rowsum'):
        g.rs = rs
    c['pre'](a, c, g)
    npre = min(NBUF, NST)
    for st in range(npre):
        issue_dma(st)
        issue_a(st)
    a(f's_waitcnt vmcnt({(npre-1)*NLD})')
    a('s_barrier')
    read_b(0, 0, 0)
    def stage(st):
        for ks in range(3):
            read_b(st, ks + 1, (ks + 1) & 1)
            a(f's_waitcnt lgkmcnt({NB})')
            mfmas(st, ks, ks & 1)
        if st + 1 < NST:
            nout = min(st + 2, NST - 1) - (st + 1)
            a(f's_waitcnt vmcnt({nout*NLD}) lgkmcnt(0)')
            a('s_barrier')
            read_b(st + 1, 0, 0)
            if st + 3 < NST:
                issue_dma(st + 3)
            mfmas(st, 3, 1)
            if st + 3 < NST:
                issue_a(st + 3)
        else:
            a('s_waitcnt lgkmcnt(0)')
            mfmas(st, 3, 1)
    ntrips = (NST - 4) // 3 if c.get('loop') else 0
    if ntrips >= 2:
        lp = a.newlabel(name + '_loop')
        a('s_mov_b32 s58, 0')
        a.label(lp)
        koff['mode'] = 'loop'; koff['base'] = 0
        for st in range(3):
            stage(st)
        a('s_add_u32 s58, s58, 768')
        a(f's_cmp_lt_u32 s58, {ntrips*768}')
        a(f's_cbranch_scc1 {lp}')
        koff['mode'] = 'imm'
        for st in range(3 * ntrips, NST):
            stage(st)
    else:
        for st in range(NST):
            stage(st)
    a('s_nop 7')
    a('s_nop 7')
    if WK == 2:
        lk0, lk1 = a.newlabel(name), a.newlabel(name)
        a(f'v_lshlrev_b32 v{vt0}, 4, v{vlane}')
        a(f's_mul_i32 s57, s40, {NB*1024}')
        a(f's_add_u32 s57, s57, {XCH}')
        a(f'v_add_u32 v{vt1}, s57, v{vt0}')
        a(f's_xor_b32 s57, s40, {WM}')
        a(f's_mul_i32 s57, s57, {NB*1024}')
        a(f's_add_u32 s57, s57, {XCH}')
        a(f'v_add_u32 v{vt2}, s57, v{vt0}')
        T = Bf[0]
        a('s_cmp_eq_u32 s46, 0')
        a(f's_cbranch_scc0 {lk1}')
        for nb in range(NB):
            d = acc[1][nb]
            a(f'ds_write_b128 v{vt1}, v[{d}:{d+3}] offset:{nb*1024}')
        a('s_waitcnt lgkmcnt(0)')
        a('s_barrier')
        for nb in range(NB):
            a(f'ds_read_b128 v[{T[nb]}:{T[nb]+3}], v{vt2} offset:{nb*1024}')
        a('s_waitcnt lgkmcnt(0)')
        for nb in range(NB):
            for q in range(4):
                a(f'v_add_f32 v{acc[0][nb]+q}, v{acc[0][nb]+q}, v{T[nb]+q}')
        a(f's_branch {lk0}')
        a.label(lk1)
        for nb in range(NB):
            d = acc[0][nb]
            a(f'ds_write_b128 v{vt1}, v[{d}:{d+3}] offset:{nb*1024}')
        a('s_waitcnt lgkmcnt(0)')
        a('s_barrier')
        for nb in range(NB):
            a(f'ds_read_b128 v[{T[nb]}:{T[nb]+3}], v{vt2} offset:{nb*1024}')
        a('s_waitcnt lgkmcnt(0)')
        for nb in range(NB):
            for q in range(4):
                a(f'v_add_f32 v{acc[0][nb]+q}, v{acc[1][nb]+q}, v{T[nb]+q}')
        a.label(lk0)
        g.rbs = [0]
    else:
        g.rbs = [0, 1]
    c['epi'](a, c, g)
    if c.get('stamp'):
        a('s_waitcnt vmcnt(0)')
        a('s_memtime s[74:75]')
        a('s_memrealtime s[76:77]')
        a('s_waitcnt lgkmcnt(0)')
        a('s_sub_u32 s74, s74, s70')
        a('s_sub_u32 s76, s76, s72')
        a('s_mov_b32 s80, s78')
        a('s_mov_b32 s81, s79')
        a('s_mov_b32 s82, 256')
        a('s_mov_b32 s83, 0x00020000')
        a('s_and_b32 s84, s2, 31')
        a('s_lshl_b32 s84, s84, 3')
        a('v_mov_b32 v1, s84')
        a('v_mov_b32 v2, s74')
        a('v_mov_b32 v3, s76')
        a('s_cmp_lt_u32 s2, 32')
        a(f's_cbranch_scc0 {end}')
        a('v_cmp_eq_u32 vcc, 0, v0')
        a('s_and_saveexec_b64 s[86:87], vcc')
        a(f's_cbranch_execz {end}')
        a('buffer_store_dwordx2 v[2:3], v1, s[80:83], 0 offen')
    a.label(end)
    a('s_endpgm')
    return R.n, lds_total
```

```python
from common import *

class G:
    pass

MASK = '0xffff0000'

def unpack(a, src, dst, n):
    for i in range(n):
        a(f'v_lshlrev_b32 v{dst+2*i}, 16, v{src+i}')
        a(f'v_and_b32 v{dst+2*i+1}, {MASK}, v{src+i}')

def gen_gemm(a, name, c):
    NB, WM, WK, NST, BK, NBUF = c['NB'], c['WM'], c['WK'], c['NST'], c['BK'], c['NBUF']
    BM, BN = WM * 32, NB * 16
    RB = BK * 2
    CPR = RB // 16
    RPI = 64 // CPR
    KS = BK // 32
    nA = WK * BM // RPI
    nB = WK * BN // RPI
    assert nA % 4 == 0 and nB % 4 == 0
    cntA, cntB = BM // RPI, BN // RPI
    BUFSZ = WK * (BM + BN) * RB
    AOFF = lambda gam: gam * BM * RB
    BOFF = lambda gam: WK * BM * RB + gam * BN * RB
    XCH = 0
    lds_total = NBUF * BUFSZ
    NLD = (nA + nB) // 4
    TS = BN * 2 + 16
    assert TS % 16 == 0
    end = name + '_end'
    kernel_header(a, name)
    a(f's_cmp_ge_u32 s2, {c["NWG"]}')
    a(f's_cbranch_scc1 {end}')
    if c.get('stamp'):
        a('s_memtime s[90:91]')
        a('s_memrealtime s[92:93]')
        a(f's_load_dwordx2 s[98:99], s[0:1], {KA["dbg"]}')
    a(f's_load_dwordx2 s[4:5], s[0:1], {KA["ws"]}')
    for (reg, slot) in c['kargs']:
        a(f's_load_dwordx2 s[{reg}:{reg+1}], s[0:1], {KA[slot]}')
    R = Regs(1)
    vlane = R.alloc(); vi16 = R.alloc(); vg = R.alloc(); vt0 = R.alloc(); vt1 = R.alloc(); vt2 = R.alloc()
    a(f'v_lshrrev_b32 v{vt0}, 6, v0')
    a(f'v_and_b32 v{vlane}, 63, v0')
    a(f'v_and_b32 v{vi16}, 15, v0')
    a(f'v_readfirstlane_b32 s40, v{vt0}')
    a(f'v_lshrrev_b32 v{vg}, 4, v{vlane}')
    ntl = c['NT'].bit_length() - 1
    a('s_and_b32 s41, s2, 7')
    a('s_lshr_b32 s42, s2, 3')
    a(f's_lshr_b32 s43, s42, {ntl}')
    a(f's_mul_i32 s41, s41, {c["MPX"]}')
    a('s_add_u32 s41, s41, s43')
    a(f's_and_b32 s42, s42, {c["NT"]-1}')
    a(f's_mul_i32 s44, s42, {BN}')
    if WK == 2:
        a(f's_and_b32 s45, s40, {WM-1}')
        a(f's_lshr_b32 s46, s40, {WM.bit_length()-1}')
    else:
        a('s_mov_b32 s45, s40')
        a('s_mov_b32 s46, 0')
    vla, vlb = R.alloc(), R.alloc()
    lc = CPR.bit_length() - 1
    a(f'v_lshrrev_b32 v{vt0}, {lc}, v{vlane}')
    a(f'v_and_b32 v{vt1}, {CPR-1}, v{vlane}')
    if BK == 128:
        a('s_lshl_b32 s50, s40, 2')
        a(f'v_add_u32 v{vt2}, s50, v{vt0}')
    else:
        a('s_and_b32 s50, s40, 1')
        a('s_lshl_b32 s50, s50, 2')
        a(f'v_lshrrev_b32 v{vt2}, 1, v{vt0}')
        a(f'v_add_u32 v{vt2}, s50, v{vt2}')
    a(f'v_xor_b32 v{vt1}, v{vt1}, v{vt2}')
    a(f'v_lshlrev_b32 v{vt1}, 4, v{vt1}')
    a(f'v_mul_u32_u24 v{vla}, {c["lda"]}, v{vt0}')
    a(f'v_add_u32 v{vla}, v{vla}, v{vt1}')
    a(f'v_mul_u32_u24 v{vlb}, {c["ldb"]}, v{vt0}')
    a(f'v_add_u32 v{vlb}, v{vlb}, v{vt1}')
    a('s_lshl_b32 s54, s40, 10')
    a('s_waitcnt lgkmcnt(0)')
    c['setup'](a, c)
    if c.get('helper'):
        a('s_cmp_eq_u32 s40, 4')
        a(f's_cbranch_scc1 {name}_helper')
    SS = 64
    nslot = NLD
    for q in range(nA // 4):
        gam = (4 * q) // cntA
        loc0 = (4 * q) % cntA
        a(f's_add_u32 s{SS+q}, s40, {loc0}')
        a(f's_mul_i32 s{SS+q}, s{SS+q}, {RPI}')
        a(f's_add_u32 s{SS+q}, s{SS+q}, s47')
        a(f's_mul_i32 s{SS+q}, s{SS+q}, {c["lda"]}')
        if gam:
            a(f's_add_u32 s{SS+q}, s{SS+q}, {gam*c["a_goff"]}')
    for q in range(nB // 4):
        d = SS + nA // 4 + q
        a(f's_add_u32 s{d}, s40, {4*q}')
        if WK == 2:
            a(f's_cmp_ge_u32 s{d}, {cntB}')
            a(f's_cselect_b32 s51, {cntB}, 0')
            a(f's_cselect_b32 s52, {c["b_goff"]}, 0')
            a(f's_sub_u32 s{d}, s{d}, s51')
        a(f's_mul_i32 s{d}, s{d}, {RPI}')
        a(f's_add_u32 s{d}, s{d}, s44')
        a(f's_mul_i32 s{d}, s{d}, {c["ldb"]}')
        if WK == 2:
            a(f's_add_u32 s{d}, s{d}, s52')
    assert SS + nslot <= 88

    g = G()
    g.R, g.vi16, g.vg, g.vlane = R, vi16, vg, vlane
    g.tmp = (vt0, vt1, vt2)
    g.NB, g.WK, g.BN, g.TS = NB, WK, BN, TS

    issued = []
    pending = [(st, q) for st in range(NST) for q in range(nslot)]
    state = {'free_upto': NBUF - 1}
    def emit_dma():
        st, q = pending.pop(0)
        b = st % NBUF
        a(f's_add_u32 m0, s54, {b*BUFSZ + q*4096}')
        a(f's_add_u32 s55, s{SS+q}, {st*RB}')
        if q < nA // 4:
            a(f'buffer_load_dwordx4 v{vla}, s[8:11], s55 offen lds')
        else:
            a(f'buffer_load_dwordx4 v{vlb}, s[12:15], s55 offen lds')
        issued.append(st)
    def try_dma():
        if pending and pending[0][0] <= state['free_upto']:
            emit_dma()
    def flush_upto(st):
        while pending and pending[0][0] <= st:
            assert pending[0][0] <= state['free_upto']
            emit_dma()
    def vm_wait_count(st):
        n = 0
        for t in reversed(issued):
            if t <= st:
                break
            n += 1
        return n
    g.issued = issued
    c['pre0'](a, c, g)
    flush_upto(min(c.get('NPRE', 2), NST) - 1)
    vda = [[R.alloc() for ks in range(KS)] for b in range(NBUF)]
    vdb = [[R.alloc() for ks in range(KS)] for b in range(NBUF)]
    if BK == 128:
        a(f'v_xor_b32 v{vt0}, v{vg}, v{vi16}')
    else:
        a(f'v_lshrrev_b32 v{vt0}, 1, v{vi16}')
        a(f'v_xor_b32 v{vt0}, v{vg}, v{vt0}')
    a(f's_mul_i32 s53, s46, {BM*RB}')
    a(f's_mul_i32 s56, s45, {32*RB}')
    a('s_add_u32 s53, s53, s56')
    a(f's_mul_i32 s56, s46, {BN*RB}')
    a(f's_add_u32 s56, s56, {WK*BM*RB}')
    lrb = RB.bit_length() - 1
    for ks in range(KS):
        a(f'v_xor_b32 v{vt1}, {ks<<2}, v{vt0}')
        a(f'v_lshlrev_b32 v{vt1}, 4, v{vt1}')
        a(f'v_lshl_add_u32 v{vt1}, v{vi16}, {lrb}, v{vt1}')
        a(f'v_add_u32 v{vda[0][ks]}, s53, v{vt1}')
        a(f'v_add_u32 v{vdb[0][ks]}, s56, v{vt1}')
        for b in range(1, NBUF):
            a(f'v_add_u32 v{vda[b][ks]}, {b*BUFSZ}, v{vda[0][ks]}')
            a(f'v_add_u32 v{vdb[b][ks]}, {b*BUFSZ}, v{vdb[0][ks]}')
    SBASE = R.alloc(max(84, 8 * (NB + 2)), 4)
    Af = [[SBASE + 8 * s + 4 * rb for rb in range(2)] for s in range(2)]
    Bf = [[SBASE + 16 + 4 * NB * s + 4 * nb for nb in range(NB)] for s in range(2)]
    acc = [[R.alloc(4, 4) for nb in range(NB)] for rb in range(2)]
    g.acc = acc
    if c.get('rowsum'):
        rs = [R.alloc(4, 4) for rb in range(2)]
        ones = R.alloc(4, 4)
        g.rs = rs
        for q in range(4):
            a(f'v_mov_b32 v{ones+q}, 0x3f803f80')
        for rb in range(2):
            for q in range(4):
                a(f'v_mov_b32 v{rs[rb]+q}, 0')
    for rb in range(2):
        for nb in range(NB):
            for q in range(4):
                a(f'v_mov_b32 v{acc[rb][nb]+q}, 0')
    g.SB = SBASE
    c['pre1'](a, c, g)

    def read_f(st, ks, setid):
        b = st % NBUF
        for rb in range(2):
            r = Af[setid][rb]
            a(f'ds_read_b128 v[{r}:{r+3}], v{vda[b][ks]} offset:{rb*16*RB}')
        for nb in range(NB):
            r = Bf[setid][nb]
            a(f'ds_read_b128 v[{r}:{r+3}], v{vdb[b][ks]} offset:{nb*16*RB}')
    GAP = c.get('GAP', 3)
    cnt = [0]
    def mf(line):
        a(line)
        cnt[0] += 1
        if cnt[0] % GAP == 0:
            try_dma()
    def mfmas(setid):
        for rb in range(2):
            ar = Af[setid][rb]
            for nb in range(NB):
                br = Bf[setid][nb]
                d = acc[rb][nb]
                mf(f'v_mfma_f32_16x16x32_bf16 v[{d}:{d+3}], v[{br}:{br+3}], v[{ar}:{ar+3}], v[{d}:{d+3}]')
            if c.get('rowsum'):
                d = rs[rb]
                mf(f'v_mfma_f32_16x16x32_bf16 v[{d}:{d+3}], v[{ones}:{ones+3}], v[{ar}:{ar+3}], v[{d}:{d+3}]')
    NF = NB + 2
    fine = c.get('fine')
    if fine:
        vst = R.alloc()
        a(f'v_mov_b32 v{vst}, 0')
        stn = [0]
        def fstamp():
            a('s_memtime s[86:87]')
            a('s_waitcnt lgkmcnt(0)')
            a('s_sub_u32 s86, s86, s90')
            a(f'v_writelane_b32 v{vst}, s86, {stn[0]}')
            stn[0] += 1
    else:
        def fstamp():
            pass
    fstamp()
    a(f's_waitcnt vmcnt({vm_wait_count(0)})')
    fstamp()
    a('s_barrier')
    read_f(0, 0, 0)
    par = 0
    for st in range(NST):
        for ks in range(KS - 1):
            read_f(st, ks + 1, par ^ 1)
            a(f's_waitcnt lgkmcnt({NF})')
            mfmas(par)
            par ^= 1
        if st + 1 < NST:
            flush_upto(st + 1)
            fstamp()
            a(f's_waitcnt vmcnt({min(63, vm_wait_count(st + 1))}) lgkmcnt(0)')
            fstamp()
            a('s_barrier')
            state['free_upto'] = st + NBUF
            read_f(st + 1, 0, par ^ 1)
            mfmas(par)
            par ^= 1
        else:
            a('s_waitcnt lgkmcnt(0)')
            mfmas(par)
    a('s_nop 7')
    a('s_nop 7')
    if WK == 2:
        a('s_barrier')
        lk0, lk1 = a.newlabel(name), a.newlabel(name)
        a(f'v_lshlrev_b32 v{vt0}, 4, v{vlane}')
        a(f's_mul_i32 s57, s40, {NB*1024}')
        a(f's_add_u32 s57, s57, {XCH}')
        a(f'v_add_u32 v{vt1}, s57, v{vt0}')
        a(f's_xor_b32 s57, s40, {WM}')
        a(f's_mul_i32 s57, s57, {NB*1024}')
        a(f's_add_u32 s57, s57, {XCH}')
        a(f'v_add_u32 v{vt2}, s57, v{vt0}')
        T = Bf[0]
        a('s_cmp_eq_u32 s46, 0')
        a(f's_cbranch_scc0 {lk1}')
        for nb in range(NB):
            d = acc[1][nb]
            a(f'ds_write_b128 v{vt1}, v[{d}:{d+3}] offset:{nb*1024}')
        a('s_waitcnt lgkmcnt(0)')
        a('s_barrier')
        for nb in range(NB):
            a(f'ds_read_b128 v[{T[nb]}:{T[nb]+3}], v{vt2} offset:{nb*1024}')
        a('s_waitcnt lgkmcnt(0)')
        for nb in range(NB):
            for q in range(4):
                a(f'v_add_f32 v{acc[0][nb]+q}, v{acc[0][nb]+q}, v{T[nb]+q}')
        a(f's_branch {lk0}')
        a.label(lk1)
        for nb in range(NB):
            d = acc[0][nb]
            a(f'ds_write_b128 v{vt1}, v[{d}:{d+3}] offset:{nb*1024}')
        a('s_waitcnt lgkmcnt(0)')
        a('s_barrier')
        for nb in range(NB):
            a(f'ds_read_b128 v[{T[nb]}:{T[nb]+3}], v{vt2} offset:{nb*1024}')
        a('s_waitcnt lgkmcnt(0)')
        for nb in range(NB):
            for q in range(4):
                a(f'v_add_f32 v{acc[0][nb]+q}, v{acc[1][nb]+q}, v{T[nb]+q}')
        a.label(lk0)
        g.rbs = [0]
    else:
        a('s_barrier')
        g.rbs = [0, 1]
    fstamp()
    c['epi'](a, c, g)
    if fine:
        a('s_waitcnt vmcnt(0)')
        fstamp()
        a('s_mov_b32 s60, s98')
        a('s_mov_b32 s61, s99')
        a('s_mov_b32 s62, 256')
        a('s_mov_b32 s63, 0x00020000')
        a('s_mov_b64 exec, -1')
        a(f'v_lshlrev_b32 v1, 2, v{vlane}')
        a(f's_cmp_eq_u32 s2, {fine-1}')
        a(f's_cbranch_scc0 {end}')
        a('s_cmp_eq_u32 s40, 0')
        a(f's_cbranch_scc0 {end}')
        a(f'buffer_store_dword v{vst}, v1, s[60:63], 0 offen')
    elif c.get('stamp'):
        a('s_waitcnt vmcnt(0)')
        a('s_memtime s[94:95]')
        a('s_memrealtime s[96:97]')
        a('s_waitcnt lgkmcnt(0)')
        a('s_sub_u32 s94, s94, s90')
        a('s_sub_u32 s96, s96, s92')
        a('s_mov_b32 s60, s98')
        a('s_mov_b32 s61, s99')
        a('s_mov_b32 s62, 256')
        a('s_mov_b32 s63, 0x00020000')
        a('s_and_b32 s58, s2, 31')
        a('s_lshl_b32 s58, s58, 3')
        a('s_mov_b64 exec, -1')
        a('v_mov_b32 v1, s58')
        a('v_mov_b32 v2, s94')
        a('v_mov_b32 v3, s96')
        a('s_cmp_lt_u32 s2, 32')
        a(f's_cbranch_scc0 {end}')
        a('v_cmp_eq_u32 vcc, 0, v0')
        a('s_and_saveexec_b64 s[58:59], vcc')
        a(f's_cbranch_execz {end}')
        a('buffer_store_dwordx2 v[2:3], v1, s[60:63], 0 offen')
    a.label(end)
    a('s_endpgm')
    if c.get('helper'):
        a.label(f'{name}_helper')
        NT, MPX = c['NT'], c['MPX']
        def touch(nrows, nlines, row0_sgpr, ld, srd_):
            tot = nrows * nlines
            magic = (1 << 20) // nrows + 1
            for u in range(tot):
                assert (u * magic) >> 20 == u // nrows
            a(f's_mov_b32 s60, {magic}')
            a(f's_mov_b32 s61, {ld}')
            for t in range((tot + 63) // 64):
                a(f'v_add_u32 v10, {64*t}, v{vlane}')
                a('v_mul_lo_u32 v11, v10, s60')
                a('v_lshrrev_b32 v11, 20, v11')
                a(f'v_mul_u32_u24 v12, {nrows}, v11')
                a('v_sub_u32 v12, v10, v12')
                a(f'v_add_u32 v12, {row0_sgpr}, v12')
                a('v_mul_lo_u32 v12, v12, s61')
                a('v_lshl_add_u32 v12, v11, 7, v12')
                if 64 * (t + 1) > tot:
                    a(f'v_cmp_gt_u32 vcc, {tot}, v10')
                    a('v_mov_b32 v13, 0x7ffffff0')
                    a('s_nop 1')
                    a('v_cndmask_b32 v12, v13, v12, vcc')
                a(f'buffer_load_dword v{20+t}, v12, s[{srd_}:{srd_+3}], 0 offen')
        ra = BM // NT
        a(f's_mul_i32 s62, s42, {ra}')
        a('s_add_u32 s62, s62, s47')
        rb_ = BN // MPX
        a(f's_and_b32 s63, s41, {MPX-1}')
        a(f's_mul_i32 s63, s63, {rb_}')
        a('s_add_u32 s63, s63, s44')
        touch(ra, c['ka_bytes'] // 128, 's62', c['lda'], 8)
        touch(rb_, c['kb_bytes'] // 128, 's63', c['ldb'], 12)
        a('s_endpgm')
    return R.n, lds_total

def tr_setup(a, g, row_sgpr, ldo):
    R = g.R
    CH = g.BN // 8
    nrows = 16 * len_rbs(g)
    tot = nrows * CH
    g.nt = (tot + 63) // 64
    g.tot = tot
    g.tl = [R.alloc() for _ in range(g.nt)]
    g.tg = [R.alloc() for _ in range(g.nt)]
    g.tc = [R.alloc() for _ in range(g.nt)]
    vt0, vt1, vt2 = g.tmp
    magic = {10: 6554, 12: 5462}[CH]
    a(f's_mul_i32 s57, s40, {nrows*g.TS}')
    if g.WK == 2:
        a('s_add_u32 s57, s57, 32768')
    a('s_lshl_b32 s58, s44, 1')
    a(f's_mov_b32 s59, {ldo}')
    for t in range(g.nt):
        a(f'v_add_u32 v{vt0}, {64*t}, v{g.vlane}')
        a(f'v_mul_u32_u24 v{vt1}, {magic}, v{vt0}')
        a(f'v_lshrrev_b32 v{vt1}, 16, v{vt1}')
        a(f'v_mul_u32_u24 v{vt2}, {CH}, v{vt1}')
        a(f'v_sub_u32 v{vt2}, v{vt0}, v{vt2}')
        a(f'v_lshlrev_b32 v{vt2}, 4, v{vt2}')
        a(f'v_mul_u32_u24 v{g.tl[t]}, {g.TS}, v{vt1}')
        a(f'v_add3_u32 v{g.tl[t]}, v{g.tl[t]}, v{vt2}, s57')
        a(f'v_add_u32 v{g.tc[t]}, s58, v{vt2}')
        a(f'v_add_u32 v{vt1}, {row_sgpr}, v{vt1}')
        a(f'v_mul_lo_u32 v{g.tg[t]}, v{vt1}, s59')
        a(f'v_add_u32 v{g.tg[t]}, v{g.tg[t]}, v{g.tc[t]}')
        if 64 * (t + 1) > tot:
            a(f'v_cmp_gt_u32 vcc, {tot}, v{vt0}')
            a(f'v_mov_b32 v{vt1}, 0x7ffffff0')
            a('s_nop 1')
            a(f'v_cndmask_b32 v{g.tg[t]}, v{vt1}, v{g.tg[t]}, vcc')
            a(f'v_cndmask_b32 v{g.tl[t]}, 0, v{g.tl[t]}, vcc')
    g.tw = R.alloc()
    a(f'v_mul_u32_u24 v{g.tw}, {g.TS}, v{g.vi16}')
    a(f'v_lshl_add_u32 v{g.tw}, v{g.vg}, 3, v{g.tw}')
    a(f'v_add_u32 v{g.tw}, s57, v{g.tw}')

def len_rbs(g):
    return 1 if g.WK == 2 else 2

def tr_write(a, g, rbi, pk):
    for nb in range(g.NB):
        a(f'ds_write_b64 v{g.tw}, v[{pk+2*nb}:{pk+2*nb+1}] offset:{rbi*16*g.TS + nb*32}')

def tr_read(a, g, dst):
    a('s_waitcnt lgkmcnt(0)')
    for t in range(g.nt):
        a(f'ds_read_b128 v[{dst+4*t}:{dst+4*t+3}], v{g.tl[t]}')
```

```python
from common import *

K0_NMOD = 120
K0_NLN = 64
K0_NTR = 240
K0_NCP = 80
K0_GRID = K0_NMOD + K0_NLN + 2 * K0_NTR + K0_NCP
K0_LDS = 40960

def dpp_allreduce16(a, v, tmp):
    for r in (8, 4, 2, 1):
        a('s_nop 1')
        a(f'v_add_f32_dpp v{tmp}, v{v}, v{v} row_ror:{r} row_mask:0xf bank_mask:0xf')
        a(f'v_mov_b32 v{v}, v{tmp}')

def gen_k0(a, name):
    kernel_header(a, name)
    a(f's_cmp_ge_u32 s2, {K0_GRID}')
    a('s_cbranch_scc1 k0_end')
    a(f's_load_dwordx2 s[4:5], s[0:1], {KA["ws"]}')
    a(f's_cmp_lt_u32 s2, {K0_NMOD}')
    a('s_cbranch_scc1 k0_mod')
    a(f's_cmp_lt_u32 s2, {K0_NMOD+K0_NLN}')
    a('s_cbranch_scc1 k0_ln')
    a(f's_cmp_ge_u32 s2, {K0_NMOD+K0_NLN+2*K0_NTR}')
    a('s_cbranch_scc1 k0_cp')
    a(f's_load_dwordx2 s[6:7], s[0:1], {KA["w1"]}')
    a(f's_load_dwordx2 s[8:9], s[0:1], {KA["w2"]}')
    a(f's_sub_u32 s3, s2, {K0_NMOD+K0_NLN}')
    a('s_waitcnt lgkmcnt(0)')
    a(f's_cmp_lt_u32 s3, {K0_NTR}')
    a('s_cbranch_scc1 k0_tr_w1')
    a(f's_sub_u32 s3, s3, {K0_NTR}')
    srd(a, 12, 8, 0, F * D * 2)
    srd(a, 16, 4, WS_W2T, F * D * 2)
    a('s_mul_i32 s20, s3, 6554')
    a('s_lshr_b32 s20, s20, 16')
    a('s_mul_i32 s21, s20, 10')
    a('s_sub_u32 s21, s3, s21')
    a(f's_mov_b32 s22, {D*2}')
    a(f's_mov_b32 s23, {F*2}')
    a('s_branch k0_tr_go')
    a.label('k0_tr_w1')
    srd(a, 12, 6, 0, F * D * 2)
    srd(a, 16, 4, WS_W1T, F * D * 2)
    a('s_mul_i32 s20, s3, 2731')
    a('s_lshr_b32 s20, s20, 16')
    a('s_mul_i32 s21, s20, 24')
    a('s_sub_u32 s21, s3, s21')
    a(f's_mov_b32 s22, {F*2}')
    a(f's_mov_b32 s23, {D*2}')
    a.label('k0_tr_go')
    a('v_lshrrev_b32 v1, 3, v0')
    a('v_and_b32 v2, 7, v0')
    a('s_lshl_b32 s24, s20, 6')
    a('v_add_u32 v3, s24, v1')
    a('v_mul_lo_u32 v3, v3, s22')
    a('s_lshl_b32 s25, s21, 7')
    a('v_lshlrev_b32 v4, 4, v2')
    a('v_add3_u32 v3, v3, v4, s25')
    a('s_lshl_b32 s26, s22, 5')
    a('buffer_load_dwordx4 v[8:11], v3, s[12:15], 0 offen')
    a('buffer_load_dwordx4 v[12:15], v3, s[12:15], s26 offen')
    a('v_mul_u32_u24 v5, 1056, v2')
    a('v_lshl_add_u32 v5, v1, 1, v5')
    a('s_waitcnt vmcnt(1)')
    for p in range(2):
        if p == 1:
            a('s_waitcnt vmcnt(0)')
        for q in range(4):
            reg = 8 + 4 * p + q
            a(f'ds_write_b16 v5, v{reg} offset:{(2*q)*132 + p*64}')
            a(f'ds_write_b16_d16_hi v5, v{reg} offset:{(2*q+1)*132 + p*64}')
    a('s_waitcnt lgkmcnt(0)')
    a('s_barrier')
    a('v_lshrrev_b32 v1, 2, v0')
    a('v_and_b32 v2, 3, v0')
    a('v_mul_u32_u24 v5, 132, v1')
    a('v_lshl_add_u32 v5, v2, 5, v5')
    for q in range(4):
        a(f'ds_read2_b32 v[{8+2*q}:{9+2*q}], v5 offset0:{2*q} offset1:{2*q+1}')
    a('s_lshl_b32 s24, s21, 6')
    a('v_add_u32 v3, s24, v1')
    a('v_mul_lo_u32 v3, v3, s23')
    a('s_lshl_b32 s25, s20, 7')
    a('v_lshlrev_b32 v4, 5, v2')
    a('v_add3_u32 v3, v3, v4, s25')
    a('s_waitcnt lgkmcnt(0)')
    a('buffer_store_dwordx4 v[8:11], v3, s[16:19], 0 offen')
    a('buffer_store_dwordx4 v[12:15], v3, s[16:19], 0 offen offset:16')
    a('s_endpgm')

    a.label('k0_cp')
    a(f's_load_dwordx2 s[6:7], s[0:1], {KA["ch"]}')
    a(f's_load_dwordx2 s[8:9], s[0:1], {KA["sh"]}')
    a(f's_sub_u32 s3, s2, {K0_NMOD+K0_NLN+2*K0_NTR}')
    a('s_waitcnt lgkmcnt(0)')
    a('s_cmp_ge_u32 s3, 40')
    a('s_cselect_b32 s6, s8, s6')
    a('s_cselect_b32 s7, s9, s7')
    a('s_cselect_b32 s20, 1280, 0')
    a('s_cselect_b32 s21, 40, 0')
    a('s_sub_u32 s3, s3, s21')
    srd(a, 12, 6, 0, D * D * 2)
    srd(a, 16, 4, WS_CSH, D * 2 * D * 2)
    a('s_mul_i32 s22, s3, 16*1280')
    a('s_mul_i32 s23, s3, 16*2560')
    a('s_add_u32 s23, s23, s20')
    a('s_mov_b32 s24, 52429')
    for t in range(5):
        a(f'v_add_u32 v1, {256*t}, v0')
        a(f'v_mul_lo_u32 v2, v1, s24')
        a(f'v_lshrrev_b32 v2, 22, v2')
        a(f'v_lshl_add_u32 v{30+t}, v1, 4, s22')
        a(f'v_mul_u32_u24 v3, 1280, v2')
        a(f'v_lshl_add_u32 v{40+t}, v1, 4, v3')
        a(f'v_add_u32 v{40+t}, s23, v{40+t}')
        a(f'buffer_load_dwordx4 v[{8+4*t}:{11+4*t}], v{30+t}, s[12:15], 0 offen')
    for t in range(5):
        a(f's_waitcnt vmcnt({4-t})')
        a(f'buffer_store_dwordx4 v[{8+4*t}:{11+4*t}], v{40+t}, s[16:19], 0 offen')
    a('s_endpgm')

    a.label('k0_mod')
    a(f's_load_dwordx2 s[6:7], s[0:1], {KA["c"]}')
    a(f's_load_dwordx2 s[8:9], s[0:1], {KA["wmod"]}')
    a('v_and_b32 v1, 3, v0')
    a('v_lshrrev_b32 v2, 2, v0')
    a('v_lshlrev_b32 v3, 1, v2')
    a('v_mul_u32_u24 v4, 7680, v2')
    a('v_lshl_add_u32 v4, v1, 4, v4')
    a('s_lshl_b32 s3, s2, 6')
    a('v_add_u32 v4, s3, v4')
    a('s_waitcnt lgkmcnt(0)')
    srd(a, 12, 6, 0, D * 2)
    srd(a, 16, 8, 0, D * 6 * D * 2)
    srd(a, 20, 4, WS_MOD, 6 * D * 2)
    CB = 10
    WB = 20
    AC = 60
    T0 = 70
    for j in range(10):
        a(f'buffer_load_ushort v{CB+j}, v3, s[12:15], 0 offen offset:{j*128}')
    for j in range(10):
        a(f's_mov_b32 s24, {j*64*7680}')
        a(f'buffer_load_dwordx4 v[{WB+4*j}:{WB+4*j+3}], v4, s[16:19], s24 offen')
    for e in range(8):
        a(f'v_mov_b32 v{AC+e}, 0')
    a('s_waitcnt vmcnt(10)')
    for j in range(10):
        a(f'v_lshlrev_b32 v{CB+j}, 16, v{CB+j}')
    for j in range(10):
        a(f'v_mul_f32 v{T0+j}, 0xbfb8aa3b, v{CB+j}')
    for j in range(10):
        a(f'v_exp_f32 v{T0+j}, v{T0+j}')
    a('s_nop 0')
    for j in range(10):
        a(f'v_add_f32 v{T0+j}, 1.0, v{T0+j}')
    for j in range(10):
        a(f'v_rcp_f32 v{T0+j}, v{T0+j}')
    a('s_nop 0')
    for j in range(10):
        a(f'v_mul_f32 v{CB+j}, v{CB+j}, v{T0+j}')
    for j in range(10):
        a(f'v_cvt_pk_bf16_f32 v{CB+j}, v{CB+j}, v{CB+j}')
    for j in range(10):
        a(f'v_lshlrev_b32 v{CB+j}, 16, v{CB+j}')
    for j in range(10):
        a(f's_waitcnt vmcnt({9-j})')
        for q in range(4):
            w = WB + 4 * j + q
            a(f'v_lshlrev_b32 v{T0}, 16, v{w}')
            a(f'v_and_b32 v{T0+1}, 0xffff0000, v{w}')
            a(f'v_fmac_f32 v{AC+2*q}, v{CB+j}, v{T0}')
            a(f'v_fmac_f32 v{AC+2*q+1}, v{CB+j}, v{T0+1}')
    a('v_lshlrev_b32 v5, 7, v2')
    a('v_lshl_add_u32 v5, v1, 5, v5')
    a(f'ds_write_b128 v5, v[{AC}:{AC+3}]')
    a(f'ds_write_b128 v5, v[{AC+4}:{AC+7}] offset:16')
    a('s_waitcnt lgkmcnt(0)')
    a('s_barrier')
    a('v_and_b32 v1, 31, v0')
    a('v_lshrrev_b32 v2, 5, v0')
    a('v_lshlrev_b32 v5, 10, v2')
    a('v_lshl_add_u32 v5, v1, 2, v5')
    for i in range(8):
        a(f'ds_read_b32 v{10+i}, v5 offset:{i*128}')
    a('s_waitcnt lgkmcnt(0)')
    for i in range(1, 8):
        a(f'v_add_f32 v10, v10, v{10+i}')
    a('v_lshlrev_b32 v5, 7, v2')
    a('v_lshl_add_u32 v5, v1, 2, v5')
    a('ds_write_b32 v5, v10 offset:8192')
    a('s_waitcnt lgkmcnt(0)')
    a('s_barrier')
    a('v_cmp_gt_u32 vcc, 32, v0')
    a('s_and_saveexec_b64 s[26:27], vcc')
    a('s_cbranch_execz k0_end')
    a('v_lshlrev_b32 v5, 2, v0')
    for i in range(8):
        a(f'ds_read_b32 v{10+i}, v5 offset:{8192+i*128}')
    a('s_waitcnt lgkmcnt(0)')
    for i in range(1, 8):
        a(f'v_add_f32 v10, v10, v{10+i}')
    a('v_cvt_pk_bf16_f32 v10, v10, v10')
    a('s_lshl_b32 s3, s2, 6')
    a('v_lshl_add_u32 v5, v0, 1, s3')
    a('buffer_store_short v10, v5, s[20:23], 0 offen')
    a('s_endpgm')

    a.label('k0_ln')
    a(f's_load_dwordx2 s[6:7], s[0:1], {KA["x"]}')
    a(f's_sub_u32 s3, s2, {K0_NMOD}')
    a('v_and_b32 v1, 15, v0')
    a('v_lshrrev_b32 v2, 4, v0')
    a('s_mul_i32 s24, s3, 32*1280')
    a('v_mul_u32_u24 v3, 2560, v2')
    a('v_lshl_add_u32 v3, v1, 4, v3')
    a('v_add_u32 v3, s24, v3')
    a('s_waitcnt lgkmcnt(0)')
    srd(a, 12, 6, 0, S * D * 2)
    srd(a, 16, 4, WS_NT, S * D * 2)
    XB = 10
    FB = 50
    ST = 130
    for p in range(2):
        for j in range(5):
            r = XB + 20 * p + 4 * j
            a(f'buffer_load_dwordx4 v[{r}:{r+3}], v3, s[12:15], 0 offen offset:{p*1280 + j*256}')
    for p in range(2):
        a(f's_waitcnt vmcnt({5-5*p})')
        for i in range(20):
            r = XB + 20 * p + i
            f = FB + 40 * p + 2 * i
            a(f'v_lshlrev_b32 v{f}, 16, v{r}')
            a(f'v_and_b32 v{f+1}, 0xffff0000, v{r}')
    for p in range(2):
        sm = ST + 8 * p
        a(f'v_add_f32 v{sm}, v{FB+40*p}, v{FB+40*p+1}')
        a(f'v_add_f32 v{sm+1}, v{FB+40*p+2}, v{FB+40*p+3}')
        for i in range(4, 40, 2):
            a(f'v_add_f32 v{sm}, v{sm}, v{FB+40*p+i}')
            a(f'v_add_f32 v{sm+1}, v{sm+1}, v{FB+40*p+i+1}')
        a(f'v_add_f32 v{sm}, v{sm}, v{sm+1}')
        dpp_allreduce16(a, sm, sm + 1)
        a(f'v_mul_f32 v{sm}, 0x3acccccd, v{sm}')
        a(f'v_mov_b32 v{sm+2}, 0')
        a(f'v_mov_b32 v{sm+3}, 0')
        for i in range(0, 40, 2):
            a(f'v_sub_f32 v{sm+4}, v{FB+40*p+i}, v{sm}')
            a(f'v_sub_f32 v{sm+5}, v{FB+40*p+i+1}, v{sm}')
            a(f'v_fmac_f32 v{sm+2}, v{sm+4}, v{sm+4}')
            a(f'v_fmac_f32 v{sm+3}, v{sm+5}, v{sm+5}')
        a(f'v_add_f32 v{sm+2}, v{sm+2}, v{sm+3}')
        dpp_allreduce16(a, sm + 2, sm + 3)
        a(f'v_mul_f32 v{sm+2}, 0x3acccccd, v{sm+2}')
        a(f'v_cvt_pk_bf16_f32 v{sm+3}, v{sm}, v{sm+2}')
        a(f'v_lshlrev_b32 v{sm}, 16, v{sm+3}')
        a(f'v_and_b32 v{sm+2}, 0xffff0000, v{sm+3}')
        a(f'v_add_f32 v{sm+2}, 0x3727c5ac, v{sm+2}')
        a(f'v_cvt_pk_bf16_f32 v{sm+2}, v{sm+2}, v{sm+2}')
        a(f'v_lshlrev_b32 v{sm+2}, 16, v{sm+2}')
        a(f'v_sqrt_f32 v{sm+2}, v{sm+2}')
        a('s_nop 0')
        a(f'v_cvt_pk_bf16_f32 v{sm+2}, v{sm+2}, v{sm+2}')
        a(f'v_lshlrev_b32 v{sm+2}, 16, v{sm+2}')
        a(f'v_rcp_f32 v{sm+2}, v{sm+2}')
        a('s_nop 0')
    a('v_lshrrev_b32 v4, 2, v2')
    a('v_and_b32 v5, 3, v1')
    a('v_xor_b32 v4, v4, v5')
    a('v_lshlrev_b32 v4, 4, v4')
    a('v_and_b32 v5, 3, v2')
    a('v_lshl_add_u32 v4, v5, 2, v4')
    a('v_lshl_add_u32 v4, v1, 9, v4')
    T = 150
    for j in range(5):
        for e in range(8):
            i = j * 8 + e
            t = T + 4 * (i % 4)
            a(f'v_sub_f32 v{t}, v{FB+i}, v{ST}')
            a(f'v_sub_f32 v{t+1}, v{FB+40+i}, v{ST+8}')
            a(f'v_cvt_pk_bf16_f32 v{t+2}, v{t}, v{t+1}')
            a(f'v_lshlrev_b32 v{t}, 16, v{t+2}')
            a(f'v_and_b32 v{t+1}, 0xffff0000, v{t+2}')
            a(f'v_mul_f32 v{t}, v{t}, v{ST+2}')
            a(f'v_mul_f32 v{t+1}, v{t+1}, v{ST+8+2}')
            a(f'v_cvt_pk_bf16_f32 v{t+3}, v{t}, v{t+1}')
            a(f'ds_write_b32 v4, v{t+3} offset:{j*8192 + e*64}')
    a('s_waitcnt lgkmcnt(0)')
    a('s_barrier')
    a('v_lshlrev_b32 v4, 4, v0')
    for i in range(10):
        a(f'ds_read_b128 v[{10+4*i}:{13+4*i}], v4 offset:{i*4096}')
    a('v_lshrrev_b32 v5, 5, v0')
    a('v_xor_b32 v5, v5, v0')
    a('v_and_b32 v5, 3, v5')
    a('v_lshrrev_b32 v6, 2, v0')
    a('v_lshlrev_b32 v6, 12, v6')
    a('v_lshl_add_u32 v6, v5, 4, v6')
    a('s_lshl_b32 s24, s3, 6')
    a('v_add_u32 v6, s24, v6')
    for i in range(10):
        a(f's_mov_b32 s25, {i*262144}')
        a(f's_waitcnt lgkmcnt({9-i})')
        a(f'buffer_store_dwordx4 v[{10+4*i}:{13+4*i}], v6, s[16:19], s25 offen')
    a.label('k0_end')
    a('s_endpgm')
    return 170
```

```python
import sys
from common import *
from k0 import *
from gemm import *

MASK = '0xffff0000'

def col_offsets(a, g, vcol, vcol1, base_bytes_sgpr=None):
    NB = g.NB
    a('s_lshl_b32 s60, s44, 1')
    a(f'v_lshl_add_u32 v{vcol}, v{g.vg}, 4, s60')
    if NB & 1:
        a(f's_add_u32 s61, s60, {32*(NB-1)}')
        a(f'v_lshl_add_u32 v{vcol1}, v{g.vg}, 3, s61')

def out_row(a, g, vrow, rb, stride, row_sgpr):
    a(f'v_add_u32 v{vrow}, {row_sgpr}, v{g.vi16}')
    if rb:
        a(f'v_add_u32 v{vrow}, 16, v{vrow}')
    a(f's_mov_b32 s62, {stride}')
    a(f'v_mul_lo_u32 v{vrow}, v{vrow}, s62')

def load_cols(a, g, dst, vcol, vcol1, srd_, off):
    NB = g.NB
    a(f's_mov_b32 s67, {off}')
    for p in range(NB // 2):
        a(f'buffer_load_dwordx4 v[{dst+4*p}:{dst+4*p+3}], v{vcol}, s[{srd_}:{srd_+3}], s67 offen offset:{64*p}')
    if NB & 1:
        p = NB // 2
        a(f'buffer_load_dwordx2 v[{dst+4*p}:{dst+4*p+1}], v{vcol1}, s[{srd_}:{srd_+3}], s67 offen')

def ndw(NB):
    return NB * 2

def unpack(a, src, dst, n):
    for i in range(n):
        a(f'v_lshlrev_b32 v{dst+2*i}, 16, v{src+i}')
        a(f'v_and_b32 v{dst+2*i+1}, {MASK}, v{src+i}')

def acc_list(g, rb):
    l = []
    for nb in range(g.NB):
        for q in range(4):
            l.append(g.acc[rb][nb] + q)
    return l

def store_row(a, g, src, vrow, vcol, vcol1, vtmp, srd_, extra=0):
    NB = g.NB
    a(f'v_add_u32 v{vtmp}, v{vrow}, v{vcol}')
    for p in range(NB // 2):
        a(f'buffer_store_dwordx4 v[{src+4*p}:{src+4*p+3}], v{vtmp}, s[{srd_}:{srd_+3}], {extra} offen offset:{64*p}')
    if NB & 1:
        p = NB // 2
        a(f'v_add_u32 v{vtmp+1}, v{vrow}, v{vcol1}')
        a(f'buffer_store_dwordx2 v[{src+4*p}:{src+4*p+1}], v{vtmp+1}, s[{srd_}:{srd_+3}], {extra} offen')

def l1_setup(a, c):
    a('s_cmp_ge_u32 s41, 16')
    a('s_cselect_b32 s30, s32, s30')
    a('s_cselect_b32 s31, s33, s31')
    a('s_cselect_b32 s63, 0x80000000, 0')
    a('s_cselect_b32 s64, 1280, 0')
    srd(a, 8, 30, 0, S * S * 2)
    srd(a, 12, 4, WS_NT, S * D * 2)
    srd(a, 20, 4, WS_MOD, 6 * D * 2)
    srd(a, 24, 4, WS_PQ, S * 2 * D * 2)
    a('s_and_b32 s47, s41, 15')
    a('s_lshl_b32 s47, s47, 7')

def l1_pre(a, c, g):
    R = g.R
    g.vcol, g.vcol1 = R.alloc(), R.alloc()
    col_offsets(a, g, g.vcol, g.vcol1)
    g.sa = R.alloc(12, 4); g.ca = R.alloc(12, 4)
    load_cols(a, g, g.sa, g.vcol, g.vcol1, 20, 0)
    load_cols(a, g, g.ca, g.vcol, g.vcol1, 20, 1280)

def l1_epi(a, c, g):
    SB = g.A[0][0][0]
    n = ndw(g.NB)
    saf, caf, t, o = SB, SB + 20, SB + 40, SB + 60
    unpack(a, g.sa, saf, n)
    unpack(a, g.ca, caf, n)
    for i in range(2 * n):
        a(f'v_add_f32 v{caf+i}, 1.0, v{caf+i}')
    for i in range(n):
        a(f'v_cvt_pk_bf16_f32 v{t+i}, v{caf+2*i}, v{caf+2*i+1}')
    unpack(a, t, caf, n)
    for i in range(2 * n):
        a(f'v_xor_b32 v{caf+i}, s63, v{caf+i}')
        a(f'v_xor_b32 v{saf+i}, s63, v{saf+i}')
    a('s_lshl_b32 s65, s45, 5')
    a('s_add_u32 s65, s65, s47')
    vrow, vtmp = SB + 84, SB + 86
    for rb in g.rbs:
        al = acc_list(g, rb)
        for i in range(2 * n):
            a(f'v_mul_f32 v{t+i}, v{al[i]}, v{caf+i}')
            a(f'v_fmac_f32 v{t+i}, v{g.rs[rb]}, v{saf+i}')
        oo = o + 10 * rb
        oo = SB + 60 + 12 * rb
        for i in range(n):
            a(f'v_cvt_pk_bf16_f32 v{oo+i}, v{t+2*i}, v{t+2*i+1}')
        out_row(a, g, vrow, rb, 2 * D * 2, 's65')
        store_row(a, g, oo, vrow, g.vcol, g.vcol1, vtmp + 2 * rb + 2, 24, 's64')

L1 = dict(NWG=256, MPX=4, NT=8, WM=4, WK=1, NB=5, NST=16, lda=S * 2, ldb=S * 2, a_goff=0,
          kargs=[(30, 'cs'), (32, 'ss')], setup=l1_setup, pre=l1_pre, epi=l1_epi, rowsum=True, loop=True, rot=1)

def l2_setup(a, c):
    srd(a, 8, 4, WS_PQ, S * 2 * D * 2)
    srd(a, 12, 30, 0, D * D * 2)
    srd(a, 16, 32, 0, D * D * 2)
    srd(a, 20, 4, WS_MOD, 6 * D * 2)
    srd(a, 24, 4, WS_X1, S * D * 2)
    srd(a, 28, 34, 0, S * D * 2)
    a('s_lshl_b32 s47, s41, 6')

def res_pre(goff, xsrd):
    def pre(a, c, g):
        R = g.R
        g.vcol, g.vcol1 = R.alloc(), R.alloc()
        col_offsets(a, g, g.vcol, g.vcol1)
        g.ga = R.alloc(12, 4); g.x = R.alloc(12, 4)
        g.vrow = R.alloc(); vt = R.alloc(2)
        load_cols(a, g, g.ga, g.vcol, g.vcol1, 20, goff)
        a('s_lshl_b32 s65, s45, 5')
        a('s_add_u32 s65, s65, s47')
        a('s_lshl_b32 s66, s46, 4')
        a('s_add_u32 s65, s65, s66')
        out_row(a, g, g.vrow, 0, D * 2, 's65')
        a(f'v_add_u32 v{vt}, v{g.vrow}, v{g.vcol}')
        a(f'v_add_u32 v{vt+1}, v{g.vrow}, v{g.vcol1}')
        load_cols(a, g, g.x, vt, vt + 1, xsrd, 0)
    return pre

def res_epi(osrd):
    def epi(a, c, g):
        SB = g.A[0][0][0]
        n = ndw(g.NB)
        gaf, xf, t, u = SB, SB + 20, SB + 40, SB + 60
        unpack(a, g.ga, gaf, n)
        unpack(a, g.x, xf, n)
        al = acc_list(g, 0)
        for i in range(n):
            a(f'v_cvt_pk_bf16_f32 v{u+i}, v{al[2*i]}, v{al[2*i+1]}')
        unpack(a, u, t, n)
        for i in range(2 * n):
            a(f'v_mul_f32 v{t+i}, v{t+i}, v{gaf+i}')
        for i in range(n):
            a(f'v_cvt_pk_bf16_f32 v{u+i}, v{t+2*i}, v{t+2*i+1}')
        unpack(a, u, t, n)
        for i in range(2 * n):
            a(f'v_add_f32 v{t+i}, v{t+i}, v{xf+i}')
        for i in range(n):
            a(f'v_cvt_pk_bf16_f32 v{u+i}, v{t+2*i}, v{t+2*i+1}')
        store_row(a, g, u, g.vrow, g.vcol, g.vcol1, SB + 80, osrd)
    return epi

L2 = dict(NWG=256, MPX=4, NT=8, WM=2, WK=2, NB=5, NST=5, lda=2 * D * 2, ldb=D * 2, a_goff=D * 2,
          kargs=[(30, 'ch'), (32, 'sh'), (34, 'x')], setup=l2_setup, pre=res_pre(2 * D * 2, 28), epi=res_epi(24))

def l3_setup(a, c):
    srd(a, 8, 4, WS_H2, S * D * 2)
    srd(a, 12, 4, WS_W1T, F * D * 2)
    srd(a, 24, 4, WS_HH, S * F * 2)
    a('s_lshl_b32 s47, s41, 7')

def l3_pre(a, c, g):
    R = g.R
    g.vcol, g.vcol1 = R.alloc(), R.alloc()
    col_offsets(a, g, g.vcol, g.vcol1)

def l3_epi(a, c, g):
    SB = g.A[0][0][0]
    n = ndw(g.NB)
    a('s_lshl_b32 s65, s45, 5')
    a('s_add_u32 s65, s65, s47')
    for rb in g.rbs:
        al = acc_list(g, rb)
        for r in al:
            a(f'v_max_f32 v{r}, 0, v{r}')
        oo = SB + 16 * rb
        for i in range(n):
            a(f'v_cvt_pk_bf16_f32 v{oo+i}, v{al[2*i]}, v{al[2*i+1]}')
        out_row(a, g, SB + 40 + rb, rb, F * 2, 's65')
        store_row(a, g, oo, SB + 40 + rb, g.vcol, g.vcol1, SB + 44 + 2 * rb, 24)

L3 = dict(NWG=256, MPX=2, NT=16, WM=4, WK=1, NB=6, NST=5, lda=D * 2, ldb=D * 2, a_goff=0,
          kargs=[], setup=l3_setup, pre=l3_pre, epi=l3_epi)

def l4_setup(a, c):
    srd(a, 8, 4, WS_HH, S * F * 2)
    srd(a, 12, 4, WS_W2T, F * D * 2)
    srd(a, 16, 4, WS_W2T + F, F * D * 2 - F)
    srd(a, 20, 4, WS_MOD, 6 * D * 2)
    srd(a, 24, 30, 0, S * D * 2)
    srd(a, 28, 4, WS_X1, S * D * 2)
    a('s_lshl_b32 s47, s41, 6')

L4 = dict(NWG=256, MPX=4, NT=8, WM=2, WK=2, NB=5, NST=6, lda=F * 2, ldb=F * 2, a_goff=F,
          kargs=[(30, 'out')], setup=l4_setup, pre=res_pre(5 * D * 2, 28), epi=res_epi(24))

def gen_ln2(a, name):
    kernel_header(a, name)
    a('s_cmp_ge_u32 s2, 128')
    a('s_cbranch_scc1 ln2_end')
    a(f's_load_dwordx2 s[4:5], s[0:1], {KA["ws"]}')
    a('v_and_b32 v1, 15, v0')
    a('v_lshrrev_b32 v2, 4, v0')
    a('s_mul_i32 s24, s2, 16*1280')
    a('v_mul_u32_u24 v3, 1280, v2')
    a('v_lshl_add_u32 v3, v1, 4, v3')
    a('v_add_u32 v3, s24, v3')
    a('v_lshlrev_b32 v4, 4, v1')
    a('s_waitcnt lgkmcnt(0)')
    srd(a, 12, 4, WS_X1, S * D * 2)
    srd(a, 16, 4, WS_H2, S * D * 2)
    srd(a, 20, 4, WS_MOD, 6 * D * 2)
    XB, SBb, CBb, FB, ST = 8, 28, 48, 68, 108
    for j in range(5):
        a(f'buffer_load_dwordx4 v[{XB+4*j}:{XB+4*j+3}], v3, s[12:15], 0 offen offset:{j*256}')
    a('s_mov_b32 s26, 3840')
    for j in range(5):
        a(f'buffer_load_dwordx4 v[{SBb+4*j}:{SBb+4*j+3}], v4, s[20:23], s26 offen offset:{j*256}')
    a('s_mov_b32 s25, 5120')
    for j in range(5):
        a(f'buffer_load_dwordx4 v[{CBb+4*j}:{CBb+4*j+3}], v4, s[20:23], s25 offen offset:{j*256}')
    a('s_waitcnt vmcnt(10)')
    unpack(a, XB, FB, 20)
    sm = ST
    a(f'v_add_f32 v{sm}, v{FB}, v{FB+1}')
    a(f'v_add_f32 v{sm+1}, v{FB+2}, v{FB+3}')
    for i in range(4, 40, 2):
        a(f'v_add_f32 v{sm}, v{sm}, v{FB+i}')
        a(f'v_add_f32 v{sm+1}, v{sm+1}, v{FB+i+1}')
    a(f'v_add_f32 v{sm}, v{sm}, v{sm+1}')
    dpp_allreduce16(a, sm, sm + 1)
    a(f'v_mul_f32 v{sm}, 0x3acccccd, v{sm}')
    a(f'v_mov_b32 v{sm+2}, 0')
    a(f'v_mov_b32 v{sm+3}, 0')
    for i in range(0, 40, 2):
        a(f'v_sub_f32 v{sm+4}, v{FB+i}, v{sm}')
        a(f'v_sub_f32 v{sm+5}, v{FB+i+1}, v{sm}')
        a(f'v_fmac_f32 v{sm+2}, v{sm+4}, v{sm+4}')
        a(f'v_fmac_f32 v{sm+3}, v{sm+5}, v{sm+5}')
    a(f'v_add_f32 v{sm+2}, v{sm+2}, v{sm+3}')
    dpp_allreduce16(a, sm + 2, sm + 3)
    a(f'v_mul_f32 v{sm+2}, 0x3acccccd, v{sm+2}')
    a(f'v_cvt_pk_bf16_f32 v{sm+3}, v{sm}, v{sm+2}')
    a(f'v_lshlrev_b32 v{sm}, 16, v{sm+3}')
    a(f'v_and_b32 v{sm+2}, {MASK}, v{sm+3}')
    a(f'v_add_f32 v{sm+2}, 0x3727c5ac, v{sm+2}')
    a(f'v_cvt_pk_bf16_f32 v{sm+2}, v{sm+2}, v{sm+2}')
    a(f'v_lshlrev_b32 v{sm+2}, 16, v{sm+2}')
    a(f'v_sqrt_f32 v{sm+2}, v{sm+2}')
    a('s_nop 0')
    a(f'v_cvt_pk_bf16_f32 v{sm+2}, v{sm+2}, v{sm+2}')
    a(f'v_lshlrev_b32 v{sm+2}, 16, v{sm+2}')
    a(f'v_rcp_f32 v{sm+2}, v{sm+2}')
    a('s_waitcnt vmcnt(0)')
    T = 116
    for i in range(20):
        t = T + 8 * (i % 2)
        f0, f1 = FB + 2 * i, FB + 2 * i + 1
        a(f'v_sub_f32 v{t}, v{f0}, v{sm}')
        a(f'v_sub_f32 v{t+1}, v{f1}, v{sm}')
        a(f'v_cvt_pk_bf16_f32 v{t+2}, v{t}, v{t+1}')
        a(f'v_lshlrev_b32 v{t}, 16, v{t+2}')
        a(f'v_and_b32 v{t+1}, {MASK}, v{t+2}')
        a(f'v_mul_f32 v{t}, v{t}, v{sm+2}')
        a(f'v_mul_f32 v{t+1}, v{t+1}, v{sm+2}')
        a(f'v_cvt_pk_bf16_f32 v{t+2}, v{t}, v{t+1}')
        a(f'v_lshlrev_b32 v{t+3}, 16, v{CBb+i}')
        a(f'v_and_b32 v{t+4}, {MASK}, v{CBb+i}')
        a(f'v_add_f32 v{t+3}, 1.0, v{t+3}')
        a(f'v_add_f32 v{t+4}, 1.0, v{t+4}')
        a(f'v_cvt_pk_bf16_f32 v{t+5}, v{t+3}, v{t+4}')
        a(f'v_lshlrev_b32 v{t+3}, 16, v{t+5}')
        a(f'v_and_b32 v{t+4}, {MASK}, v{t+5}')
        a(f'v_lshlrev_b32 v{t}, 16, v{t+2}')
        a(f'v_and_b32 v{t+1}, {MASK}, v{t+2}')
        a(f'v_mul_f32 v{t}, v{t}, v{t+3}')
        a(f'v_mul_f32 v{t+1}, v{t+1}, v{t+4}')
        a(f'v_cvt_pk_bf16_f32 v{t+2}, v{t}, v{t+1}')
        a(f'v_lshlrev_b32 v{t}, 16, v{t+2}')
        a(f'v_and_b32 v{t+1}, {MASK}, v{t+2}')
        a(f'v_lshlrev_b32 v{t+3}, 16, v{SBb+i}')
        a(f'v_and_b32 v{t+4}, {MASK}, v{SBb+i}')
        a(f'v_add_f32 v{t}, v{t}, v{t+3}')
        a(f'v_add_f32 v{t+1}, v{t+1}, v{t+4}')
        a(f'v_cvt_pk_bf16_f32 v{XB+i}, v{t}, v{t+1}')
    for j in range(5):
        a(f'buffer_store_dwordx4 v[{XB+4*j}:{XB+4*j+3}], v3, s[16:19], 0 offen offset:{j*256}')
    a.label('ln2_end')
    a('s_endpgm')
    return 136

def main(out, stamp=False):
    for L in (L1, L2, L3, L4):
        L['stamp'] = stamp
    hdr = open('adaLN_cond__spectral_fnet__dense_activation_relu__prompt.s.ref').read().split('\n')
    hdr = [l for l in hdr if l.startswith(';') and '@launch' not in l and 'Override' not in l and 'grid=ceil' not in l]
    a = Asm()
    descs = []
    launches = []
    nv = gen_k0(a, 'k0_kernel'); descs.append(kernel_desc('k0_kernel', nv)); launches.append(('k0_kernel', K0_GRID, K0_LDS))
    nv, lds = gen_gemm(a, 'l1_kernel', L1); descs.append(kernel_desc('l1_kernel', nv)); launches.append(('l1_kernel', 256, lds))
    nv, lds = gen_gemm(a, 'l2_kernel', L2); descs.append(kernel_desc('l2_kernel', nv)); launches.append(('l2_kernel', 256, lds))
    nv = gen_ln2(a, 'ln2_kernel'); descs.append(kernel_desc('ln2_kernel', nv)); launches.append(('ln2_kernel', 128, 0))
    nv, lds = gen_gemm(a, 'l3_kernel', L3); descs.append(kernel_desc('l3_kernel', nv)); launches.append(('l3_kernel', 256, lds))
    nv, lds = gen_gemm(a, 'l4_kernel', L4); descs.append(kernel_desc('l4_kernel', nv)); launches.append(('l4_kernel', 256, lds))
    txt = '\n'.join(hdr) + '\n'
    for (k, g, l) in launches:
        txt += f'; @launch kernel={k} grid=({g},1,1) block=(256,1,1) lds={l}\n'
    txt += '.amdgcn_target "amdgcn-amd-amdhsa--gfx950"\n.text\n'
    txt += a.text()
    txt += '.section .rodata,"a"\n'
    txt += ''.join(descs)
    open(out, 'w').write(txt)

if __name__ == '__main__':
    main(sys.argv[1] if len(sys.argv) > 1 else 'adaLN_cond__spectral_fnet__dense_activation_relu__prompt.s', stamp=(len(sys.argv) > 2))
```

```python
import sys
from common import *
from k0 import *
from gemm2 import *
import main as m1

def acc_list(g, rb):
    return [g.acc[rb][nb] + q for nb in range(g.NB) for q in range(4)]

def nop(a, c, g):
    pass

def row_sgpr(a, g):
    a('s_lshl_b32 s38, s45, 5')
    a('s_add_u32 s38, s38, s39')
    if g.WK == 2:
        a('s_lshl_b32 s37, s46, 4')
        a('s_add_u32 s38, s38, s37')

def store_rounds(a, g, src, srd_, soff='0'):
    for t in range(g.nt):
        a(f'buffer_store_dwordx4 v[{src+4*t}:{src+4*t+3}], v{g.tg[t]}, s[{srd_}:{srd_+3}], {soff} offen')

def l1_setup(a, c):
    a('s_cmp_ge_u32 s41, 16')
    a('s_cselect_b32 s30, s32, s30')
    a('s_cselect_b32 s31, s33, s31')
    a('s_cselect_b32 s35, 0x80000000, 0')
    a('s_cselect_b32 s36, 1280, 0')
    srd(a, 8, 30, 0, S * S * 2)
    srd(a, 12, 4, WS_NT, S * D * 2)
    srd(a, 20, 4, WS_MOD, 6 * D * 2)
    srd(a, 24, 4, WS_PQ, S * 2 * D * 2)
    a('s_and_b32 s47, s41, 15')
    a('s_lshl_b32 s47, s47, 7')
    a('s_mov_b32 s39, s47')

def l1_pre0(a, c, g):
    R = g.R
    vc = R.alloc()
    a('s_lshl_b32 s60, s44, 1')
    a(f'v_lshl_add_u32 v{vc}, v{g.vg}, 3, s60')
    g.sa = R.alloc(10, 2); g.ca = R.alloc(10, 2)
    a('s_mov_b32 s61, 1280')
    for nb in range(g.NB):
        a(f'buffer_load_dwordx2 v[{g.sa+2*nb}:{g.sa+2*nb+1}], v{vc}, s[20:23], 0 offen offset:{32*nb}')
        g.issued.append(10**6)
    for nb in range(g.NB):
        a(f'buffer_load_dwordx2 v[{g.ca+2*nb}:{g.ca+2*nb+1}], v{vc}, s[20:23], s61 offen offset:{32*nb}')
        g.issued.append(10**6)

def l1_pre1(a, c, g):
    l1_pre0(a, c, g)
    row_sgpr(a, g)
    tr_setup(a, g, 's38', 2 * D * 2)

def l1_epi(a, c, g):
    SB = g.SB
    n = 2 * g.NB
    saf, caf, t = SB, SB + 20, SB + 40
    a('s_waitcnt vmcnt(0)')
    unpack(a, g.sa, saf, n)
    unpack(a, g.ca, caf, n)
    for i in range(2 * n):
        a(f'v_add_f32 v{caf+i}, 1.0, v{caf+i}')
    for i in range(n):
        a(f'v_cvt_pk_bf16_f32 v{t+i}, v{caf+2*i}, v{caf+2*i+1}')
    unpack(a, t, caf, n)
    for i in range(2 * n):
        a(f'v_xor_b32 v{caf+i}, s35, v{caf+i}')
        a(f'v_xor_b32 v{saf+i}, s35, v{saf+i}')
    for rb in g.rbs:
        al = acc_list(g, rb)
        for i in range(2 * n):
            a(f'v_mul_f32 v{t+i}, v{al[i]}, v{caf+i}')
            a(f'v_fmac_f32 v{t+i}, v{g.rs[rb]}, v{saf+i}')
        oo = SB + 60 + 10 * rb
        for i in range(n):
            a(f'v_cvt_pk_bf16_f32 v{oo+i}, v{t+2*i}, v{t+2*i+1}')
        tr_write(a, g, rb, oo)
    tr_read(a, g, SB)
    for t_ in range(g.nt):
        a(f's_waitcnt lgkmcnt({g.nt-1-t_})')
        a(f'buffer_store_dwordx4 v[{SB+4*t_}:{SB+4*t_+3}], v{g.tg[t_]}, s[24:27], s36 offen')

L1 = dict(NWG=256, MPX=4, NT=8, WM=4, WK=1, NB=5, NST=16, BK=128, NBUF=3, lda=S * 2, ldb=S * 2, a_goff=0, b_goff=0,
          kargs=[(30, 'cs'), (32, 'ss')], setup=l1_setup, pre0=nop, pre1=l1_pre1, epi=l1_epi, rowsum=True, helper=False, ka_bytes=4096, kb_bytes=4096, rot=(2, 5))

def res_pre0(goff, xsrd):
    def pre(a, c, g):
        R = g.R
        row_sgpr(a, g)
        tr_setup(a, g, 's38', D * 2)
        g.ga = R.alloc(4 * g.nt, 4); g.x = R.alloc(4 * g.nt, 4)
        a(f's_mov_b32 s61, {goff}')
        for t in range(g.nt):
            a(f'buffer_load_dwordx4 v[{g.ga+4*t}:{g.ga+4*t+3}], v{g.tc[t]}, s[20:23], s61 offen')
            g.issued.append(10**6)
        for t in range(g.nt):
            a(f'buffer_load_dwordx4 v[{g.x+4*t}:{g.x+4*t+3}], v{g.tg[t]}, s[{xsrd}:{xsrd+3}], 0 offen')
            g.issued.append(10**6)
    return pre

def res_epi(osrd):
    def epi(a, c, g):
        SB = g.SB
        n = 2 * g.NB
        al = acc_list(g, 0)
        for i in range(n):
            a(f'v_cvt_pk_bf16_f32 v{SB+i}, v{al[2*i]}, v{al[2*i+1]}')
        tr_write(a, g, 0, SB)
        Y = SB + 12
        tr_read(a, g, Y)
        T = SB + 24
        a('s_waitcnt vmcnt(0)')
        for t in range(g.nt):
            a(f's_waitcnt lgkmcnt({g.nt-1-t})')
            yf, gf, u = T, T + 8, T + 16
            unpack(a, Y + 4 * t, yf, 4)
            unpack(a, g.ga + 4 * t, gf, 4)
            for i in range(8):
                a(f'v_mul_f32 v{yf+i}, v{yf+i}, v{gf+i}')
            for i in range(4):
                a(f'v_cvt_pk_bf16_f32 v{u+i}, v{yf+2*i}, v{yf+2*i+1}')
            unpack(a, u, yf, 4)
            unpack(a, g.x + 4 * t, gf, 4)
            for i in range(8):
                a(f'v_add_f32 v{yf+i}, v{yf+i}, v{gf+i}')
            o = T + 20 + 4 * t
            for i in range(4):
                a(f'v_cvt_pk_bf16_f32 v{o+i}, v{yf+2*i}, v{yf+2*i+1}')
            a(f'buffer_store_dwordx4 v[{o}:{o+3}], v{g.tg[t]}, s[{osrd}:{osrd+3}], 0 offen')
    return epi

def l2_setup(a, c):
    srd(a, 8, 4, WS_PQ, S * 2 * D * 2)
    srd(a, 12, 4, WS_CSH, D * 2 * D * 2)
    srd(a, 20, 4, WS_MOD, 6 * D * 2)
    srd(a, 24, 4, WS_X1, S * D * 2)
    srd(a, 16, 30, 0, S * D * 2)
    a('s_lshl_b32 s47, s41, 6')
    a('s_mov_b32 s39, s47')

L2 = dict(NWG=256, MPX=4, NT=8, WM=2, WK=2, NB=5, NST=10, BK=64, NBUF=4, lda=2 * D * 2, ldb=2 * D * 2, a_goff=D * 2, b_goff=D * 2,
          kargs=[(30, 'x')], setup=l2_setup, pre0=nop, pre1=res_pre0(2 * D * 2, 16), GAP=2, epi=res_epi(24), helper=False, ka_bytes=2560, kb_bytes=2560, rot=(1, 3))

def l3_setup(a, c):
    srd(a, 8, 4, WS_H2, S * D * 2)
    srd(a, 12, 4, WS_W1T, F * D * 2)
    srd(a, 24, 4, WS_HH, S * F * 2)
    a('s_lshl_b32 s47, s41, 7')
    a('s_mov_b32 s39, s47')

def l3_pre1(a, c, g):
    row_sgpr(a, g)
    tr_setup(a, g, 's38', F * 2)

def l3_epi(a, c, g):
    SB = g.SB
    n = 2 * g.NB
    for rb in g.rbs:
        al = acc_list(g, rb)
        for r in al:
            a(f'v_max_f32 v{r}, 0, v{r}')
        oo = SB + 40 + 12 * rb
        for i in range(n):
            a(f'v_cvt_pk_bf16_f32 v{oo+i}, v{al[2*i]}, v{al[2*i+1]}')
        tr_write(a, g, rb, oo)
    tr_read(a, g, SB)
    for t_ in range(g.nt):
        a(f's_waitcnt lgkmcnt({g.nt-1-t_})')
        a(f'buffer_store_dwordx4 v[{SB+4*t_}:{SB+4*t_+3}], v{g.tg[t_]}, s[24:27], 0 offen')

L3 = dict(NWG=256, MPX=2, NT=16, WM=4, WK=1, NB=6, NST=10, BK=64, NBUF=5, lda=D * 2, ldb=D * 2, a_goff=0, b_goff=0,
          kargs=[], setup=l3_setup, pre0=nop, pre1=l3_pre1, GAP=3, epi=l3_epi, helper=False, ka_bytes=1280, kb_bytes=1280, rot=(1, 5))

def l4_setup(a, c):
    srd(a, 8, 4, WS_HH, S * F * 2)
    srd(a, 12, 4, WS_W2T, F * D * 2)
    srd(a, 20, 4, WS_MOD, 6 * D * 2)
    srd(a, 24, 30, 0, S * D * 2)
    srd(a, 16, 4, WS_X1, S * D * 2)
    a('s_lshl_b32 s47, s41, 6')
    a('s_mov_b32 s39, s47')

L4 = dict(NWG=256, MPX=4, NT=8, WM=2, WK=2, NB=5, NST=12, BK=64, NBUF=4, lda=F * 2, ldb=F * 2, a_goff=F, b_goff=F,
          kargs=[(30, 'out')], setup=l4_setup, pre0=nop, pre1=res_pre0(5 * D * 2, 16), GAP=2, epi=res_epi(24), helper=False, ka_bytes=3072, kb_bytes=3072, rot=(1, 3))

def main(out, stamp=False):
    for L in (L1, L2, L3, L4):
        L['stamp'] = stamp
        L['fine'] = int(stamp) if stamp else 0
        L['rot'] = None
    hdr = open('adaLN_cond__spectral_fnet__dense_activation_relu__prompt.s.ref').read().split('\n')
    hdr = [l for l in hdr if l.startswith(';') and '@launch' not in l and 'Override' not in l and 'grid=ceil' not in l]
    a = Asm()
    descs = []
    launches = []
    nv = gen_k0(a, 'k0_kernel'); descs.append(kernel_desc('k0_kernel', nv)); launches.append(('k0_kernel', K0_GRID, K0_LDS))
    nv, lds = gen_gemm(a, 'l1_kernel', L1); descs.append(kernel_desc('l1_kernel', nv, 102)); launches.append(('l1_kernel', 256, lds))
    nv, lds = gen_gemm(a, 'l2_kernel', L2); descs.append(kernel_desc('l2_kernel', nv, 102)); launches.append(('l2_kernel', 256, lds))
    nv = m1.gen_ln2(a, 'ln2_kernel'); descs.append(kernel_desc('ln2_kernel', nv)); launches.append(('ln2_kernel', 128, 0))
    nv, lds = gen_gemm(a, 'l3_kernel', L3); descs.append(kernel_desc('l3_kernel', nv, 102)); launches.append(('l3_kernel', 256, lds))
    nv, lds = gen_gemm(a, 'l4_kernel', L4); descs.append(kernel_desc('l4_kernel', nv, 102)); launches.append(('l4_kernel', 256, lds))
    txt = '\n'.join(hdr) + '\n'
    for (k, g, l) in launches:
        blk = 320 if (k[0] == 'l' and k[1] in '1234' and {'1': L1, '2': L2, '3': L3, '4': L4}[k[1]].get('helper')) else 256
        txt += f'; @launch kernel={k} grid=({g},1,1) block=({blk},1,1) lds={l}\n'
    txt += '.amdgcn_target "amdgcn-amd-amdhsa--gfx950"\n.text\n'
    txt += a.text()
    txt += '.section .rodata,"a"\n'
    txt += ''.join(descs)
    open(out, 'w').write(txt)

if __name__ == '__main__':
    main(sys.argv[1] if len(sys.argv) > 1 else 'adaLN_cond__spectral_fnet__dense_activation_relu__prompt.s', stamp=(sys.argv[2] if len(sys.argv) > 2 else False))
```

```python
from common import *

class G:
    pass

MASK = '0xffff0000'

def unpack(a, src, dst, n):
    for i in range(n):
        a(f'v_lshlrev_b32 v{dst+2*i}, 16, v{src+i}')
        a(f'v_and_b32 v{dst+2*i+1}, {MASK}, v{src+i}')

def gen_gemm(a, name, c):
    NB, WM, WK, NST, BK, NBUF = c['NB'], c['WM'], c['WK'], c['NST'], c['BK'], c['NBUF']
    BM, BN = WM * 32, NB * 16
    RB = BK * 2
    CPR = RB // 16
    RPI = 64 // CPR
    KS = BK // 32
    nA = WK * BM // RPI
    nB = WK * BN // RPI
    assert nA % 4 == 0 and nB % 2 == 0
    padB = nB % 4 != 0
    cntA, cntB = BM // RPI, BN // RPI
    BUFSZ = WK * (BM + BN) * RB
    AOFF = lambda gam: gam * BM * RB
    BOFF = lambda gam: WK * BM * RB + gam * BN * RB
    XCH = 0
    lds_total = NBUF * BUFSZ + c.get('lds_extra', 0)
    XTRA = NBUF * BUFSZ
    TS = BN * 2 + 16
    assert TS % 16 == 0
    end = name + '_end'
    kernel_header(a, name)
    a(f's_cmp_ge_u32 s2, {c["NWG"]}')
    a(f's_cbranch_scc1 {end}')
    if c.get('stamp'):
        a('s_memtime s[90:91]')
        a('s_memrealtime s[92:93]')
        a(f's_load_dwordx2 s[98:99], s[0:1], {KA["dbg"]}')
    a(f's_load_dwordx2 s[4:5], s[0:1], {KA["ws"]}')
    for (reg, slot) in c['kargs']:
        a(f's_load_dwordx2 s[{reg}:{reg+1}], s[0:1], {KA[slot]}')
    R = Regs(1)
    vlane = R.alloc(); vi16 = R.alloc(); vg = R.alloc(); vt0 = R.alloc(); vt1 = R.alloc(); vt2 = R.alloc()
    a(f'v_lshrrev_b32 v{vt0}, 6, v0')
    a(f'v_and_b32 v{vlane}, 63, v0')
    a(f'v_and_b32 v{vi16}, 15, v0')
    a(f'v_readfirstlane_b32 s40, v{vt0}')
    a(f'v_lshrrev_b32 v{vg}, 4, v{vlane}')
    ntl = c['NT'].bit_length() - 1
    a('s_and_b32 s41, s2, 7')
    a('s_lshr_b32 s42, s2, 3')
    a(f's_lshr_b32 s43, s42, {ntl}')
    a(f's_mul_i32 s41, s41, {c["MPX"]}')
    a('s_add_u32 s41, s41, s43')
    a(f's_and_b32 s42, s42, {c["NT"]-1}')
    a(f's_mul_i32 s44, s42, {BN}')
    if WK == 2:
        a(f's_and_b32 s45, s40, {WM-1}')
        a(f's_lshr_b32 s46, s40, {WM.bit_length()-1}')
    else:
        a('s_mov_b32 s45, s40')
        a('s_mov_b32 s46, 0')
    a('s_waitcnt lgkmcnt(0)')
    c['setup'](a, c)
    a('s_cmp_ge_u32 s40, 4')
    a(f's_cbranch_scc1 {name}_prod')

    g = G()
    g.R, g.vi16, g.vg, g.vlane = R, vi16, vg, vlane
    g.tmp = (vt0, vt1, vt2)
    g.NB, g.WK, g.BN, g.TS = NB, WK, BN, TS
    g.XTRA = XTRA

    g.issued = []
    g.fill = []
    c['pre0'](a, c, g)
    vda = [[R.alloc() for ks in range(KS)] for b in range(NBUF)]
    vdb = [[R.alloc() for ks in range(KS)] for b in range(NBUF)]
    if BK == 128:
        a(f'v_xor_b32 v{vt0}, v{vg}, v{vi16}')
    else:
        a(f'v_lshrrev_b32 v{vt0}, 1, v{vi16}')
        a(f'v_xor_b32 v{vt0}, v{vg}, v{vt0}')
    a(f's_mul_i32 s53, s46, {BM*RB}')
    a(f's_mul_i32 s56, s45, {32*RB}')
    a('s_add_u32 s53, s53, s56')
    a(f's_mul_i32 s56, s46, {BN*RB}')
    a(f's_add_u32 s56, s56, {WK*BM*RB}')
    lrb = RB.bit_length() - 1
    for ks in range(KS):
        a(f'v_xor_b32 v{vt1}, {ks<<2}, v{vt0}')
        a(f'v_lshlrev_b32 v{vt1}, 4, v{vt1}')
        a(f'v_lshl_add_u32 v{vt1}, v{vi16}, {lrb}, v{vt1}')
        a(f'v_add_u32 v{vda[0][ks]}, s53, v{vt1}')
        a(f'v_add_u32 v{vdb[0][ks]}, s56, v{vt1}')
        for b in range(1, NBUF):
            a(f'v_add_u32 v{vda[b][ks]}, {b*BUFSZ}, v{vda[0][ks]}')
            a(f'v_add_u32 v{vdb[b][ks]}, {b*BUFSZ}, v{vdb[0][ks]}')
    SBASE = R.alloc(max(84, 8 * (NB + 2)), 4)
    Af = [[SBASE + 8 * s + 4 * rb for rb in range(2)] for s in range(2)]
    Bf = [[SBASE + 16 + 4 * NB * s + 4 * nb for nb in range(NB)] for s in range(2)]
    acc = [[R.alloc(4, 4) for nb in range(NB)] for rb in range(2)]
    g.acc = acc
    if c.get('rowsum'):
        rs = [R.alloc(4, 4) for rb in range(2)]
        ones = R.alloc(4, 4)
        g.rs = rs
        for q in range(4):
            a(f'v_mov_b32 v{ones+q}, 0x3f803f80')
        for rb in range(2):
            for q in range(4):
                a(f'v_mov_b32 v{rs[rb]+q}, 0')
    for rb in range(2):
        for nb in range(NB):
            for q in range(4):
                a(f'v_mov_b32 v{acc[rb][nb]+q}, 0')
    g.SB = SBASE
    c['pre1'](a, c, g)

    rq = []
    def read_f(st, ks, setid, defer=False):
        b = st % NBUF
        l = []
        r = Af[setid][0]
        l.append(f'ds_read_b128 v[{r}:{r+3}], v{vda[b][ks]} offset:0')
        for nb in range(NB):
            r = Bf[setid][nb]
            l.append(f'ds_read_b128 v[{r}:{r+3}], v{vdb[b][ks]} offset:{nb*16*RB}')
        r = Af[setid][1]
        l.append(f'ds_read_b128 v[{r}:{r+3}], v{vda[b][ks]} offset:{16*RB}')
        if defer:
            rq.extend(l)
        else:
            for x in l:
                a(x)
    GAP = c.get('GAP', 3)
    cnt = [0]
    g.fill_ok = False
    FPG = c.get('FPG', 2)
    def mf(line):
        a(line)
        cnt[0] += 1
        if rq:
            a(rq.pop(0))
        elif g.fill_ok:
            for _ in range(FPG):
                if g.fill:
                    a(g.fill.pop(0))
    def mfmas(setid):
        for rb in range(2):
            ar = Af[setid][rb]
            for nb in range(NB):
                br = Bf[setid][nb]
                d = acc[rb][nb]
                mf(f'v_mfma_f32_16x16x32_bf16 v[{d}:{d+3}], v[{br}:{br+3}], v[{ar}:{ar+3}], v[{d}:{d+3}]')
            if c.get('rowsum'):
                d = rs[rb]
                mf(f'v_mfma_f32_16x16x32_bf16 v[{d}:{d+3}], v[{ones}:{ones+3}], v[{ar}:{ar+3}], v[{d}:{d+3}]')
    NF = NB + 2
    fine = c.get('fine')
    if fine:
        vst = R.alloc()
        a(f'v_mov_b32 v{vst}, 0')
        stn = [0]
        def fstamp():
            a('s_memtime s[86:87]')
            a('s_waitcnt lgkmcnt(0)')
            a('s_sub_u32 s86, s86, s90')
            a(f'v_writelane_b32 v{vst}, s86, {stn[0]}')
            stn[0] += 1
    else:
        def fstamp():
            pass
    fstamp()
    a('s_barrier')
    read_f(0, 0, 0)
    par = 0
    for st in range(NST):
        for ks in range(KS - 1):
            a('s_waitcnt lgkmcnt(0)')
            read_f(st, ks + 1, par ^ 1, defer=True)
            mfmas(par)
            assert not rq
            par ^= 1
        if st + 1 < NST:
            a('s_waitcnt lgkmcnt(0)')
            fstamp()
            a('s_barrier')
            if st == 1:
                a('s_waitcnt vmcnt(0)')
                g.fill_ok = True
            read_f(st + 1, 0, par ^ 1, defer=True)
            mfmas(par)
            assert not rq
            par ^= 1
        else:
            a('s_waitcnt lgkmcnt(0)')
            mfmas(par)
    for l in g.fill:
        a(l)
    g.fill = []
    a('s_nop 7')
    a('s_nop 7')
    if WK == 2:
        a('s_barrier')
        lk0, lk1 = a.newlabel(name), a.newlabel(name)
        a(f'v_lshlrev_b32 v{vt0}, 4, v{vlane}')
        a(f's_mul_i32 s57, s40, {NB*1024}')
        a(f's_add_u32 s57, s57, {XCH}')
        a(f'v_add_u32 v{vt1}, s57, v{vt0}')
        a(f's_xor_b32 s57, s40, {WM}')
        a(f's_mul_i32 s57, s57, {NB*1024}')
        a(f's_add_u32 s57, s57, {XCH}')
        a(f'v_add_u32 v{vt2}, s57, v{vt0}')
        T = Bf[0]
        a('s_cmp_eq_u32 s46, 0')
        a(f's_cbranch_scc0 {lk1}')
        for nb in range(NB):
            d = acc[1][nb]
            a(f'ds_write_b128 v{vt1}, v[{d}:{d+3}] offset:{nb*1024}')
        a('s_waitcnt lgkmcnt(0)')
        a('s_barrier')
        for nb in range(NB):
            a(f'ds_read_b128 v[{T[nb]}:{T[nb]+3}], v{vt2} offset:{nb*1024}')
        a('s_waitcnt lgkmcnt(0)')
        for nb in range(NB):
            for q in range(4):
                a(f'v_add_f32 v{acc[0][nb]+q}, v{acc[0][nb]+q}, v{T[nb]+q}')
        a(f's_branch {lk0}')
        a.label(lk1)
        for nb in range(NB):
            d = acc[0][nb]
            a(f'ds_write_b128 v{vt1}, v[{d}:{d+3}] offset:{nb*1024}')
        a('s_waitcnt lgkmcnt(0)')
        a('s_barrier')
        for nb in range(NB):
            a(f'ds_read_b128 v[{T[nb]}:{T[nb]+3}], v{vt2} offset:{nb*1024}')
        a('s_waitcnt lgkmcnt(0)')
        for nb in range(NB):
            for q in range(4):
                a(f'v_add_f32 v{acc[0][nb]+q}, v{acc[1][nb]+q}, v{T[nb]+q}')
        a.label(lk0)
        g.rbs = [0]
    else:
        a('s_barrier')
        g.rbs = [0, 1]
    fstamp()
    c['epi'](a, c, g)
    if fine:
        a('s_waitcnt vmcnt(0)')
        fstamp()
        a('s_mov_b32 s60, s98')
        a('s_mov_b32 s61, s99')
        a('s_mov_b32 s62, 256')
        a('s_mov_b32 s63, 0x00020000')
        a('s_mov_b64 exec, -1')
        a(f'v_cmp_gt_u32 vcc, 32, v{vlane}')
        a(f'v_lshlrev_b32 v1, 2, v{vlane}')
        a('v_mov_b32 v2, 0x7ffffff0')
        a('s_nop 1')
        a('v_cndmask_b32 v1, v2, v1, vcc')
        a(f's_cmp_eq_u32 s2, {fine-1}')
        a(f's_cbranch_scc0 {end}')
        a('s_cmp_eq_u32 s40, 0')
        a(f's_cbranch_scc0 {end}')
        a(f'buffer_store_dword v{vst}, v1, s[60:63], 0 offen')
    elif c.get('stamp'):
        a('s_waitcnt vmcnt(0)')
        a('s_memtime s[94:95]')
        a('s_memrealtime s[96:97]')
        a('s_waitcnt lgkmcnt(0)')
        a('s_sub_u32 s94, s94, s90')
        a('s_sub_u32 s96, s96, s92')
        a('s_mov_b32 s60, s98')
        a('s_mov_b32 s61, s99')
        a('s_mov_b32 s62, 256')
        a('s_mov_b32 s63, 0x00020000')
        a('s_and_b32 s58, s2, 31')
        a('s_lshl_b32 s58, s58, 3')
        a('s_mov_b64 exec, -1')
        a('v_mov_b32 v1, s58')
        a('v_mov_b32 v2, s94')
        a('v_mov_b32 v3, s96')
        a('s_cmp_lt_u32 s2, 32')
        a(f's_cbranch_scc0 {end}')
        a('v_cmp_eq_u32 vcc, 0, v0')
        a('s_and_saveexec_b64 s[58:59], vcc')
        a(f's_cbranch_execz {end}')
        a('buffer_store_dwordx2 v[2:3], v1, s[60:63], 0 offen')
    a.label(end)
    a('s_endpgm')
    NP = 4
    a.label(f'{name}_prod')
    a('s_sub_u32 s50, s40, 4')
    lc = CPR.bit_length() - 1
    a(f'v_lshrrev_b32 v10, {lc}, v{vlane}')
    a(f'v_and_b32 v11, {CPR-1}, v{vlane}')
    if BK == 128:
        a('s_lshl_b32 s51, s50, 2')
        a('v_add_u32 v12, s51, v10')
    else:
        a('s_and_b32 s51, s50, 1')
        a('s_lshl_b32 s51, s51, 2')
        a('v_lshrrev_b32 v12, 1, v10')
        a('v_add_u32 v12, s51, v12')
    a('v_xor_b32 v12, v11, v12')
    a('v_lshlrev_b32 v12, 4, v12')
    a(f'v_mul_u32_u24 v14, {c["lda"]}, v10')
    a('v_add_u32 v14, v14, v12')
    a(f'v_mul_u32_u24 v15, {c["ldb"]}, v10')
    a('v_add_u32 v15, v15, v12')
    a('s_lshl_b32 s54, s50, 10')
    a(f's_mul_i32 s52, s50, {RPI}')
    a('s_add_u32 s53, s52, s47')
    a(f's_mul_i32 s53, s53, {c["lda"]}')
    a('s_add_u32 s56, s52, s44')
    a(f's_mul_i32 s56, s56, {c["ldb"]}')
    special = {}
    for q in range(nB // NP):
        ib = NP * q
        if WK == 2 and ib < cntB < ib + NP:
            sreg = 64 + len(special)
            special[q] = sreg
            a(f's_cmp_ge_u32 s50, {cntB-ib}')
            a(f's_mov_b32 s57, {ib*RPI*c["ldb"]}')
            a(f's_cselect_b32 s{sreg}, {((ib-cntB)*RPI*c["ldb"] + c["b_goff"]) & 0xffffffff}, s57')
            a(f's_add_u32 s{sreg}, s{sreg}, s56')
    NSL = (nA + nB + NP - 1) // NP
    if padB:
        assert WK == 1
        a('s_cmp_ge_u32 s50, 2')
        a(f's_cselect_b32 s66, {(-2*RPI*c["ldb"]) & 0xffffffff}, 0')
        a('s_cselect_b32 s67, 2048, 0')
        a('s_add_u32 s66, s66, s56')
        a('s_sub_u32 s67, s54, s67')
    rot = c.get('rot')
    if rot:
        a(f's_mul_i32 s48, s42, {rot[0]}')
        a(f's_and_b32 s49, s41, {c["MPX"]-1}')
        a(f's_mul_i32 s49, s49, {rot[1]}')
        a('s_add_u32 s48, s48, s49')
        for k in (4, 2, 1):
            a(f's_cmp_ge_u32 s48, {k*NST}')
            a(f's_cselect_b32 s49, {k*NST}, 0')
            a('s_sub_u32 s48, s48, s49')
        a(f's_mul_i32 s48, s48, {RB}')
        a('s_mov_b32 s88, s53')
        a('s_mov_b32 s89, s56')
        for i_, sr_ in enumerate(special.values()):
            a(f's_mov_b32 s{68+i_}, s{sr_}')
    def p_issue(st_):
        b = st_ % NBUF
        st = st_
        if rot:
            st = 0
            a(f's_add_u32 s49, s48, {st_*RB}')
            a(f's_cmp_ge_u32 s49, {NST*RB}')
            a(f's_cselect_b32 s55, {NST*RB}, 0')
            a('s_sub_u32 s49, s49, s55')
            a('s_add_u32 s53, s88, s49')
            a('s_add_u32 s56, s89, s49')
            for i_, sr_ in enumerate(special.values()):
                a(f's_add_u32 s{sr_}, s{68+i_}, s49')
        for q in range(NSL):
            io = NP * q
            if padB and q == NSL - 1:
                ib = io - nA
                a(f's_add_u32 m0, s67, {b*BUFSZ + io*1024}')
                a(f's_add_u32 s55, s66, {ib*RPI*c["ldb"] + st*RB}')
                a('buffer_load_dwordx4 v15, s[12:15], s55 offen lds')
                continue
            a(f's_add_u32 m0, s54, {b*BUFSZ + io*1024}')
            if io < nA:
                gam, loc0 = io // cntA, io % cntA
                a(f's_add_u32 s55, s53, {loc0*RPI*c["lda"] + gam*c["a_goff"] + st*RB}')
                a('buffer_load_dwordx4 v14, s[8:11], s55 offen lds')
            else:
                ib = io - nA
                qb = ib // NP
                if qb in special:
                    a(f's_add_u32 s55, s{special[qb]}, {st*RB}')
                else:
                    gam, loc0 = ib // cntB, ib % cntB
                    a(f's_add_u32 s55, s56, {loc0*RPI*c["ldb"] + gam*c["b_goff"] + st*RB}')
                a('buffer_load_dwordx4 v15, s[12:15], s55 offen lds')
    chunks = []
    if c.get('h_pre'):
        c['h_pre'](a, c, g)
        chunks = c['h_tail'](c, g)
    npre = min(NBUF, NST)
    pst = [32]
    if fine:
        a('v_mov_b32 v9, 0')
    def pstamp():
        if fine and pst[0] < 40:
            a('s_memtime s[86:87]')
            a('s_waitcnt lgkmcnt(0)')
            a('s_sub_u32 s86, s86, s90')
            a(f'v_writelane_b32 v9, s86, {pst[0]}')
            pst[0] += 1
    PRE0 = c.get('PRE0', 2)
    PER = c.get('PER', 2)
    nxt = [0]
    def issue_upto(limit, maxn):
        n = 0
        while nxt[0] < NST and nxt[0] <= limit and n < maxn:
            p_issue(nxt[0])
            nxt[0] += 1
            n += 1
            pstamp()
    pstamp()
    issue_upto(NBUF - 1, PRE0)
    a(f's_waitcnt vmcnt({(nxt[0]-1)*NSL})')
    pstamp()
    if fine:
        lb = a.newlabel(name)
        a('s_mov_b32 s60, s98')
        a('s_mov_b32 s61, s99')
        a('s_mov_b32 s62, 256')
        a('s_mov_b32 s63, 0x00020000')
        a(f'v_lshlrev_b32 v8, 2, v{vlane}')
        a(f'v_cmp_lt_u32 vcc, 31, v{vlane}')
        a('v_mov_b32 v7, 0x7ffffff0')
        a('s_nop 1')
        a('v_cndmask_b32 v8, v7, v8, vcc')
        a(f's_cmp_eq_u32 s2, {fine-1}')
        a(f's_cbranch_scc0 {lb}')
        a('s_cmp_eq_u32 s40, 4')
        a(f's_cbranch_scc0 {lb}')
        a('buffer_store_dword v9, v8, s[60:63], 0 offen')
        a('s_waitcnt vmcnt(0)')
        a.label(lb)
    a('s_barrier')
    fine_save = fine
    fine = 0
    issue_upto(NBUF - 1, PER)
    for st in range(NST - 1):
        if nxt[0] <= st + 1:
            issue_upto(st + 1, NST)
        a(f's_waitcnt vmcnt({(nxt[0]-1-(st+1))*NSL})')
        a('s_barrier')
        if nxt[0] < NST:
            issue_upto(st + NBUF, PER)
        elif chunks:
            for l in chunks.pop(0):
                a(l)
    for ch in chunks:
        for l in ch:
            a(l)
    if c.get('h_final_barrier'):
        a('s_waitcnt lgkmcnt(0)')
        for _ in range(c['h_final_barrier']):
            a('s_barrier')
    a('s_endpgm')
    return R.n, lds_total

def tr_setup(a, g, row_sgpr, ldo):
    R = g.R
    CH = g.BN // 8
    nrows = 16 * len_rbs(g)
    tot = nrows * CH
    g.nt = (tot + 63) // 64
    g.tot = tot
    g.tl = [R.alloc() for _ in range(g.nt)]
    g.tg = [R.alloc() for _ in range(g.nt)]
    g.tc = [R.alloc() for _ in range(g.nt)]
    vt0, vt1, vt2 = g.tmp
    magic = {10: 6554, 12: 5462}[CH]
    a(f's_mul_i32 s57, s40, {nrows*g.TS}')
    if g.WK == 2:
        a('s_add_u32 s57, s57, 32768')
    a('s_lshl_b32 s58, s44, 1')
    a(f's_mov_b32 s59, {ldo}')
    for t in range(g.nt):
        a(f'v_add_u32 v{vt0}, {64*t}, v{g.vlane}')
        a(f'v_mul_u32_u24 v{vt1}, {magic}, v{vt0}')
        a(f'v_lshrrev_b32 v{vt1}, 16, v{vt1}')
        a(f'v_mul_u32_u24 v{vt2}, {CH}, v{vt1}')
        a(f'v_sub_u32 v{vt2}, v{vt0}, v{vt2}')
        a(f'v_lshlrev_b32 v{vt2}, 4, v{vt2}')
        a(f'v_mul_u32_u24 v{g.tl[t]}, {g.TS}, v{vt1}')
        a(f'v_add3_u32 v{g.tl[t]}, v{g.tl[t]}, v{vt2}, s57')
        a(f'v_add_u32 v{g.tc[t]}, s58, v{vt2}')
        a(f'v_add_u32 v{vt1}, {row_sgpr}, v{vt1}')
        a(f'v_mul_lo_u32 v{g.tg[t]}, v{vt1}, s59')
        a(f'v_add_u32 v{g.tg[t]}, v{g.tg[t]}, v{g.tc[t]}')
        if 64 * (t + 1) > tot:
            a(f'v_cmp_gt_u32 vcc, {tot}, v{vt0}')
            a(f'v_mov_b32 v{vt1}, 0x7ffffff0')
            a('s_nop 1')
            a(f'v_cndmask_b32 v{g.tg[t]}, v{vt1}, v{g.tg[t]}, vcc')
            a(f'v_cndmask_b32 v{g.tl[t]}, 0, v{g.tl[t]}, vcc')
    g.tw = R.alloc()
    a(f'v_mul_u32_u24 v{g.tw}, {g.TS}, v{g.vi16}')
    a(f'v_lshl_add_u32 v{g.tw}, v{g.vg}, 3, v{g.tw}')
    a(f'v_add_u32 v{g.tw}, s57, v{g.tw}')

def len_rbs(g):
    return 1 if g.WK == 2 else 2

def tr_write(a, g, rbi, pk):
    for nb in range(g.NB):
        a(f'ds_write_b64 v{g.tw}, v[{pk+2*nb}:{pk+2*nb+1}] offset:{rbi*16*g.TS + nb*32}')

def tr_read(a, g, dst):
    a('s_waitcnt lgkmcnt(0)')
    for t in range(g.nt):
        a(f'ds_read_b128 v[{dst+4*t}:{dst+4*t+3}], v{g.tl[t]}')
```

```python
from common import *

K0_NMOD = 120
K0_NLN = 64
K0_NTR = 240
K0_NCP = 80
K0_NPF = 256
K0_GRID = K0_NMOD + K0_NLN + 2 * K0_NTR + K0_NCP + K0_NPF
K0_LDS = 40960

def dpp_allreduce16(a, v, tmp):
    for r in (8, 4, 2, 1):
        a('s_nop 1')
        a(f'v_add_f32_dpp v{tmp}, v{v}, v{v} row_ror:{r} row_mask:0xf bank_mask:0xf')
        a(f'v_mov_b32 v{v}, v{tmp}')

def gen_k0(a, name):
    kernel_header(a, name)
    a(f's_cmp_ge_u32 s2, {K0_GRID}')
    a('s_cbranch_scc1 k0_end')
    a(f's_load_dwordx2 s[4:5], s[0:1], {KA["ws"]}')
    a(f's_cmp_lt_u32 s2, {K0_NMOD}')
    a('s_cbranch_scc1 k0_mod')
    a(f's_cmp_lt_u32 s2, {K0_NMOD+K0_NLN}')
    a('s_cbranch_scc1 k0_ln')
    a(f's_cmp_ge_u32 s2, {K0_NMOD+K0_NLN+2*K0_NTR+K0_NCP}')
    a('s_cbranch_scc1 k0_pf')
    a(f's_cmp_ge_u32 s2, {K0_NMOD+K0_NLN+2*K0_NTR}')
    a('s_cbranch_scc1 k0_cp')
    a(f's_load_dwordx2 s[6:7], s[0:1], {KA["w1"]}')
    a(f's_load_dwordx2 s[8:9], s[0:1], {KA["w2"]}')
    a(f's_sub_u32 s3, s2, {K0_NMOD+K0_NLN}')
    a('s_waitcnt lgkmcnt(0)')
    a(f's_cmp_lt_u32 s3, {K0_NTR}')
    a('s_cbranch_scc1 k0_tr_w1')
    a(f's_sub_u32 s3, s3, {K0_NTR}')
    srd(a, 12, 8, 0, F * D * 2)
    srd(a, 16, 4, WS_W2T, F * D * 2)
    a('s_mul_i32 s20, s3, 6554')
    a('s_lshr_b32 s20, s20, 16')
    a('s_mul_i32 s21, s20, 10')
    a('s_sub_u32 s21, s3, s21')
    a(f's_mov_b32 s22, {D*2}')
    a(f's_mov_b32 s23, {F*2}')
    a('s_branch k0_tr_go')
    a.label('k0_tr_w1')
    srd(a, 12, 6, 0, F * D * 2)
    srd(a, 16, 4, WS_W1T, F * D * 2)
    a('s_mul_i32 s20, s3, 2731')
    a('s_lshr_b32 s20, s20, 16')
    a('s_mul_i32 s21, s20, 24')
    a('s_sub_u32 s21, s3, s21')
    a(f's_mov_b32 s22, {F*2}')
    a(f's_mov_b32 s23, {D*2}')
    a.label('k0_tr_go')
    a('v_lshrrev_b32 v1, 3, v0')
    a('v_and_b32 v2, 7, v0')
    a('s_lshl_b32 s24, s20, 6')
    a('v_add_u32 v3, s24, v1')
    a('v_mul_lo_u32 v3, v3, s22')
    a('s_lshl_b32 s25, s21, 7')
    a('v_lshlrev_b32 v4, 4, v2')
    a('v_add3_u32 v3, v3, v4, s25')
    a('s_lshl_b32 s26, s22, 5')
    a('buffer_load_dwordx4 v[8:11], v3, s[12:15], 0 offen')
    a('buffer_load_dwordx4 v[12:15], v3, s[12:15], s26 offen')
    a('v_mul_u32_u24 v5, 1056, v2')
    a('v_lshl_add_u32 v5, v1, 1, v5')
    a('s_waitcnt vmcnt(1)')
    for p in range(2):
        if p == 1:
            a('s_waitcnt vmcnt(0)')
        for q in range(4):
            reg = 8 + 4 * p + q
            a(f'ds_write_b16 v5, v{reg} offset:{(2*q)*132 + p*64}')
            a(f'ds_write_b16_d16_hi v5, v{reg} offset:{(2*q+1)*132 + p*64}')
    a('s_waitcnt lgkmcnt(0)')
    a('s_barrier')
    a('v_lshrrev_b32 v1, 2, v0')
    a('v_and_b32 v2, 3, v0')
    a('v_mul_u32_u24 v5, 132, v1')
    a('v_lshl_add_u32 v5, v2, 5, v5')
    for q in range(4):
        a(f'ds_read2_b32 v[{8+2*q}:{9+2*q}], v5 offset0:{2*q} offset1:{2*q+1}')
    a('s_lshl_b32 s24, s21, 6')
    a('v_add_u32 v3, s24, v1')
    a('v_mul_lo_u32 v3, v3, s23')
    a('s_lshl_b32 s25, s20, 7')
    a('v_lshlrev_b32 v4, 5, v2')
    a('v_add3_u32 v3, v3, v4, s25')
    a('s_waitcnt lgkmcnt(0)')
    a('buffer_store_dwordx4 v[8:11], v3, s[16:19], 0 offen')
    a('buffer_store_dwordx4 v[12:15], v3, s[16:19], 0 offen offset:16')
    a('s_endpgm')

    a.label('k0_pf')
    a(f's_load_dwordx2 s[6:7], s[0:1], {KA["cs"]}')
    a(f's_load_dwordx2 s[8:9], s[0:1], {KA["ss"]}')
    a(f's_sub_u32 s3, s2, {K0_NMOD+K0_NLN+2*K0_NTR+K0_NCP}')
    a('s_lshl_b32 s3, s3, 15')
    a('v_lshlrev_b32 v1, 7, v0')
    a('v_add_u32 v1, s3, v1')
    a('s_waitcnt lgkmcnt(0)')
    srd(a, 12, 6, 0, S * S * 2)
    srd(a, 16, 8, 0, S * S * 2)
    a('buffer_load_dword v2, v1, s[12:15], 0 offen')
    a('buffer_load_dword v3, v1, s[16:19], 0 offen')
    a('s_waitcnt vmcnt(0)')
    a('s_endpgm')

    a.label('k0_cp')
    a(f's_load_dwordx2 s[6:7], s[0:1], {KA["ch"]}')
    a(f's_load_dwordx2 s[8:9], s[0:1], {KA["sh"]}')
    a(f's_sub_u32 s3, s2, {K0_NMOD+K0_NLN+2*K0_NTR}')
    a('s_waitcnt lgkmcnt(0)')
    a('s_cmp_ge_u32 s3, 40')
    a('s_cselect_b32 s6, s8, s6')
    a('s_cselect_b32 s7, s9, s7')
    a('s_cselect_b32 s20, 1280, 0')
    a('s_cselect_b32 s21, 40, 0')
    a('s_sub_u32 s3, s3, s21')
    srd(a, 12, 6, 0, D * D * 2)
    srd(a, 16, 4, WS_CSH, D * 2 * D * 2)
    a('s_mul_i32 s22, s3, 16*1280')
    a('s_mul_i32 s23, s3, 16*2560')
    a('s_add_u32 s23, s23, s20')
    a('s_mov_b32 s24, 52429')
    for t in range(5):
        a(f'v_add_u32 v1, {256*t}, v0')
        a(f'v_mul_lo_u32 v2, v1, s24')
        a(f'v_lshrrev_b32 v2, 22, v2')
        a(f'v_lshl_add_u32 v{30+t}, v1, 4, s22')
        a(f'v_mul_u32_u24 v3, 1280, v2')
        a(f'v_lshl_add_u32 v{40+t}, v1, 4, v3')
        a(f'v_add_u32 v{40+t}, s23, v{40+t}')
        a(f'buffer_load_dwordx4 v[{8+4*t}:{11+4*t}], v{30+t}, s[12:15], 0 offen')
    for t in range(5):
        a(f's_waitcnt vmcnt({4-t})')
        a(f'buffer_store_dwordx4 v[{8+4*t}:{11+4*t}], v{40+t}, s[16:19], 0 offen')
    a('s_endpgm')

    a.label('k0_mod')
    a(f's_load_dwordx2 s[6:7], s[0:1], {KA["c"]}')
    a(f's_load_dwordx2 s[8:9], s[0:1], {KA["wmod"]}')
    a('v_and_b32 v1, 3, v0')
    a('v_lshrrev_b32 v2, 2, v0')
    a('v_lshlrev_b32 v3, 1, v2')
    a('v_mul_u32_u24 v4, 7680, v2')
    a('v_lshl_add_u32 v4, v1, 4, v4')
    a('s_lshl_b32 s3, s2, 6')
    a('v_add_u32 v4, s3, v4')
    a('s_waitcnt lgkmcnt(0)')
    srd(a, 12, 6, 0, D * 2)
    srd(a, 16, 8, 0, D * 6 * D * 2)
    srd(a, 20, 4, WS_MOD, 6 * D * 2)
    CB = 10
    WB = 20
    AC = 60
    T0 = 70
    for j in range(10):
        a(f'buffer_load_ushort v{CB+j}, v3, s[12:15], 0 offen offset:{j*128}')
    for j in range(10):
        a(f's_mov_b32 s24, {j*64*7680}')
        a(f'buffer_load_dwordx4 v[{WB+4*j}:{WB+4*j+3}], v4, s[16:19], s24 offen')
    for e in range(8):
        a(f'v_mov_b32 v{AC+e}, 0')
    a('s_waitcnt vmcnt(10)')
    for j in range(10):
        a(f'v_lshlrev_b32 v{CB+j}, 16, v{CB+j}')
    for j in range(10):
        a(f'v_mul_f32 v{T0+j}, 0xbfb8aa3b, v{CB+j}')
    for j in range(10):
        a(f'v_exp_f32 v{T0+j}, v{T0+j}')
    a('s_nop 0')
    for j in range(10):
        a(f'v_add_f32 v{T0+j}, 1.0, v{T0+j}')
    for j in range(10):
        a(f'v_rcp_f32 v{T0+j}, v{T0+j}')
    a('s_nop 0')
    for j in range(10):
        a(f'v_mul_f32 v{CB+j}, v{CB+j}, v{T0+j}')
    for j in range(10):
        a(f'v_cvt_pk_bf16_f32 v{CB+j}, v{CB+j}, v{CB+j}')
    for j in range(10):
        a(f'v_lshlrev_b32 v{CB+j}, 16, v{CB+j}')
    for j in range(10):
        a(f's_waitcnt vmcnt({9-j})')
        for q in range(4):
            w = WB + 4 * j + q
            a(f'v_lshlrev_b32 v{T0}, 16, v{w}')
            a(f'v_and_b32 v{T0+1}, 0xffff0000, v{w}')
            a(f'v_fmac_f32 v{AC+2*q}, v{CB+j}, v{T0}')
            a(f'v_fmac_f32 v{AC+2*q+1}, v{CB+j}, v{T0+1}')
    a('v_lshlrev_b32 v5, 7, v2')
    a('v_lshl_add_u32 v5, v1, 5, v5')
    a(f'ds_write_b128 v5, v[{AC}:{AC+3}]')
    a(f'ds_write_b128 v5, v[{AC+4}:{AC+7}] offset:16')
    a('s_waitcnt lgkmcnt(0)')
    a('s_barrier')
    a('v_and_b32 v1, 31, v0')
    a('v_lshrrev_b32 v2, 5, v0')
    a('v_lshlrev_b32 v5, 10, v2')
    a('v_lshl_add_u32 v5, v1, 2, v5')
    for i in range(8):
        a(f'ds_read_b32 v{10+i}, v5 offset:{i*128}')
    a('s_waitcnt lgkmcnt(0)')
    for i in range(1, 8):
        a(f'v_add_f32 v10, v10, v{10+i}')
    a('v_lshlrev_b32 v5, 7, v2')
    a('v_lshl_add_u32 v5, v1, 2, v5')
    a('ds_write_b32 v5, v10 offset:8192')
    a('s_waitcnt lgkmcnt(0)')
    a('s_barrier')
    a('v_cmp_gt_u32 vcc, 32, v0')
    a('s_and_saveexec_b64 s[26:27], vcc')
    a('s_cbranch_execz k0_end')
    a('v_lshlrev_b32 v5, 2, v0')
    for i in range(8):
        a(f'ds_read_b32 v{10+i}, v5 offset:{8192+i*128}')
    a('s_waitcnt lgkmcnt(0)')
    for i in range(1, 8):
        a(f'v_add_f32 v10, v10, v{10+i}')
    a('v_cvt_pk_bf16_f32 v10, v10, v10')
    a('s_lshl_b32 s3, s2, 6')
    a('v_lshl_add_u32 v5, v0, 1, s3')
    a('buffer_store_short v10, v5, s[20:23], 0 offen')
    a('s_endpgm')

    a.label('k0_ln')
    a(f's_load_dwordx2 s[6:7], s[0:1], {KA["x"]}')
    a(f's_sub_u32 s3, s2, {K0_NMOD}')
    a('v_and_b32 v1, 15, v0')
    a('v_lshrrev_b32 v2, 4, v0')
    a('s_mul_i32 s24, s3, 32*1280')
    a('v_mul_u32_u24 v3, 2560, v2')
    a('v_lshl_add_u32 v3, v1, 4, v3')
    a('v_add_u32 v3, s24, v3')
    a('s_waitcnt lgkmcnt(0)')
    srd(a, 12, 6, 0, S * D * 2)
    srd(a, 16, 4, WS_NT, S * D * 2)
    XB = 50
    FB = 10
    ST = 90
    for p in range(2):
        for j in range(5):
            r = XB + 20 * p + 4 * j
            a(f'buffer_load_dwordx4 v[{r}:{r+3}], v3, s[12:15], 0 offen offset:{p*1280 + j*256}')
    a('s_waitcnt vmcnt(0)')
    for p in range(2):
        for i in range(20):
            r = XB + 20 * p + i
            f = FB + 40 * p + 2 * i
            assert f + 1 <= r
            a(f'v_lshlrev_b32 v{f}, 16, v{r}')
            a(f'v_and_b32 v{f+1}, 0xffff0000, v{r}')
    for p in range(2):
        sm = ST + 8 * p
        a(f'v_add_f32 v{sm}, v{FB+40*p}, v{FB+40*p+1}')
        a(f'v_add_f32 v{sm+1}, v{FB+40*p+2}, v{FB+40*p+3}')
        for i in range(4, 40, 2):
            a(f'v_add_f32 v{sm}, v{sm}, v{FB+40*p+i}')
            a(f'v_add_f32 v{sm+1}, v{sm+1}, v{FB+40*p+i+1}')
        a(f'v_add_f32 v{sm}, v{sm}, v{sm+1}')
        dpp_allreduce16(a, sm, sm + 1)
        a(f'v_mul_f32 v{sm}, 0x3acccccd, v{sm}')
        a(f'v_mov_b32 v{sm+2}, 0')
        a(f'v_mov_b32 v{sm+3}, 0')
        for i in range(0, 40, 2):
            a(f'v_sub_f32 v{sm+4}, v{FB+40*p+i}, v{sm}')
            a(f'v_sub_f32 v{sm+5}, v{FB+40*p+i+1}, v{sm}')
            a(f'v_fmac_f32 v{sm+2}, v{sm+4}, v{sm+4}')
            a(f'v_fmac_f32 v{sm+3}, v{sm+5}, v{sm+5}')
        a(f'v_add_f32 v{sm+2}, v{sm+2}, v{sm+3}')
        dpp_allreduce16(a, sm + 2, sm + 3)
        a(f'v_mul_f32 v{sm+2}, 0x3acccccd, v{sm+2}')
        a(f'v_cvt_pk_bf16_f32 v{sm+3}, v{sm}, v{sm+2}')
        a(f'v_lshlrev_b32 v{sm}, 16, v{sm+3}')
        a(f'v_and_b32 v{sm+2}, 0xffff0000, v{sm+3}')
        a(f'v_add_f32 v{sm+2}, 0x3727c5ac, v{sm+2}')
        a(f'v_cvt_pk_bf16_f32 v{sm+2}, v{sm+2}, v{sm+2}')
        a(f'v_lshlrev_b32 v{sm+2}, 16, v{sm+2}')
        a(f'v_sqrt_f32 v{sm+2}, v{sm+2}')
        a('s_nop 0')
        a(f'v_cvt_pk_bf16_f32 v{sm+2}, v{sm+2}, v{sm+2}')
        a(f'v_lshlrev_b32 v{sm+2}, 16, v{sm+2}')
        a(f'v_rcp_f32 v{sm+2}, v{sm+2}')
        a('s_nop 0')
    a('v_lshrrev_b32 v4, 2, v2')
    a('v_and_b32 v5, 3, v1')
    a('v_xor_b32 v4, v4, v5')
    a('v_lshlrev_b32 v4, 4, v4')
    a('v_and_b32 v5, 3, v2')
    a('v_lshl_add_u32 v4, v5, 2, v4')
    a('v_lshl_add_u32 v4, v1, 9, v4')
    T = 106
    for j in range(5):
        for e in range(8):
            i = j * 8 + e
            t = T + 4 * (i % 4)
            a(f'v_sub_f32 v{t}, v{FB+i}, v{ST}')
            a(f'v_sub_f32 v{t+1}, v{FB+40+i}, v{ST+8}')
            a(f'v_cvt_pk_bf16_f32 v{t+2}, v{t}, v{t+1}')
            a(f'v_lshlrev_b32 v{t}, 16, v{t+2}')
            a(f'v_and_b32 v{t+1}, 0xffff0000, v{t+2}')
            a(f'v_mul_f32 v{t}, v{t}, v{ST+2}')
            a(f'v_mul_f32 v{t+1}, v{t+1}, v{ST+8+2}')
            a(f'v_cvt_pk_bf16_f32 v{t+3}, v{t}, v{t+1}')
            a(f'ds_write_b32 v4, v{t+3} offset:{j*8192 + e*64}')
    a('s_waitcnt lgkmcnt(0)')
    a('s_barrier')
    a('v_lshlrev_b32 v4, 4, v0')
    for i in range(10):
        a(f'ds_read_b128 v[{10+4*i}:{13+4*i}], v4 offset:{i*4096}')
    a('v_lshrrev_b32 v5, 5, v0')
    a('v_xor_b32 v5, v5, v0')
    a('v_and_b32 v5, 3, v5')
    a('v_lshrrev_b32 v6, 2, v0')
    a('v_lshlrev_b32 v6, 12, v6')
    a('v_lshl_add_u32 v6, v5, 4, v6')
    a('s_lshl_b32 s24, s3, 6')
    a('v_add_u32 v6, s24, v6')
    for i in range(10):
        a(f's_mov_b32 s25, {i*262144}')
        a(f's_waitcnt lgkmcnt({9-i})')
        a(f'buffer_store_dwordx4 v[{10+4*i}:{13+4*i}], v6, s[16:19], s25 offen')
    a.label('k0_end')
    a('s_endpgm')
    return 124
```

```python
import sys
from common import *
from k0 import *
from gemm3 import *
import main as m1

def acc_list(g, rb):
    return [g.acc[rb][nb] + q for nb in range(g.NB) for q in range(4)]

class Rec:
    def __init__(self, g):
        self.g = g
    def __call__(self, s):
        self.g.fill.append(s)

def unpack_inplace(a, base, n):
    for i in range(n):
        a(f'v_lshlrev_b32 v{base+2*i}, 16, v{base+n+i}')
        a(f'v_and_b32 v{base+2*i+1}, {MASK}, v{base+n+i}')

def plus1_round(a, base, n2, tmp):
    for i in range(0, n2, 2):
        a(f'v_add_f32 v{base+i}, 1.0, v{base+i}')
        a(f'v_add_f32 v{base+i+1}, 1.0, v{base+i+1}')
        a(f'v_cvt_pk_bf16_f32 v{tmp}, v{base+i}, v{base+i+1}')
        a(f'v_lshlrev_b32 v{base+i}, 16, v{tmp}')
        a(f'v_and_b32 v{base+i+1}, {MASK}, v{tmp}')

def nop(a, c, g):
    pass

def row_sgpr(a, g):
    a('s_lshl_b32 s38, s45, 5')
    a('s_add_u32 s38, s38, s39')
    if g.WK == 2:
        a('s_lshl_b32 s37, s46, 4')
        a('s_add_u32 s38, s38, s37')

def store_rounds(a, g, src, srd_, soff='0'):
    for t in range(g.nt):
        a(f'buffer_store_dwordx4 v[{src+4*t}:{src+4*t+3}], v{g.tg[t]}, s[{srd_}:{srd_+3}], {soff} offen')

def l1_setup(a, c):
    a('s_cmp_ge_u32 s41, 16')
    a('s_cselect_b32 s30, s32, s30')
    a('s_cselect_b32 s31, s33, s31')
    a('s_cselect_b32 s35, 0x80000000, 0')
    a('s_cselect_b32 s36, 1280, 0')
    srd(a, 8, 30, 0, S * S * 2)
    srd(a, 12, 4, WS_NT, S * D * 2)
    srd(a, 20, 4, WS_MOD, 6 * D * 2)
    srd(a, 24, 4, WS_PQ, S * 2 * D * 2)
    a('s_and_b32 s47, s41, 15')
    a('s_lshl_b32 s47, s47, 7')
    a('s_mov_b32 s39, s47')

def l1_pre0(a, c, g):
    R = g.R
    vc = R.alloc()
    a('s_lshl_b32 s60, s44, 1')
    a(f'v_lshl_add_u32 v{vc}, v{g.vg}, 3, s60')
    g.sa = R.alloc(20, 2); g.ca = R.alloc(20, 2); g.ft = R.alloc()
    a('s_mov_b32 s61, 1280')
    for nb in range(g.NB):
        a(f'buffer_load_dwordx2 v[{g.sa+10+2*nb}:{g.sa+10+2*nb+1}], v{vc}, s[20:23], 0 offen offset:{32*nb}')
        g.issued.append(10**6)
    for nb in range(g.NB):
        a(f'buffer_load_dwordx2 v[{g.ca+10+2*nb}:{g.ca+10+2*nb+1}], v{vc}, s[20:23], s61 offen offset:{32*nb}')
        g.issued.append(10**6)
    f = Rec(g)
    unpack_inplace(f, g.sa, 10)
    unpack_inplace(f, g.ca, 10)
    plus1_round(f, g.ca, 20, g.ft)
    for i in range(20):
        f(f'v_xor_b32 v{g.ca+i}, s35, v{g.ca+i}')
        f(f'v_xor_b32 v{g.sa+i}, s35, v{g.sa+i}')

def l1_pre1(a, c, g):
    l1_pre0(a, c, g)
    row_sgpr(a, g)
    tr_setup(a, g, 's38', 2 * D * 2)

def l1_epi(a, c, g):
    SB = g.SB
    n = 2 * g.NB
    t = SB + 40
    for rb in g.rbs:
        al = acc_list(g, rb)
        for i in range(2 * n):
            a(f'v_mul_f32 v{t+i}, v{al[i]}, v{g.ca+i}')
            a(f'v_fmac_f32 v{t+i}, v{g.rs[rb]}, v{g.sa+i}')
        oo = SB + 60 + 10 * rb
        for i in range(n):
            a(f'v_cvt_pk_bf16_f32 v{oo+i}, v{t+2*i}, v{t+2*i+1}')
        tr_write(a, g, rb, oo)
    tr_read(a, g, SB)
    for t_ in range(g.nt):
        a(f's_waitcnt lgkmcnt({g.nt-1-t_})')
        a(f'buffer_store_dwordx4 v[{SB+4*t_}:{SB+4*t_+3}], v{g.tg[t_]}, s[24:27], s36 offen')

L1 = dict(NWG=256, MPX=4, NT=8, WM=4, WK=1, NB=5, NST=32, BK=64, NBUF=6, PRE0=3, lda=S * 2, ldb=S * 2, a_goff=0, b_goff=0,
          kargs=[(30, 'cs'), (32, 'ss')], setup=l1_setup, pre0=nop, pre1=l1_pre1, epi=l1_epi, rowsum=True, helper=False, ka_bytes=4096, kb_bytes=4096, rot=(2, 5))

def res_pre0(goff, xsrd):
    def pre(a, c, g):
        R = g.R
        row_sgpr(a, g)
        tr_setup(a, g, 's38', D * 2)
        n = 4 * g.nt
        g.ga = R.alloc(2 * n, 4); g.x = R.alloc(2 * n, 4)
        a(f's_mov_b32 s61, {goff}')
        for t in range(g.nt):
            a(f'buffer_load_dwordx4 v[{g.ga+n+4*t}:{g.ga+n+4*t+3}], v{g.tc[t]}, s[20:23], s61 offen')
            g.issued.append(10**6)
        for t in range(g.nt):
            a(f'buffer_load_dwordx4 v[{g.x+n+4*t}:{g.x+n+4*t+3}], v{g.tg[t]}, s[{xsrd}:{xsrd+3}], 0 offen')
            g.issued.append(10**6)
        f = Rec(g)
        unpack_inplace(f, g.ga, n)
        unpack_inplace(f, g.x, n)
    return pre

def res_round(a, g, t, Y, yf, u, o):
    unpack(a, Y + 4 * t, yf, 4)
    for i in range(0, 8, 2):
        a(f'v_pk_mul_f32 v[{yf+i}:{yf+i+1}], v[{yf+i}:{yf+i+1}], v[{g.ga+8*t+i}:{g.ga+8*t+i+1}]')
    for i in range(4):
        a(f'v_cvt_pk_bf16_f32 v{u+i}, v{yf+2*i}, v{yf+2*i+1}')
    unpack(a, u, yf, 4)
    for i in range(0, 8, 2):
        a(f'v_pk_add_f32 v[{yf+i}:{yf+i+1}], v[{yf+i}:{yf+i+1}], v[{g.x+8*t+i}:{g.x+8*t+i+1}]')
    for i in range(4):
        a(f'v_cvt_pk_bf16_f32 v{o+i}, v{yf+2*i}, v{yf+2*i+1}')

def res_epi(osrd):
    def epi(a, c, g):
        SB = g.SB
        n = 2 * g.NB
        al = acc_list(g, 0)
        for i in range(n):
            a(f'v_cvt_pk_bf16_f32 v{SB+i}, v{al[2*i]}, v{al[2*i+1]}')
        tr_write(a, g, 0, SB)
        Y = SB + 12
        tr_read(a, g, Y)
        T = SB + 24
        for t in range(g.nt):
            a(f's_waitcnt lgkmcnt({g.nt-1-t})')
            o = T + 20 + 4 * t
            res_round(a, g, t, Y, T, T + 16, o)
            a(f'buffer_store_dwordx4 v[{o}:{o+3}], v{g.tg[t]}, s[{osrd}:{osrd+3}], 0 offen')
    return epi

def l2_pre1(a, c, g):
    res_pre0(2 * D * 2, 16)(a, c, g)
    R = g.R
    n = 4 * g.nt
    g.cb = R.alloc(2 * n, 4); g.ft = R.alloc()
    a('s_mov_b32 s61, 5120')
    for t in range(g.nt):
        a(f'buffer_load_dwordx4 v[{g.cb+n+4*t}:{g.cb+n+4*t+3}], v{g.tc[t]}, s[20:23], s61 offen')
        g.issued.append(10**6)
    f = Rec(g)
    unpack_inplace(f, g.cb, n)
    plus1_round(f, g.cb, 2 * n, g.ft)

def l2_epi(a, c, g):
    SB = g.SB
    n = 2 * g.NB
    al = acc_list(g, 0)
    for i in range(n):
        a(f'v_cvt_pk_bf16_f32 v{SB+i}, v{al[2*i]}, v{al[2*i+1]}')
    tr_write(a, g, 0, SB)
    Y = SB + 12
    tr_read(a, g, Y)
    T = SB + 24
    vs = g.tmp[0]
    a('s_lshl_b32 s57, s40, 11')
    a('s_add_u32 s57, s57, 49152')
    a(f'v_lshl_add_u32 v{vs}, v{g.vlane}, 3, s57')
    for t in range(g.nt):
        a(f's_waitcnt lgkmcnt({g.nt-1})')
        yf, gf, u = T, T + 8, T + 16
        o = T + 20 + 8 * t
        res_round(a, g, t, Y, yf, u, o)
        a(f'buffer_store_dwordx4 v[{o}:{o+3}], v{g.tg[t]}, s[24:27], 0 offen')
        unpack(a, o, yf, 4)
        for i in range(0, 8, 2):
            a(f'v_pk_mul_f32 v[{gf+i}:{gf+i+1}], v[{yf+i}:{yf+i+1}], v[{g.cb+8*t+i}:{g.cb+8*t+i+1}]')
        z = o + 4
        for i in range(4):
            a(f'v_cvt_pk_bf16_f32 v{z+i}, v{gf+2*i}, v{gf+2*i+1}')
        a(f'buffer_store_dwordx4 v[{z}:{z+3}], v{g.tg[t]}, s[28:31], 0 offen')
        st = T + 16
        a(f'v_pk_add_f32 v[{gf}:{gf+1}], v[{yf}:{yf+1}], v[{yf+2}:{yf+3}]')
        a(f'v_pk_add_f32 v[{gf+2}:{gf+3}], v[{yf+4}:{yf+5}], v[{yf+6}:{yf+7}]')
        a(f'v_pk_add_f32 v[{gf}:{gf+1}], v[{gf}:{gf+1}], v[{gf+2}:{gf+3}]')
        a(f'v_add_f32 v{st}, v{gf}, v{gf+1}')
        a(f'v_mul_f32 v{st+2}, 0x3e000000, v{st}')
        a(f'v_mov_b32 v{st+3}, v{st+2}')
        for i in range(0, 8, 2):
            a(f'v_pk_add_f32 v[{yf+i}:{yf+i+1}], v[{yf+i}:{yf+i+1}], v[{st+2}:{st+3}] neg_lo:[0,1] neg_hi:[0,1]')
        a(f'v_pk_mul_f32 v[{gf}:{gf+1}], v[{yf}:{yf+1}], v[{yf}:{yf+1}]')
        for i in range(2, 8, 2):
            a(f'v_pk_fma_f32 v[{gf}:{gf+1}], v[{yf+i}:{yf+i+1}], v[{yf+i}:{yf+i+1}], v[{gf}:{gf+1}]')
        a(f'v_add_f32 v{st+1}, v{gf}, v{gf+1}')
        a(f'ds_write_b64 v{vs}, v[{st}:{st+1}] offset:{512*t}')
    a('s_waitcnt lgkmcnt(0)')
    vr = g.tmp[1]
    a(f'v_mul_u32_u24 v{vr}, 80, v{g.vi16}')
    a(f'v_add_u32 v{vr}, s57, v{vr}')
    E = SB
    for j in range(5):
        a(f'ds_read_b128 v[{E+4*j}:{E+4*j+3}], v{vr} offset:{16*j}')
    a('s_waitcnt lgkmcnt(0)')
    Sg, M, mu, d = SB + 20, SB + 21, SB + 22, SB + 23
    a(f'v_add_f32 v{Sg}, v{E}, v{E+2}')
    a(f'v_add_f32 v{M}, v{E+1}, v{E+3}')
    for j in range(2, 10):
        a(f'v_add_f32 v{Sg}, v{Sg}, v{E+2*j}')
        a(f'v_add_f32 v{M}, v{M}, v{E+2*j+1}')
    a(f'v_mul_f32 v{mu}, 0x3c4ccccd, v{Sg}')
    a(f'v_mov_b32 v{SB+24}, 0')
    for j in range(10):
        a(f'v_fma_f32 v{d}, v{E+2*j}, 0.125, -v{mu}') if False else None
        a(f'v_mul_f32 v{d}, 0x3e000000, v{E+2*j}')
        a(f'v_sub_f32 v{d}, v{d}, v{mu}')
        a(f'v_fmac_f32 v{SB+24}, v{d}, v{d}')
    a(f'v_mov_b32 v{d}, 0x41000000')
    a(f'v_fmac_f32 v{M}, v{d}, v{SB+24}')
    a(f'v_add_u32 v{vr}, s38, v{g.vi16}')
    a(f'v_lshlrev_b32 v{vr}, 6, v{vr}')
    a('s_lshl_b32 s57, s42, 3')
    a(f'v_add_u32 v{vr}, s57, v{vr}')
    a(f'v_cmp_gt_u32 vcc, 16, v{g.vlane}')
    a(f'v_mov_b32 v{d}, 0x7ffffff0')
    a('s_nop 1')
    a(f'v_cndmask_b32 v{vr}, v{d}, v{vr}, vcc')
    srd(a, 60, 4, WS_ST, S * 64)
    a(f'buffer_store_dwordx2 v[{Sg}:{Sg+1}], v{vr}, s[60:63], 0 offen')

class Lst:
    def __init__(self):
        self.l = []
    def __call__(self, s):
        self.l.append(s)

def l2_hpre(a, c, g):
    vl = g.vlane
    srd(a, 72, 4, WS_W1T, F * D * 2)
    srd(a, 76, 4, WS_UW, 2 * F * 4)
    a(f'v_lshlrev_b32 v20, 4, v{vl}')
    a('v_add_u32 v21, 1024, v20')
    a(f'v_cmp_gt_u32 vcc, 16, v{vl}')
    a('v_mov_b32 v22, 0x7ffffff0')
    a('s_nop 1')
    a('v_cndmask_b32 v21, v22, v21, vcc')
    a('s_mov_b32 s80, 5120')
    a('s_mov_b32 s81, 3840')
    CBr, SBr, Wr = 24, 32, 40
    a(f'buffer_load_dwordx4 v[{CBr}:{CBr+3}], v20, s[20:23], s80 offen')
    a(f'buffer_load_dwordx4 v[{CBr+4}:{CBr+7}], v21, s[20:23], s80 offen')
    a(f'buffer_load_dwordx4 v[{SBr}:{SBr+3}], v20, s[20:23], s81 offen')
    a(f'buffer_load_dwordx4 v[{SBr+4}:{SBr+7}], v21, s[20:23], s81 offen')
    a('s_mul_i32 s82, s2, 6')
    a('s_add_u32 s82, s82, s50')
    a('s_mul_i32 s83, s82, 1280')
    a(f'buffer_load_dwordx4 v[{Wr}:{Wr+3}], v20, s[72:75], s83 offen')
    a(f'buffer_load_dwordx4 v[{Wr+4}:{Wr+7}], v21, s[72:75], s83 offen')
    a('s_add_u32 s83, s83, 5120')
    a(f'buffer_load_dwordx4 v[{Wr+8}:{Wr+11}], v20, s[72:75], s83 offen')
    a(f'buffer_load_dwordx4 v[{Wr+12}:{Wr+15}], v21, s[72:75], s83 offen')

def l2_htail(c, g):
    vl = g.vlane
    CBr, SBr, Wr = 24, 32, 40
    CF, SF, WF, AC = 60, 76, 92, 108
    c0, c1, c2 = Lst(), Lst(), Lst()
    a = c0
    unpack(a, CBr, CF, 8)
    plus1_round(a, CF, 16, 23)
    unpack(a, SBr, SF, 8)
    a = c1
    for r in range(2):
        unpack(a, Wr + 8 * r, WF, 8)
        a(f'v_mul_f32 v{AC+2*r}, v{CF}, v{WF}')
        a(f'v_mul_f32 v{AC+2*r+1}, v{SF}, v{WF}')
        for i in range(1, 16):
            a(f'v_fmac_f32 v{AC+2*r}, v{CF+i}, v{WF+i}')
            a(f'v_fmac_f32 v{AC+2*r+1}, v{SF+i}, v{WF+i}')
    a('s_lshl_b32 s84, s50, 10')
    a(f's_add_u32 s84, s84, {g.XTRA}')
    a(f'v_lshl_add_u32 v20, v{vl}, 2, s84')
    for v in range(4):
        a(f'ds_write_b32 v20, v{AC+v} offset:{256*v}')
    a('s_waitcnt lgkmcnt(0)')
    a(f'v_and_b32 v21, 3, v{vl}')
    a('v_lshlrev_b32 v22, 8, v21')
    a('v_add_u32 v22, s84, v22')
    for j in range(16):
        a(f'ds_read_b128 v[{24+4*j}:{27+4*j}], v22 offset:{16*j}')
    a = c2
    a('s_waitcnt lgkmcnt(0)')
    for j in range(1, 64):
        a(f'v_add_f32 v24, v24, v{24+j}')
    a(f'v_and_b32 v20, 1, v{vl}')
    a('v_mul_u32_u24 v20, 6144, v20')
    a(f'v_lshrrev_b32 v21, 1, v{vl}')
    a('v_lshlrev_b32 v21, 2, v21')
    a('v_add_u32 v21, s82, v21')
    a('v_lshl_add_u32 v20, v21, 2, v20')
    a('s_cmp_lt_u32 s50, 2')
    a('s_cselect_b32 s85, 4, 2')
    a(f'v_cmp_gt_u32 vcc, s85, v{vl}')
    a('v_mov_b32 v22, 0x7ffffff0')
    a('s_nop 1')
    a('v_cndmask_b32 v20, v22, v20, vcc')
    a('buffer_store_dword v24, v20, s[76:79], 0 offen')
    return [c0.l, c1.l, c2.l]

def l2_setup(a, c):
    srd(a, 8, 4, WS_PQ, S * 2 * D * 2)
    srd(a, 12, 4, WS_CSH, D * 2 * D * 2)
    srd(a, 20, 4, WS_MOD, 6 * D * 2)
    srd(a, 24, 4, WS_X1, S * D * 2)
    srd(a, 16, 30, 0, S * D * 2)
    srd(a, 28, 4, WS_H2, S * D * 2)
    a('s_lshl_b32 s47, s41, 6')
    a('s_mov_b32 s39, s47')

L2 = dict(NWG=256, MPX=4, NT=8, WM=2, WK=2, NB=5, NST=10, BK=64, NBUF=4, lda=2 * D * 2, ldb=2 * D * 2, a_goff=D * 2, b_goff=D * 2,
          kargs=[(30, 'x')], setup=l2_setup, pre0=nop, pre1=l2_pre1, GAP=1, NPRE=3, epi=l2_epi, h_pre=l2_hpre, h_tail=l2_htail, h_final_barrier=2, lds_extra=4096, ka_bytes=2560, kb_bytes=2560, rot=(1, 3))

def l3_setup(a, c):
    srd(a, 8, 4, WS_H2, S * D * 2)
    srd(a, 12, 4, WS_W1T, F * D * 2)
    srd(a, 24, 4, WS_HH, S * F * 2)
    a('s_lshl_b32 s47, s41, 7')
    a('s_mov_b32 s39, s47')

def l3_pre1(a, c, g):
    row_sgpr(a, g)
    tr_setup(a, g, 's38', F * 2)

def l3_hpre(a, c, g):
    vl = g.vlane
    srd(a, 72, 4, WS_ST, S * 64)
    srd(a, 76, 4, WS_UW, 2 * F * 4)
    a('s_lshl_b32 s80, s50, 5')
    a('s_add_u32 s80, s80, s47')
    a(f'v_and_b32 v20, 31, v{vl}')
    a('v_add_u32 v20, s80, v20')
    a('v_lshlrev_b32 v20, 6, v20')
    for j in range(4):
        a(f'buffer_load_dwordx4 v[{24+4*j}:{27+4*j}], v20, s[72:75], 0 offen offset:{16*j}')
    a('s_lshl_b32 s81, s44, 2')
    a(f'v_lshl_add_u32 v21, v{vl}, 4, s81')
    a('s_mov_b32 s82, 6144')
    a('buffer_load_dwordx4 v[48:51], v21, s[76:79], 0 offen')
    a('buffer_load_dwordx4 v[52:55], v21, s[76:79], s82 offen')

def l3_htail(c, g):
    vl = g.vlane
    c0 = Lst()
    a = c0
    E = 24
    Sg, M, mu, d, q = 60, 61, 62, 63, 64
    a(f'v_add_f32 v{Sg}, v{E}, v{E+2}')
    a(f'v_add_f32 v{M}, v{E+1}, v{E+3}')
    for j in range(2, 8):
        a(f'v_add_f32 v{Sg}, v{Sg}, v{E+2*j}')
        a(f'v_add_f32 v{M}, v{M}, v{E+2*j+1}')
    a(f'v_mul_f32 v{mu}, 0x3acccccd, v{Sg}')
    a(f'v_mov_b32 v{q}, 0')
    for j in range(8):
        a(f'v_mul_f32 v{d}, 0x3c4ccccd, v{E+2*j}')
        a(f'v_sub_f32 v{d}, v{d}, v{mu}')
        a(f'v_fmac_f32 v{q}, v{d}, v{d}')
    a(f'v_mov_b32 v{d}, 0x42a00000')
    a(f'v_fmac_f32 v{M}, v{d}, v{q}')
    a(f'v_mul_f32 v{M}, 0x3acccccd, v{M}')
    a(f'v_cvt_pk_bf16_f32 v{d}, v{mu}, v{M}')
    a(f'v_lshlrev_b32 v67, 16, v{d}')
    a(f'v_and_b32 v{M}, {MASK}, v{d}')
    a(f'v_add_f32 v{M}, 0x3727c5ac, v{M}')
    a(f'v_cvt_pk_bf16_f32 v{M}, v{M}, v{M}')
    a(f'v_lshlrev_b32 v{M}, 16, v{M}')
    a(f'v_sqrt_f32 v{M}, v{M}')
    a('s_nop 0')
    a(f'v_cvt_pk_bf16_f32 v{M}, v{M}, v{M}')
    a(f'v_lshlrev_b32 v{M}, 16, v{M}')
    a(f'v_rcp_f32 v66, v{M}')
    a('s_nop 0')
    a('s_lshl_b32 s83, s50, 8')
    a(f's_add_u32 s83, s83, {g.XTRA}')
    a(f'v_and_b32 v20, 31, v{vl}')
    a('v_lshl_add_u32 v20, v20, 3, s83')
    a('ds_write_b64 v20, v[66:67]')
    a(f'v_lshlrev_b32 v21, 4, v{vl}')
    a(f'v_add_u32 v21, {g.XTRA + 1024}, v21')
    a('ds_write_b128 v21, v[48:51]')
    a('ds_write_b128 v21, v[52:55] offset:1024')
    return [c0.l]

def l3_epi(a, c, g):
    SB = g.SB
    n = 2 * g.NB
    vt0, vt1, vt2 = g.tmp
    a('s_lshl_b32 s57, s45, 8')
    a(f's_add_u32 s57, s57, {g.XTRA}')
    a(f'v_lshl_add_u32 v{vt0}, v{g.vi16}, 3, s57')
    a(f'v_lshlrev_b32 v{vt1}, 4, v{g.vg}')
    a(f'v_add_u32 v{vt1}, {g.XTRA + 1024}, v{vt1}')
    STt = SB + 64
    a(f'ds_read_b64 v[{STt}:{STt+1}], v{vt0}')
    a(f'ds_read_b64 v[{STt+2}:{STt+3}], v{vt0} offset:128')
    U, W = SB, SB + 24
    for nb in range(g.NB):
        a(f'ds_read_b128 v[{U+4*nb}:{U+4*nb+3}], v{vt1} offset:{64*nb}')
        a(f'ds_read_b128 v[{W+4*nb}:{W+4*nb+3}], v{vt1} offset:{1024+64*nb}')
    a('s_waitcnt lgkmcnt(0)')
    for rb in g.rbs:
        al = acc_list(g, rb)
        for i, r in enumerate(al):
            a(f'v_fma_f32 v{r}, -v{STt+2*rb+1}, v{U+i}, v{r}')
            a(f'v_fma_f32 v{r}, v{STt+2*rb}, v{r}, v{W+i}')
            a(f'v_max_f32 v{r}, 0, v{r}')
        oo = SB + 48 + 12 * rb
        oo = SB + 68 if rb else SB + 48
        for i in range(n):
            a(f'v_cvt_pk_bf16_f32 v{oo+i}, v{al[2*i]}, v{al[2*i+1]}')
        tr_write(a, g, rb, oo)
    tr_read(a, g, SB)
    for t_ in range(g.nt):
        a(f's_waitcnt lgkmcnt({g.nt-1-t_})')
        a(f'buffer_store_dwordx4 v[{SB+4*t_}:{SB+4*t_+3}], v{g.tg[t_]}, s[24:27], 0 offen')

L3 = dict(NWG=256, MPX=2, NT=16, WM=4, WK=1, NB=6, NST=10, BK=64, NBUF=5, lda=D * 2, ldb=D * 2, a_goff=0, b_goff=0,
          kargs=[], setup=l3_setup, pre0=nop, pre1=l3_pre1, GAP=1, NPRE=3, epi=l3_epi, h_pre=l3_hpre, h_tail=l3_htail, h_final_barrier=1, lds_extra=4096, ka_bytes=1280, kb_bytes=1280, rot=(1, 5))

def l4_setup(a, c):
    srd(a, 8, 4, WS_HH, S * F * 2)
    srd(a, 12, 4, WS_W2T, F * D * 2)
    srd(a, 20, 4, WS_MOD, 6 * D * 2)
    srd(a, 24, 30, 0, S * D * 2)
    srd(a, 16, 4, WS_X1, S * D * 2)
    a('s_lshl_b32 s47, s41, 6')
    a('s_mov_b32 s39, s47')

L4 = dict(NWG=256, MPX=4, NT=8, WM=2, WK=2, NB=5, NST=12, BK=64, NBUF=4, lda=F * 2, ldb=F * 2, a_goff=F, b_goff=F,
          kargs=[(30, 'out')], setup=l4_setup, pre0=nop, pre1=res_pre0(5 * D * 2, 16), GAP=1, NPRE=3, epi=res_epi(24), helper=False, ka_bytes=3072, kb_bytes=3072, rot=(1, 3))

def main(out, stamp=False):
    for L in (L1, L2, L3, L4):
        L['stamp'] = stamp
        L['rot'] = None
        L['fine'] = int(stamp) if stamp else 0
    hdr = open('adaLN_cond__spectral_fnet__dense_activation_relu__prompt.s.ref').read().split('\n')
    hdr = [l for l in hdr if l.startswith(';') and '@launch' not in l and 'Override' not in l and 'grid=ceil' not in l]
    a = Asm()
    descs = []
    launches = []
    nv = gen_k0(a, 'k0_kernel'); descs.append(kernel_desc('k0_kernel', nv)); launches.append(('k0_kernel', K0_GRID, K0_LDS))
    nv, lds = gen_gemm(a, 'l1_kernel', L1); descs.append(kernel_desc('l1_kernel', nv, 102)); launches.append(('l1_kernel', 256, lds))
    nv, lds = gen_gemm(a, 'l2_kernel', L2); descs.append(kernel_desc('l2_kernel', nv, 102)); launches.append(('l2_kernel', 256, lds))
    nv, lds = gen_gemm(a, 'l3_kernel', L3); descs.append(kernel_desc('l3_kernel', nv, 102)); launches.append(('l3_kernel', 256, lds))
    nv, lds = gen_gemm(a, 'l4_kernel', L4); descs.append(kernel_desc('l4_kernel', nv, 102)); launches.append(('l4_kernel', 256, lds))
    txt = '\n'.join(hdr) + '\n'
    for (k, g, l) in launches:
        blk = 256 if k[0] == 'k' else 512
        txt += f'; @launch kernel={k} grid=({g},1,1) block=({blk},1,1) lds={l}\n'
    txt += '.amdgcn_target "amdgcn-amd-amdhsa--gfx950"\n.text\n'
    txt += a.text()
    txt += '.section .rodata,"a"\n'
    txt += ''.join(descs)
    open(out, 'w').write(txt)

if __name__ == '__main__':
    main(sys.argv[1] if len(sys.argv) > 1 else 'adaLN_cond__spectral_fnet__dense_activation_relu__prompt.s', stamp=(sys.argv[2] if len(sys.argv) > 2 else False))
```

```python
from common import *

class G:
    pass

MASK = '0xffff0000'

def unpack(a, src, dst, n):
    for i in range(n):
        a(f'v_lshlrev_b32 v{dst+2*i}, 16, v{src+i}')
        a(f'v_and_b32 v{dst+2*i+1}, {MASK}, v{src+i}')

def gen_gemm(a, name, c):
    NB, WM, WK, NST, BK, NBUF = c['NB'], c['WM'], c['WK'], c['NST'], c['BK'], c['NBUF']
    BM, BN = WM * 32, NB * 16
    RB = BK * 2
    CPR = RB // 16
    RPI = 64 // CPR
    KS = BK // 32
    nA = WK * BM // RPI
    nB = WK * BN // RPI
    assert nA % 4 == 0 and nB % 2 == 0
    padB = nB % 4 != 0
    cntA, cntB = BM // RPI, BN // RPI
    BUFSZ = WK * (BM + BN) * RB
    AOFF = lambda gam: gam * BM * RB
    BOFF = lambda gam: WK * BM * RB + gam * BN * RB
    XCH = 0
    lds_total = NBUF * BUFSZ + c.get('lds_extra', 0)
    XTRA = NBUF * BUFSZ
    TS = BN * 2 + 16
    assert TS % 16 == 0
    end = name + '_end'
    kernel_header(a, name)
    a(f's_cmp_ge_u32 s2, {c["NWG"]}')
    a(f's_cbranch_scc1 {end}')
    if c.get('stamp'):
        a('s_memtime s[90:91]')
        a('s_memrealtime s[92:93]')
        a(f's_load_dwordx2 s[98:99], s[0:1], {KA["dbg"]}')
    a(f's_load_dwordx2 s[4:5], s[0:1], {KA["ws"]}')
    for (reg, slot) in c['kargs']:
        a(f's_load_dwordx2 s[{reg}:{reg+1}], s[0:1], {KA[slot]}')
    R = Regs(1)
    vlane = R.alloc(); vi16 = R.alloc(); vg = R.alloc(); vt0 = R.alloc(); vt1 = R.alloc(); vt2 = R.alloc()
    a(f'v_lshrrev_b32 v{vt0}, 6, v0')
    a(f'v_and_b32 v{vlane}, 63, v0')
    a(f'v_and_b32 v{vi16}, 15, v0')
    a(f'v_readfirstlane_b32 s40, v{vt0}')
    a(f'v_lshrrev_b32 v{vg}, 4, v{vlane}')
    ntl = c['NT'].bit_length() - 1
    a('s_and_b32 s41, s2, 7')
    a('s_lshr_b32 s42, s2, 3')
    a(f's_lshr_b32 s43, s42, {ntl}')
    a(f's_mul_i32 s41, s41, {c["MPX"]}')
    a('s_add_u32 s41, s41, s43')
    a(f's_and_b32 s42, s42, {c["NT"]-1}')
    a(f's_mul_i32 s44, s42, {BN}')
    if WK == 2:
        a(f's_and_b32 s45, s40, {WM-1}')
        a(f's_lshr_b32 s46, s40, {WM.bit_length()-1}')
    else:
        a('s_mov_b32 s45, s40')
        a('s_mov_b32 s46, 0')
    c['setup_m'](a, c)
    a('s_cmp_ge_u32 s40, 4')
    a(f's_cbranch_scc1 {name}_prod')
    a('s_waitcnt lgkmcnt(0)')
    c['setup_ab'](a, c)
    c['setup'](a, c)

    g = G()
    g.R, g.vi16, g.vg, g.vlane = R, vi16, vg, vlane
    g.tmp = (vt0, vt1, vt2)
    g.NB, g.WK, g.BN, g.TS = NB, WK, BN, TS
    g.XTRA = XTRA

    g.issued = []
    g.fill = []
    c['pre0'](a, c, g)
    vda = [[R.alloc() for ks in range(KS)] for b in range(NBUF)]
    vdb = [[R.alloc() for ks in range(KS)] for b in range(NBUF)]
    if BK == 128:
        a(f'v_xor_b32 v{vt0}, v{vg}, v{vi16}')
    else:
        a(f'v_lshrrev_b32 v{vt0}, 1, v{vi16}')
        a(f'v_xor_b32 v{vt0}, v{vg}, v{vt0}')
    a(f's_mul_i32 s53, s46, {BM*RB}')
    a(f's_mul_i32 s56, s45, {32*RB}')
    a('s_add_u32 s53, s53, s56')
    a(f's_mul_i32 s56, s46, {BN*RB}')
    a(f's_add_u32 s56, s56, {WK*BM*RB}')
    lrb = RB.bit_length() - 1
    for ks in range(KS):
        a(f'v_xor_b32 v{vt1}, {ks<<2}, v{vt0}')
        a(f'v_lshlrev_b32 v{vt1}, 4, v{vt1}')
        a(f'v_lshl_add_u32 v{vt1}, v{vi16}, {lrb}, v{vt1}')
        a(f'v_add_u32 v{vda[0][ks]}, s53, v{vt1}')
        a(f'v_add_u32 v{vdb[0][ks]}, s56, v{vt1}')
        for b in range(1, NBUF):
            a(f'v_add_u32 v{vda[b][ks]}, {b*BUFSZ}, v{vda[0][ks]}')
            a(f'v_add_u32 v{vdb[b][ks]}, {b*BUFSZ}, v{vdb[0][ks]}')
    SBASE = R.alloc(max(84, 8 * (NB + 2)), 4)
    Af = [[SBASE + 8 * s + 4 * rb for rb in range(2)] for s in range(2)]
    Bf = [[SBASE + 16 + 4 * NB * s + 4 * nb for nb in range(NB)] for s in range(2)]
    acc = [[R.alloc(4, 4) for nb in range(NB)] for rb in range(2)]
    g.acc = acc
    if c.get('rowsum'):
        rs = [R.alloc(4, 4) for rb in range(2)]
        ones = R.alloc(4, 4)
        g.rs = rs
        for q in range(4):
            a(f'v_mov_b32 v{ones+q}, 0x3f803f80')
        for rb in range(2):
            for q in range(4):
                a(f'v_mov_b32 v{rs[rb]+q}, 0')
    for rb in range(2):
        for nb in range(NB):
            for q in range(4):
                a(f'v_mov_b32 v{acc[rb][nb]+q}, 0')
    g.SB = SBASE
    c['pre1'](a, c, g)

    rq = []
    def read_f(st, ks, setid, defer=False):
        b = st % NBUF
        l = []
        r = Af[setid][0]
        l.append(f'ds_read_b128 v[{r}:{r+3}], v{vda[b][ks]} offset:0')
        for nb in range(NB):
            r = Bf[setid][nb]
            l.append(f'ds_read_b128 v[{r}:{r+3}], v{vdb[b][ks]} offset:{nb*16*RB}')
        r = Af[setid][1]
        l.append(f'ds_read_b128 v[{r}:{r+3}], v{vda[b][ks]} offset:{16*RB}')
        if defer:
            rq.extend(l)
        else:
            for x in l:
                a(x)
    GAP = c.get('GAP', 3)
    cnt = [0]
    g.fill_ok = False
    FPG = c.get('FPG', 2)
    def mf(line):
        a(line)
        cnt[0] += 1
        if rq:
            a(rq.pop(0))
        elif g.fill_ok:
            for _ in range(FPG):
                if g.fill:
                    a(g.fill.pop(0))
    def mfmas(setid):
        for rb in range(2):
            ar = Af[setid][rb]
            for nb in range(NB):
                br = Bf[setid][nb]
                d = acc[rb][nb]
                mf(f'v_mfma_f32_16x16x32_bf16 v[{d}:{d+3}], v[{br}:{br+3}], v[{ar}:{ar+3}], v[{d}:{d+3}]')
            if c.get('rowsum'):
                d = rs[rb]
                mf(f'v_mfma_f32_16x16x32_bf16 v[{d}:{d+3}], v[{ones}:{ones+3}], v[{ar}:{ar+3}], v[{d}:{d+3}]')
    NF = NB + 2
    fine = c.get('fine')
    if fine:
        vst = R.alloc()
        a(f'v_mov_b32 v{vst}, 0')
        stn = [0]
        def fstamp():
            a('s_memtime s[86:87]')
            a('s_waitcnt lgkmcnt(0)')
            a('s_sub_u32 s86, s86, s90')
            a(f'v_writelane_b32 v{vst}, s86, {stn[0]}')
            stn[0] += 1
    else:
        def fstamp():
            pass
    fstamp()
    a('s_barrier')
    read_f(0, 0, 0)
    par = 0
    for st in range(NST):
        for ks in range(KS - 1):
            a('s_waitcnt lgkmcnt(0)')
            read_f(st, ks + 1, par ^ 1, defer=True)
            mfmas(par)
            assert not rq
            par ^= 1
        if st + 1 < NST:
            a('s_waitcnt lgkmcnt(0)')
            fstamp()
            a('s_barrier')
            if st == 1:
                a('s_waitcnt vmcnt(0)')
                g.fill_ok = True
            read_f(st + 1, 0, par ^ 1, defer=True)
            mfmas(par)
            assert not rq
            par ^= 1
        else:
            a('s_waitcnt lgkmcnt(0)')
            mfmas(par)
    for l in g.fill:
        a(l)
    g.fill = []
    a('s_nop 7')
    a('s_nop 7')
    if WK == 2:
        a('s_barrier')
        lk0, lk1 = a.newlabel(name), a.newlabel(name)
        a(f'v_lshlrev_b32 v{vt0}, 4, v{vlane}')
        a(f's_mul_i32 s57, s40, {NB*1024}')
        a(f's_add_u32 s57, s57, {XCH}')
        a(f'v_add_u32 v{vt1}, s57, v{vt0}')
        a(f's_xor_b32 s57, s40, {WM}')
        a(f's_mul_i32 s57, s57, {NB*1024}')
        a(f's_add_u32 s57, s57, {XCH}')
        a(f'v_add_u32 v{vt2}, s57, v{vt0}')
        T = Bf[0]
        a('s_cmp_eq_u32 s46, 0')
        a(f's_cbranch_scc0 {lk1}')
        for nb in range(NB):
            d = acc[1][nb]
            a(f'ds_write_b128 v{vt1}, v[{d}:{d+3}] offset:{nb*1024}')
        a('s_waitcnt lgkmcnt(0)')
        a('s_barrier')
        for nb in range(NB):
            a(f'ds_read_b128 v[{T[nb]}:{T[nb]+3}], v{vt2} offset:{nb*1024}')
        a('s_waitcnt lgkmcnt(0)')
        for nb in range(NB):
            for q in range(4):
                a(f'v_add_f32 v{acc[0][nb]+q}, v{acc[0][nb]+q}, v{T[nb]+q}')
        a(f's_branch {lk0}')
        a.label(lk1)
        for nb in range(NB):
            d = acc[0][nb]
            a(f'ds_write_b128 v{vt1}, v[{d}:{d+3}] offset:{nb*1024}')
        a('s_waitcnt lgkmcnt(0)')
        a('s_barrier')
        for nb in range(NB):
            a(f'ds_read_b128 v[{T[nb]}:{T[nb]+3}], v{vt2} offset:{nb*1024}')
        a('s_waitcnt lgkmcnt(0)')
        for nb in range(NB):
            for q in range(4):
                a(f'v_add_f32 v{acc[0][nb]+q}, v{acc[1][nb]+q}, v{T[nb]+q}')
        a.label(lk0)
        g.rbs = [0]
    else:
        a('s_barrier')
        g.rbs = [0, 1]
    fstamp()
    c['epi'](a, c, g)
    if fine:
        a('s_waitcnt vmcnt(0)')
        fstamp()
        a('s_mov_b32 s60, s98')
        a('s_mov_b32 s61, s99')
        a('s_mov_b32 s62, 256')
        a('s_mov_b32 s63, 0x00020000')
        a('s_mov_b64 exec, -1')
        a(f'v_cmp_gt_u32 vcc, 32, v{vlane}')
        a(f'v_lshlrev_b32 v1, 2, v{vlane}')
        a('v_mov_b32 v2, 0x7ffffff0')
        a('s_nop 1')
        a('v_cndmask_b32 v1, v2, v1, vcc')
        a(f's_cmp_eq_u32 s2, {fine-1}')
        a(f's_cbranch_scc0 {end}')
        a('s_cmp_eq_u32 s40, 0')
        a(f's_cbranch_scc0 {end}')
        a(f'buffer_store_dword v{vst}, v1, s[60:63], 0 offen')
    elif c.get('stamp'):
        a('s_waitcnt vmcnt(0)')
        a('s_memtime s[94:95]')
        a('s_memrealtime s[96:97]')
        a('s_waitcnt lgkmcnt(0)')
        a('s_sub_u32 s94, s94, s90')
        a('s_sub_u32 s96, s96, s92')
        a('s_mov_b32 s60, s98')
        a('s_mov_b32 s61, s99')
        a('s_mov_b32 s62, 256')
        a('s_mov_b32 s63, 0x00020000')
        a('s_and_b32 s58, s2, 31')
        a('s_lshl_b32 s58, s58, 3')
        a('s_mov_b64 exec, -1')
        a('v_mov_b32 v1, s58')
        a('v_mov_b32 v2, s94')
        a('v_mov_b32 v3, s96')
        a('s_cmp_lt_u32 s2, 32')
        a(f's_cbranch_scc0 {end}')
        a('v_cmp_eq_u32 vcc, 0, v0')
        a('s_and_saveexec_b64 s[58:59], vcc')
        a(f's_cbranch_execz {end}')
        a('buffer_store_dwordx2 v[2:3], v1, s[60:63], 0 offen')
    a.label(end)
    a('s_endpgm')
    NP = 4
    a.label(f'{name}_prod')
    a('s_sub_u32 s50, s40, 4')
    lc = CPR.bit_length() - 1
    a(f'v_lshrrev_b32 v10, {lc}, v{vlane}')
    a(f'v_and_b32 v11, {CPR-1}, v{vlane}')
    if BK == 128:
        a('s_lshl_b32 s51, s50, 2')
        a('v_add_u32 v12, s51, v10')
    else:
        a('s_and_b32 s51, s50, 1')
        a('s_lshl_b32 s51, s51, 2')
        a('v_lshrrev_b32 v12, 1, v10')
        a('v_add_u32 v12, s51, v12')
    a('v_xor_b32 v12, v11, v12')
    a('v_lshlrev_b32 v12, 4, v12')
    a(f'v_mul_u32_u24 v14, {c["lda"]}, v10')
    a('v_add_u32 v14, v14, v12')
    a(f'v_mul_u32_u24 v15, {c["ldb"]}, v10')
    a('v_add_u32 v15, v15, v12')
    a('s_lshl_b32 s54, s50, 10')
    a(f's_mul_i32 s52, s50, {RPI}')
    a('s_add_u32 s53, s52, s47')
    a(f's_mul_i32 s53, s53, {c["lda"]}')
    a('s_add_u32 s56, s52, s44')
    a(f's_mul_i32 s56, s56, {c["ldb"]}')
    special = {}
    for q in range(nB // NP):
        ib = NP * q
        if WK == 2 and ib < cntB < ib + NP:
            sreg = 64 + len(special)
            special[q] = sreg
            a(f's_cmp_ge_u32 s50, {cntB-ib}')
            a(f's_mov_b32 s57, {ib*RPI*c["ldb"]}')
            a(f's_cselect_b32 s{sreg}, {((ib-cntB)*RPI*c["ldb"] + c["b_goff"]) & 0xffffffff}, s57')
            a(f's_add_u32 s{sreg}, s{sreg}, s56')
    NSL = (nA + nB + NP - 1) // NP
    if padB:
        assert WK == 1
        a('s_cmp_ge_u32 s50, 2')
        a(f's_cselect_b32 s66, {(-2*RPI*c["ldb"]) & 0xffffffff}, 0')
        a('s_cselect_b32 s67, 2048, 0')
        a('s_add_u32 s66, s66, s56')
        a('s_sub_u32 s67, s54, s67')
    rot = c.get('rot')
    if rot:
        a(f's_mul_i32 s48, s42, {rot[0]}')
        a(f's_and_b32 s49, s41, {c["MPX"]-1}')
        a(f's_mul_i32 s49, s49, {rot[1]}')
        a('s_add_u32 s48, s48, s49')
        for k in (4, 2, 1):
            a(f's_cmp_ge_u32 s48, {k*NST}')
            a(f's_cselect_b32 s49, {k*NST}, 0')
            a('s_sub_u32 s48, s48, s49')
        a(f's_mul_i32 s48, s48, {RB}')
        a('s_mov_b32 s88, s53')
        a('s_mov_b32 s89, s56')
        for i_, sr_ in enumerate(special.values()):
            a(f's_mov_b32 s{68+i_}, s{sr_}')
    def p_issue(st_):
        b = st_ % NBUF
        st = st_
        if rot:
            st = 0
            a(f's_add_u32 s49, s48, {st_*RB}')
            a(f's_cmp_ge_u32 s49, {NST*RB}')
            a(f's_cselect_b32 s55, {NST*RB}, 0')
            a('s_sub_u32 s49, s49, s55')
            a('s_add_u32 s53, s88, s49')
            a('s_add_u32 s56, s89, s49')
            for i_, sr_ in enumerate(special.values()):
                a(f's_add_u32 s{sr_}, s{68+i_}, s49')
        for q in range(NSL):
            io = NP * q
            if padB and q == NSL - 1:
                ib = io - nA
                a(f's_add_u32 m0, s67, {b*BUFSZ + io*1024}')
                a(f's_add_u32 s55, s66, {ib*RPI*c["ldb"] + st*RB}')
                a('buffer_load_dwordx4 v15, s[12:15], s55 offen lds')
                continue
            a(f's_add_u32 m0, s54, {b*BUFSZ + io*1024}')
            if io < nA:
                gam, loc0 = io // cntA, io % cntA
                a(f's_add_u32 s55, s53, {loc0*RPI*c["lda"] + gam*c["a_goff"] + st*RB}')
                a('buffer_load_dwordx4 v14, s[8:11], s55 offen' + (' nt' if c.get('a_nt') else '') + ' lds')
            else:
                ib = io - nA
                qb = ib // NP
                if qb in special:
                    a(f's_add_u32 s55, s{special[qb]}, {st*RB}')
                else:
                    gam, loc0 = ib // cntB, ib % cntB
                    a(f's_add_u32 s55, s56, {loc0*RPI*c["ldb"] + gam*c["b_goff"] + st*RB}')
                a('buffer_load_dwordx4 v15, s[12:15], s55 offen lds')
    chunks = []
    a('s_waitcnt lgkmcnt(0)')
    c['setup_ab'](a, c)
    NH = 0
    npre = min(NBUF, NST)
    pst = [32]
    if fine:
        a('v_mov_b32 v9, 0')
    def pstamp():
        if fine and pst[0] < 40:
            a('s_memtime s[86:87]')
            a('s_waitcnt lgkmcnt(0)')
            a('s_sub_u32 s86, s86, s90')
            a(f'v_writelane_b32 v9, s86, {pst[0]}')
            pst[0] += 1
    PRE0 = c.get('PRE0', 2)
    PER = c.get('PER', 2)
    nxt = [0]
    order = []
    def pwait(st):
        n = 0
        for t in reversed(order):
            if t <= st:
                break
            n += 1
        assert n <= 63
        a(f's_waitcnt vmcnt({n})')
    def issue_upto(limit, maxn):
        n = 0
        while nxt[0] < NST and nxt[0] <= limit and n < maxn:
            p_issue(nxt[0])
            order.extend([nxt[0]] * NSL)
            nxt[0] += 1
            n += 1
            pstamp()
    pstamp()
    issue_upto(NBUF - 1, PRE0)
    pwait(0)
    pstamp()
    if fine:
        lb = a.newlabel(name)
        a('s_mov_b32 s60, s98')
        a('s_mov_b32 s61, s99')
        a('s_mov_b32 s62, 256')
        a('s_mov_b32 s63, 0x00020000')
        a(f'v_lshlrev_b32 v8, 2, v{vlane}')
        a(f'v_cmp_lt_u32 vcc, 31, v{vlane}')
        a('v_mov_b32 v7, 0x7ffffff0')
        a('s_nop 1')
        a('v_cndmask_b32 v8, v7, v8, vcc')
        a(f's_cmp_eq_u32 s2, {fine-1}')
        a(f's_cbranch_scc0 {lb}')
        a('s_cmp_eq_u32 s40, 4')
        a(f's_cbranch_scc0 {lb}')
        a('buffer_store_dword v9, v8, s[60:63], 0 offen')
        a('s_waitcnt vmcnt(0)')
        a.label(lb)
    a('s_barrier')
    fine_save = fine
    fine = 0
    issue_upto(NBUF - 1, PER)
    if c.get('h_pre'):
        c['setup'](a, c)
        NH = c['h_pre'](a, c, g)
        order.extend([10**6] * NH)
        flat = [l for ch in c['h_tail'](c, g) for l in ch]
        CS = c.get('h_chunk', 24)
        chunks = [flat[i:i + CS] for i in range(0, len(flat), CS)]
        assert c['h_start'] >= nxt[0]
    for st in range(NST - 1):
        if nxt[0] <= st + 1:
            issue_upto(st + 1, NST)
        pwait(st + 1)
        a('s_barrier')
        if nxt[0] < NST:
            issue_upto(st + NBUF, PER)
        if chunks and st + 1 >= c['h_start']:
            for l in chunks.pop(0):
                a(l)
    for ch in chunks:
        for l in ch:
            a(l)
    if c.get('h_final_barrier'):
        a('s_waitcnt lgkmcnt(0)')
        for _ in range(c['h_final_barrier']):
            a('s_barrier')
    a('s_endpgm')
    return R.n, lds_total

def tr_setup(a, g, row_sgpr, ldo):
    R = g.R
    CH = g.BN // 8
    nrows = 16 * len_rbs(g)
    tot = nrows * CH
    g.nt = (tot + 63) // 64
    g.tot = tot
    g.tl = [R.alloc() for _ in range(g.nt)]
    g.tg = [R.alloc() for _ in range(g.nt)]
    g.tc = [R.alloc() for _ in range(g.nt)]
    vt0, vt1, vt2 = g.tmp
    magic = {10: 6554, 12: 5462}[CH]
    a(f's_mul_i32 s57, s40, {nrows*g.TS}')
    if g.WK == 2:
        a('s_add_u32 s57, s57, 32768')
    a('s_lshl_b32 s58, s44, 1')
    a(f's_mov_b32 s59, {ldo}')
    for t in range(g.nt):
        a(f'v_add_u32 v{vt0}, {64*t}, v{g.vlane}')
        a(f'v_mul_u32_u24 v{vt1}, {magic}, v{vt0}')
        a(f'v_lshrrev_b32 v{vt1}, 16, v{vt1}')
        a(f'v_mul_u32_u24 v{vt2}, {CH}, v{vt1}')
        a(f'v_sub_u32 v{vt2}, v{vt0}, v{vt2}')
        a(f'v_lshlrev_b32 v{vt2}, 4, v{vt2}')
        a(f'v_mul_u32_u24 v{g.tl[t]}, {g.TS}, v{vt1}')
        a(f'v_add3_u32 v{g.tl[t]}, v{g.tl[t]}, v{vt2}, s57')
        a(f'v_add_u32 v{g.tc[t]}, s58, v{vt2}')
        a(f'v_add_u32 v{vt1}, {row_sgpr}, v{vt1}')
        a(f'v_mul_lo_u32 v{g.tg[t]}, v{vt1}, s59')
        a(f'v_add_u32 v{g.tg[t]}, v{g.tg[t]}, v{g.tc[t]}')
        if 64 * (t + 1) > tot:
            a(f'v_cmp_gt_u32 vcc, {tot}, v{vt0}')
            a(f'v_mov_b32 v{vt1}, 0x7ffffff0')
            a('s_nop 1')
            a(f'v_cndmask_b32 v{g.tg[t]}, v{vt1}, v{g.tg[t]}, vcc')
            a(f'v_cndmask_b32 v{g.tl[t]}, 0, v{g.tl[t]}, vcc')
    g.tw = R.alloc()
    a(f'v_mul_u32_u24 v{g.tw}, {g.TS}, v{g.vi16}')
    a(f'v_lshl_add_u32 v{g.tw}, v{g.vg}, 3, v{g.tw}')
    a(f'v_add_u32 v{g.tw}, s57, v{g.tw}')

def len_rbs(g):
    return 1 if g.WK == 2 else 2

def tr_write(a, g, rbi, pk):
    for nb in range(g.NB):
        a(f'ds_write_b64 v{g.tw}, v[{pk+2*nb}:{pk+2*nb+1}] offset:{rbi*16*g.TS + nb*32}')

def tr_read(a, g, dst):
    a('s_waitcnt lgkmcnt(0)')
    for t in range(g.nt):
        a(f'ds_read_b128 v[{dst+4*t}:{dst+4*t+3}], v{g.tl[t]}')
```

```python
from common import *

K0_NMOD = 120
K0_NLN = 64
K0_NTR = 240
K0_NCP = 80
import os
K0_PFL = int(os.environ.get('PFL', '32'))
K0_NPF = 2048 * K0_PFL // 256
K0_NT = os.environ.get('K0NT', '0') == '1'
K0_GRID = K0_NMOD + K0_NLN + 2 * K0_NTR + K0_NCP + K0_NPF
K0_LDS = 40960

def dpp_allreduce16(a, v, tmp):
    for r in (8, 4, 2, 1):
        a('s_nop 1')
        a(f'v_add_f32_dpp v{tmp}, v{v}, v{v} row_ror:{r} row_mask:0xf bank_mask:0xf')
        a(f'v_mov_b32 v{v}, v{tmp}')

def gen_k0(a, name):
    l0 = len(a.lines)
    kernel_header(a, name)
    a(f's_cmp_ge_u32 s2, {K0_GRID}')
    a('s_cbranch_scc1 k0_end')
    a(f's_load_dwordx2 s[4:5], s[0:1], {KA["ws"]}')
    a(f's_cmp_lt_u32 s2, {K0_NMOD}')
    a('s_cbranch_scc1 k0_mod')
    a(f's_cmp_lt_u32 s2, {K0_NMOD+K0_NLN}')
    a('s_cbranch_scc1 k0_ln')
    a(f's_cmp_ge_u32 s2, {K0_NMOD+K0_NLN+2*K0_NTR+K0_NCP}')
    a('s_cbranch_scc1 k0_pf')
    a(f's_cmp_ge_u32 s2, {K0_NMOD+K0_NLN+2*K0_NTR}')
    a('s_cbranch_scc1 k0_cp')
    a(f's_load_dwordx2 s[6:7], s[0:1], {KA["w1"]}')
    a(f's_load_dwordx2 s[8:9], s[0:1], {KA["w2"]}')
    a(f's_sub_u32 s3, s2, {K0_NMOD+K0_NLN}')
    a('s_waitcnt lgkmcnt(0)')
    a(f's_cmp_lt_u32 s3, {K0_NTR}')
    a('s_cbranch_scc1 k0_tr_w1')
    a(f's_sub_u32 s3, s3, {K0_NTR}')
    srd(a, 12, 8, 0, F * D * 2)
    srd(a, 16, 4, WS_W2T, F * D * 2)
    a('s_mul_i32 s20, s3, 6554')
    a('s_lshr_b32 s20, s20, 16')
    a('s_mul_i32 s21, s20, 10')
    a('s_sub_u32 s21, s3, s21')
    a(f's_mov_b32 s22, {D*2}')
    a(f's_mov_b32 s23, {F*2}')
    a('s_branch k0_tr_go')
    a.label('k0_tr_w1')
    srd(a, 12, 6, 0, F * D * 2)
    srd(a, 16, 4, WS_W1T, F * D * 2)
    a('s_mul_i32 s20, s3, 2731')
    a('s_lshr_b32 s20, s20, 16')
    a('s_mul_i32 s21, s20, 24')
    a('s_sub_u32 s21, s3, s21')
    a(f's_mov_b32 s22, {F*2}')
    a(f's_mov_b32 s23, {D*2}')
    a.label('k0_tr_go')
    a('v_lshrrev_b32 v1, 3, v0')
    a('v_and_b32 v2, 7, v0')
    a('s_lshl_b32 s24, s20, 6')
    a('v_add_u32 v3, s24, v1')
    a('v_mul_lo_u32 v3, v3, s22')
    a('s_lshl_b32 s25, s21, 7')
    a('v_lshlrev_b32 v4, 4, v2')
    a('v_add3_u32 v3, v3, v4, s25')
    a('s_lshl_b32 s26, s22, 5')
    a('buffer_load_dwordx4 v[8:11], v3, s[12:15], 0 offen')
    a('buffer_load_dwordx4 v[12:15], v3, s[12:15], s26 offen')
    a('v_mul_u32_u24 v5, 1056, v2')
    a('v_lshl_add_u32 v5, v1, 1, v5')
    a('s_waitcnt vmcnt(1)')
    for p in range(2):
        if p == 1:
            a('s_waitcnt vmcnt(0)')
        for q in range(4):
            reg = 8 + 4 * p + q
            a(f'ds_write_b16 v5, v{reg} offset:{(2*q)*132 + p*64}')
            a(f'ds_write_b16_d16_hi v5, v{reg} offset:{(2*q+1)*132 + p*64}')
    a('s_waitcnt lgkmcnt(0)')
    a('s_barrier')
    a('v_lshrrev_b32 v1, 2, v0')
    a('v_and_b32 v2, 3, v0')
    a('v_mul_u32_u24 v5, 132, v1')
    a('v_lshl_add_u32 v5, v2, 5, v5')
    for q in range(4):
        a(f'ds_read2_b32 v[{8+2*q}:{9+2*q}], v5 offset0:{2*q} offset1:{2*q+1}')
    a('s_lshl_b32 s24, s21, 6')
    a('v_add_u32 v3, s24, v1')
    a('v_mul_lo_u32 v3, v3, s23')
    a('s_lshl_b32 s25, s20, 7')
    a('v_lshlrev_b32 v4, 5, v2')
    a('v_add3_u32 v3, v3, v4, s25')
    a('s_waitcnt lgkmcnt(0)')
    a('buffer_store_dwordx4 v[8:11], v3, s[16:19], 0 offen')
    a('buffer_store_dwordx4 v[12:15], v3, s[16:19], 0 offen offset:16')
    a('s_endpgm')

    a.label('k0_pf')
    a(f's_load_dwordx2 s[6:7], s[0:1], {KA["cs"]}')
    a(f's_load_dwordx2 s[8:9], s[0:1], {KA["ss"]}')
    a(f's_sub_u32 s3, s2, {K0_NMOD+K0_NLN+2*K0_NTR+K0_NCP}')
    lg = max(K0_PFL, 1).bit_length() - 1
    a(f's_mul_i32 s3, s3, {(256 // max(K0_PFL, 1)) * 4096}')
    a(f'v_lshrrev_b32 v1, {lg}, v0')
    a(f'v_and_b32 v2, {max(K0_PFL,1)-1}, v0')
    a('v_lshlrev_b32 v1, 12, v1')
    a('v_lshl_add_u32 v1, v2, 7, v1')
    a('v_add_u32 v1, s3, v1')
    a('s_waitcnt lgkmcnt(0)')
    srd(a, 12, 6, 0, S * S * 2)
    srd(a, 16, 8, 0, S * S * 2)
    a('buffer_load_dword v2, v1, s[12:15], 0 offen')
    a('buffer_load_dword v3, v1, s[16:19], 0 offen')
    a('s_waitcnt vmcnt(0)')
    a('s_endpgm')

    a.label('k0_cp')
    a(f's_load_dwordx2 s[6:7], s[0:1], {KA["ch"]}')
    a(f's_load_dwordx2 s[8:9], s[0:1], {KA["sh"]}')
    a(f's_sub_u32 s3, s2, {K0_NMOD+K0_NLN+2*K0_NTR}')
    a('s_waitcnt lgkmcnt(0)')
    a('s_cmp_ge_u32 s3, 40')
    a('s_cselect_b32 s6, s8, s6')
    a('s_cselect_b32 s7, s9, s7')
    a('s_cselect_b32 s20, 1280, 0')
    a('s_cselect_b32 s21, 40, 0')
    a('s_sub_u32 s3, s3, s21')
    srd(a, 12, 6, 0, D * D * 2)
    srd(a, 16, 4, WS_CSH, D * 2 * D * 2)
    a('s_mul_i32 s22, s3, 16*1280')
    a('s_mul_i32 s23, s3, 16*2560')
    a('s_add_u32 s23, s23, s20')
    a('s_mov_b32 s24, 52429')
    for t in range(5):
        a(f'v_add_u32 v1, {256*t}, v0')
        a(f'v_mul_lo_u32 v2, v1, s24')
        a(f'v_lshrrev_b32 v2, 22, v2')
        a(f'v_lshl_add_u32 v{30+t}, v1, 4, s22')
        a(f'v_mul_u32_u24 v3, 1280, v2')
        a(f'v_lshl_add_u32 v{40+t}, v1, 4, v3')
        a(f'v_add_u32 v{40+t}, s23, v{40+t}')
        a(f'buffer_load_dwordx4 v[{8+4*t}:{11+4*t}], v{30+t}, s[12:15], 0 offen')
    for t in range(5):
        a(f's_waitcnt vmcnt({4-t})')
        a(f'buffer_store_dwordx4 v[{8+4*t}:{11+4*t}], v{40+t}, s[16:19], 0 offen')
    a('s_endpgm')

    a.label('k0_mod')
    a(f's_load_dwordx2 s[6:7], s[0:1], {KA["c"]}')
    a(f's_load_dwordx2 s[8:9], s[0:1], {KA["wmod"]}')
    a('v_and_b32 v1, 3, v0')
    a('v_lshrrev_b32 v2, 2, v0')
    a('v_lshlrev_b32 v3, 1, v2')
    a('v_mul_u32_u24 v4, 7680, v2')
    a('v_lshl_add_u32 v4, v1, 4, v4')
    a('s_lshl_b32 s3, s2, 6')
    a('v_add_u32 v4, s3, v4')
    a('s_waitcnt lgkmcnt(0)')
    srd(a, 12, 6, 0, D * 2)
    srd(a, 16, 8, 0, D * 6 * D * 2)
    srd(a, 20, 4, WS_MOD, 6 * D * 2)
    CB = 10
    WB = 20
    AC = 60
    T0 = 70
    for j in range(10):
        a(f'buffer_load_ushort v{CB+j}, v3, s[12:15], 0 offen offset:{j*128}')
    for j in range(10):
        a(f's_mov_b32 s24, {j*64*7680}')
        a(f'buffer_load_dwordx4 v[{WB+4*j}:{WB+4*j+3}], v4, s[16:19], s24 offen')
    for e in range(8):
        a(f'v_mov_b32 v{AC+e}, 0')
    a('s_waitcnt vmcnt(10)')
    for j in range(10):
        a(f'v_lshlrev_b32 v{CB+j}, 16, v{CB+j}')
    for j in range(10):
        a(f'v_mul_f32 v{T0+j}, 0xbfb8aa3b, v{CB+j}')
    for j in range(10):
        a(f'v_exp_f32 v{T0+j}, v{T0+j}')
    a('s_nop 0')
    for j in range(10):
        a(f'v_add_f32 v{T0+j}, 1.0, v{T0+j}')
    for j in range(10):
        a(f'v_rcp_f32 v{T0+j}, v{T0+j}')
    a('s_nop 0')
    for j in range(10):
        a(f'v_mul_f32 v{CB+j}, v{CB+j}, v{T0+j}')
    for j in range(10):
        a(f'v_cvt_pk_bf16_f32 v{CB+j}, v{CB+j}, v{CB+j}')
    for j in range(10):
        a(f'v_lshlrev_b32 v{CB+j}, 16, v{CB+j}')
    for j in range(10):
        a(f's_waitcnt vmcnt({9-j})')
        for q in range(4):
            w = WB + 4 * j + q
            a(f'v_lshlrev_b32 v{T0}, 16, v{w}')
            a(f'v_and_b32 v{T0+1}, 0xffff0000, v{w}')
            a(f'v_fmac_f32 v{AC+2*q}, v{CB+j}, v{T0}')
            a(f'v_fmac_f32 v{AC+2*q+1}, v{CB+j}, v{T0+1}')
    a('v_lshlrev_b32 v5, 7, v2')
    a('v_lshl_add_u32 v5, v1, 5, v5')
    a(f'ds_write_b128 v5, v[{AC}:{AC+3}]')
    a(f'ds_write_b128 v5, v[{AC+4}:{AC+7}] offset:16')
    a('s_waitcnt lgkmcnt(0)')
    a('s_barrier')
    a('v_and_b32 v1, 31, v0')
    a('v_lshrrev_b32 v2, 5, v0')
    a('v_lshlrev_b32 v5, 10, v2')
    a('v_lshl_add_u32 v5, v1, 2, v5')
    for i in range(8):
        a(f'ds_read_b32 v{10+i}, v5 offset:{i*128}')
    a('s_waitcnt lgkmcnt(0)')
    for i in range(1, 8):
        a(f'v_add_f32 v10, v10, v{10+i}')
    a('v_lshlrev_b32 v5, 7, v2')
    a('v_lshl_add_u32 v5, v1, 2, v5')
    a('ds_write_b32 v5, v10 offset:8192')
    a('s_waitcnt lgkmcnt(0)')
    a('s_barrier')
    a('v_cmp_gt_u32 vcc, 32, v0')
    a('s_and_saveexec_b64 s[26:27], vcc')
    a('s_cbranch_execz k0_end')
    a('v_lshlrev_b32 v5, 2, v0')
    for i in range(8):
        a(f'ds_read_b32 v{10+i}, v5 offset:{8192+i*128}')
    a('s_waitcnt lgkmcnt(0)')
    for i in range(1, 8):
        a(f'v_add_f32 v10, v10, v{10+i}')
    a('v_cvt_pk_bf16_f32 v10, v10, v10')
    a('s_lshl_b32 s3, s2, 6')
    a('v_lshl_add_u32 v5, v0, 1, s3')
    a('buffer_store_short v10, v5, s[20:23], 0 offen')
    a('s_endpgm')

    a.label('k0_ln')
    a(f's_load_dwordx2 s[6:7], s[0:1], {KA["x"]}')
    a(f's_sub_u32 s3, s2, {K0_NMOD}')
    a('v_and_b32 v1, 15, v0')
    a('v_lshrrev_b32 v2, 4, v0')
    a('s_mul_i32 s24, s3, 32*1280')
    a('v_mul_u32_u24 v3, 2560, v2')
    a('v_lshl_add_u32 v3, v1, 4, v3')
    a('v_add_u32 v3, s24, v3')
    a('s_waitcnt lgkmcnt(0)')
    srd(a, 12, 6, 0, S * D * 2)
    srd(a, 16, 4, WS_NT, S * D * 2)
    XB = 50
    FB = 10
    ST = 90
    for p in range(2):
        for j in range(5):
            r = XB + 20 * p + 4 * j
            a(f'buffer_load_dwordx4 v[{r}:{r+3}], v3, s[12:15], 0 offen offset:{p*1280 + j*256}')
    a('s_waitcnt vmcnt(0)')
    for p in range(2):
        for i in range(20):
            r = XB + 20 * p + i
            f = FB + 40 * p + 2 * i
            assert f + 1 <= r
            a(f'v_lshlrev_b32 v{f}, 16, v{r}')
            a(f'v_and_b32 v{f+1}, 0xffff0000, v{r}')
    for p in range(2):
        sm = ST + 8 * p
        a(f'v_add_f32 v{sm}, v{FB+40*p}, v{FB+40*p+1}')
        a(f'v_add_f32 v{sm+1}, v{FB+40*p+2}, v{FB+40*p+3}')
        for i in range(4, 40, 2):
            a(f'v_add_f32 v{sm}, v{sm}, v{FB+40*p+i}')
            a(f'v_add_f32 v{sm+1}, v{sm+1}, v{FB+40*p+i+1}')
        a(f'v_add_f32 v{sm}, v{sm}, v{sm+1}')
        dpp_allreduce16(a, sm, sm + 1)
        a(f'v_mul_f32 v{sm}, 0x3acccccd, v{sm}')
        a(f'v_mov_b32 v{sm+2}, 0')
        a(f'v_mov_b32 v{sm+3}, 0')
        for i in range(0, 40, 2):
            a(f'v_sub_f32 v{sm+4}, v{FB+40*p+i}, v{sm}')
            a(f'v_sub_f32 v{sm+5}, v{FB+40*p+i+1}, v{sm}')
            a(f'v_fmac_f32 v{sm+2}, v{sm+4}, v{sm+4}')
            a(f'v_fmac_f32 v{sm+3}, v{sm+5}, v{sm+5}')
        a(f'v_add_f32 v{sm+2}, v{sm+2}, v{sm+3}')
        dpp_allreduce16(a, sm + 2, sm + 3)
        a(f'v_mul_f32 v{sm+2}, 0x3acccccd, v{sm+2}')
        a(f'v_cvt_pk_bf16_f32 v{sm+3}, v{sm}, v{sm+2}')
        a(f'v_lshlrev_b32 v{sm}, 16, v{sm+3}')
        a(f'v_and_b32 v{sm+2}, 0xffff0000, v{sm+3}')
        a(f'v_add_f32 v{sm+2}, 0x3727c5ac, v{sm+2}')
        a(f'v_cvt_pk_bf16_f32 v{sm+2}, v{sm+2}, v{sm+2}')
        a(f'v_lshlrev_b32 v{sm+2}, 16, v{sm+2}')
        a(f'v_sqrt_f32 v{sm+2}, v{sm+2}')
        a('s_nop 0')
        a(f'v_cvt_pk_bf16_f32 v{sm+2}, v{sm+2}, v{sm+2}')
        a(f'v_lshlrev_b32 v{sm+2}, 16, v{sm+2}')
        a(f'v_rcp_f32 v{sm+2}, v{sm+2}')
        a('s_nop 0')
    a('v_lshrrev_b32 v4, 2, v2')
    a('v_and_b32 v5, 3, v1')
    a('v_xor_b32 v4, v4, v5')
    a('v_lshlrev_b32 v4, 4, v4')
    a('v_and_b32 v5, 3, v2')
    a('v_lshl_add_u32 v4, v5, 2, v4')
    a('v_lshl_add_u32 v4, v1, 9, v4')
    T = 106
    for j in range(5):
        for e in range(8):
            i = j * 8 + e
            t = T + 4 * (i % 4)
            a(f'v_sub_f32 v{t}, v{FB+i}, v{ST}')
            a(f'v_sub_f32 v{t+1}, v{FB+40+i}, v{ST+8}')
            a(f'v_cvt_pk_bf16_f32 v{t+2}, v{t}, v{t+1}')
            a(f'v_lshlrev_b32 v{t}, 16, v{t+2}')
            a(f'v_and_b32 v{t+1}, 0xffff0000, v{t+2}')
            a(f'v_mul_f32 v{t}, v{t}, v{ST+2}')
            a(f'v_mul_f32 v{t+1}, v{t+1}, v{ST+8+2}')
            a(f'v_cvt_pk_bf16_f32 v{t+3}, v{t}, v{t+1}')
            a(f'ds_write_b32 v4, v{t+3} offset:{j*8192 + e*64}')
    a('s_waitcnt lgkmcnt(0)')
    a('s_barrier')
    a('v_lshlrev_b32 v4, 4, v0')
    for i in range(10):
        a(f'ds_read_b128 v[{10+4*i}:{13+4*i}], v4 offset:{i*4096}')
    a('v_lshrrev_b32 v5, 5, v0')
    a('v_xor_b32 v5, v5, v0')
    a('v_and_b32 v5, 3, v5')
    a('v_lshrrev_b32 v6, 2, v0')
    a('v_lshlrev_b32 v6, 12, v6')
    a('v_lshl_add_u32 v6, v5, 4, v6')
    a('s_lshl_b32 s24, s3, 6')
    a('v_add_u32 v6, s24, v6')
    for i in range(10):
        a(f's_mov_b32 s25, {i*262144}')
        a(f's_waitcnt lgkmcnt({9-i})')
        a(f'buffer_store_dwordx4 v[{10+4*i}:{13+4*i}], v6, s[16:19], s25 offen')
    a.label('k0_end')
    a('s_endpgm')
    if K0_NT:
        for i in range(l0, len(a.lines)):
            if 'buffer_load_dwordx4' in a.lines[i]:
                a.lines[i] += ' nt'
    return 124
```

```python
import sys, os
from common import *
from k0 import *
from gemm3 import *
import main as m1

def acc_list(g, rb):
    return [g.acc[rb][nb] + q for nb in range(g.NB) for q in range(4)]

class Rec:
    def __init__(self, g):
        self.g = g
    def __call__(self, s):
        self.g.fill.append(s)

def unpack_inplace(a, base, n):
    for i in range(n):
        a(f'v_lshlrev_b32 v{base+2*i}, 16, v{base+n+i}')
        a(f'v_and_b32 v{base+2*i+1}, {MASK}, v{base+n+i}')

def plus1_round(a, base, n2, tmp):
    for i in range(0, n2, 2):
        a(f'v_add_f32 v{base+i}, 1.0, v{base+i}')
        a(f'v_add_f32 v{base+i+1}, 1.0, v{base+i+1}')
        a(f'v_cvt_pk_bf16_f32 v{tmp}, v{base+i}, v{base+i+1}')
        a(f'v_lshlrev_b32 v{base+i}, 16, v{tmp}')
        a(f'v_and_b32 v{base+i+1}, {MASK}, v{tmp}')

def nop(a, c, g):
    pass

def row_sgpr(a, g):
    a('s_lshl_b32 s38, s45, 5')
    a('s_add_u32 s38, s38, s39')
    if g.WK == 2:
        a('s_lshl_b32 s37, s46, 4')
        a('s_add_u32 s38, s38, s37')

def store_rounds(a, g, src, srd_, soff='0'):
    for t in range(g.nt):
        a(f'buffer_store_dwordx4 v[{src+4*t}:{src+4*t+3}], v{g.tg[t]}, s[{srd_}:{srd_+3}], {soff} offen')

def l1_setup_m(a, c):
    a('s_and_b32 s47, s41, 15')
    a('s_lshl_b32 s47, s47, 7')
    a('s_mov_b32 s39, s47')

def l1_setup_ab(a, c):
    a('s_cmp_ge_u32 s41, 16')
    a('s_cselect_b32 s30, s32, s30')
    a('s_cselect_b32 s31, s33, s31')
    srd(a, 8, 30, 0, S * S * 2)
    srd(a, 12, 4, WS_NT, S * D * 2)

def l1_setup(a, c):
    a('s_cmp_ge_u32 s41, 16')
    a('s_cselect_b32 s35, 0x80000000, 0')
    a('s_cselect_b32 s36, 1280, 0')
    srd(a, 20, 4, WS_MOD, 6 * D * 2)
    srd(a, 24, 4, WS_PQ, S * 2 * D * 2)

def setup_m(sh):
    def f(a, c):
        a(f's_lshl_b32 s47, s41, {sh}')
        a('s_mov_b32 s39, s47')
    return f

def setup_ab(aoff, asz, boff, bsz):
    def f(a, c):
        srd(a, 8, 4, aoff, asz)
        srd(a, 12, 4, boff, bsz)
    return f

def l1_pre0(a, c, g):
    R = g.R
    vc = R.alloc()
    a('s_lshl_b32 s60, s44, 1')
    a(f'v_lshl_add_u32 v{vc}, v{g.vg}, 3, s60')
    g.sa = R.alloc(20, 2); g.ca = R.alloc(20, 2); g.ft = R.alloc()
    a('s_mov_b32 s61, 1280')
    for nb in range(g.NB):
        a(f'buffer_load_dwordx2 v[{g.sa+10+2*nb}:{g.sa+10+2*nb+1}], v{vc}, s[20:23], 0 offen offset:{32*nb}')
        g.issued.append(10**6)
    for nb in range(g.NB):
        a(f'buffer_load_dwordx2 v[{g.ca+10+2*nb}:{g.ca+10+2*nb+1}], v{vc}, s[20:23], s61 offen offset:{32*nb}')
        g.issued.append(10**6)
    f = Rec(g)
    unpack_inplace(f, g.sa, 10)
    unpack_inplace(f, g.ca, 10)
    plus1_round(f, g.ca, 20, g.ft)
    for i in range(20):
        f(f'v_xor_b32 v{g.ca+i}, s35, v{g.ca+i}')
        f(f'v_xor_b32 v{g.sa+i}, s35, v{g.sa+i}')

def l1_touch(a, c, g):
    nl = 32 - K0_PFL
    if nl == 0 or os.environ.get('TOUCH', '0') == '0':
        return
    vt0, vt1, vt2 = g.tmp
    per = nl // 16 if nl >= 16 else 1
    a('s_lshl_b32 s60, s42, 4')
    a('s_lshl_b32 s61, s40, 2')
    a('s_add_u32 s60, s60, s61')
    a('s_add_u32 s60, s60, s47')
    a(f'v_add_u32 v{vt0}, s60, v{g.vg}')
    a(f'v_lshlrev_b32 v{vt0}, 12, v{vt0}')
    a(f'v_lshl_add_u32 v{vt0}, v{g.vi16}, 7, v{vt0}')
    g.tdump = g.R.alloc(); g.taddr = g.R.alloc()
    a(f'v_mov_b32 v{g.taddr}, v{vt0}')
    f = Rec(g)
    for j in range((nl + 15) // 16):
        off = (K0_PFL + 16 * j) * 128
        f(f's_mov_b32 s62, {off}')
        f(f'buffer_load_dword v{g.tdump}, v{g.taddr}, s[8:11], s62 offen')

def l1_pre1(a, c, g):
    l1_touch(a, c, g)
    l1_pre0(a, c, g)
    row_sgpr(a, g)
    tr_setup(a, g, 's38', 2 * D * 2)

def l1_epi(a, c, g):
    SB = g.SB
    n = 2 * g.NB
    t = SB + 40
    for rb in g.rbs:
        al = acc_list(g, rb)
        for i in range(2 * n):
            a(f'v_mul_f32 v{t+i}, v{al[i]}, v{g.ca+i}')
            a(f'v_fmac_f32 v{t+i}, v{g.rs[rb]}, v{g.sa+i}')
        oo = SB + 60 + 10 * rb
        for i in range(n):
            a(f'v_cvt_pk_bf16_f32 v{oo+i}, v{t+2*i}, v{t+2*i+1}')
        tr_write(a, g, rb, oo)
    tr_read(a, g, SB)
    for t_ in range(g.nt):
        a(f's_waitcnt lgkmcnt({g.nt-1-t_})')
        a(f'buffer_store_dwordx4 v[{SB+4*t_}:{SB+4*t_+3}], v{g.tg[t_]}, s[24:27], s36 offen')


def res_pre0(goff, xsrd):
    def pre(a, c, g):
        R = g.R
        row_sgpr(a, g)
        tr_setup(a, g, 's38', D * 2)
        n = 4 * g.nt
        g.ga = R.alloc(2 * n, 4); g.x = R.alloc(2 * n, 4)
        a(f's_mov_b32 s61, {goff}')
        for t in range(g.nt):
            a(f'buffer_load_dwordx4 v[{g.ga+n+4*t}:{g.ga+n+4*t+3}], v{g.tc[t]}, s[20:23], s61 offen')
            g.issued.append(10**6)
        for t in range(g.nt):
            a(f'buffer_load_dwordx4 v[{g.x+n+4*t}:{g.x+n+4*t+3}], v{g.tg[t]}, s[{xsrd}:{xsrd+3}], 0 offen')
            g.issued.append(10**6)
        f = Rec(g)
        unpack_inplace(f, g.ga, n)
        unpack_inplace(f, g.x, n)
    return pre

def res_round(a, g, t, Y, yf, u, o):
    unpack(a, Y + 4 * t, yf, 4)
    for i in range(0, 8, 2):
        a(f'v_pk_mul_f32 v[{yf+i}:{yf+i+1}], v[{yf+i}:{yf+i+1}], v[{g.ga+8*t+i}:{g.ga+8*t+i+1}]')
    for i in range(4):
        a(f'v_cvt_pk_bf16_f32 v{u+i}, v{yf+2*i}, v{yf+2*i+1}')
    unpack(a, u, yf, 4)
    for i in range(0, 8, 2):
        a(f'v_pk_add_f32 v[{yf+i}:{yf+i+1}], v[{yf+i}:{yf+i+1}], v[{g.x+8*t+i}:{g.x+8*t+i+1}]')
    for i in range(4):
        a(f'v_cvt_pk_bf16_f32 v{o+i}, v{yf+2*i}, v{yf+2*i+1}')

def res_epi(osrd):
    def epi(a, c, g):
        SB = g.SB
        n = 2 * g.NB
        al = acc_list(g, 0)
        for i in range(n):
            a(f'v_cvt_pk_bf16_f32 v{SB+i}, v{al[2*i]}, v{al[2*i+1]}')
        tr_write(a, g, 0, SB)
        Y = SB + 12
        tr_read(a, g, Y)
        T = SB + 24
        for t in range(g.nt):
            a(f's_waitcnt lgkmcnt({g.nt-1-t})')
            o = T + 20 + 4 * t
            res_round(a, g, t, Y, T, T + 16, o)
            a(f'buffer_store_dwordx4 v[{o}:{o+3}], v{g.tg[t]}, s[{osrd}:{osrd+3}], 0 offen')
    return epi

def l2_pre1(a, c, g):
    res_pre0(2 * D * 2, 16)(a, c, g)
    R = g.R
    n = 4 * g.nt
    g.cb = R.alloc(2 * n, 4); g.ft = R.alloc()
    a('s_mov_b32 s61, 5120')
    for t in range(g.nt):
        a(f'buffer_load_dwordx4 v[{g.cb+n+4*t}:{g.cb+n+4*t+3}], v{g.tc[t]}, s[20:23], s61 offen')
        g.issued.append(10**6)
    f = Rec(g)
    unpack_inplace(f, g.cb, n)
    plus1_round(f, g.cb, 2 * n, g.ft)

def l2_epi(a, c, g):
    SB = g.SB
    n = 2 * g.NB
    al = acc_list(g, 0)
    for i in range(n):
        a(f'v_cvt_pk_bf16_f32 v{SB+i}, v{al[2*i]}, v{al[2*i+1]}')
    tr_write(a, g, 0, SB)
    Y = SB + 12
    tr_read(a, g, Y)
    T = SB + 24
    vs = g.tmp[0]
    a('s_lshl_b32 s57, s40, 11')
    a('s_add_u32 s57, s57, 49152')
    a(f'v_lshl_add_u32 v{vs}, v{g.vlane}, 3, s57')
    for t in range(g.nt):
        a(f's_waitcnt lgkmcnt({g.nt-1})')
        yf, gf, u = T, T + 8, T + 16
        o = T + 20 + 8 * t
        res_round(a, g, t, Y, yf, u, o)
        a(f'buffer_store_dwordx4 v[{o}:{o+3}], v{g.tg[t]}, s[24:27], 0 offen')
        unpack(a, o, yf, 4)
        for i in range(0, 8, 2):
            a(f'v_pk_mul_f32 v[{gf+i}:{gf+i+1}], v[{yf+i}:{yf+i+1}], v[{g.cb+8*t+i}:{g.cb+8*t+i+1}]')
        z = o + 4
        for i in range(4):
            a(f'v_cvt_pk_bf16_f32 v{z+i}, v{gf+2*i}, v{gf+2*i+1}')
        a(f'buffer_store_dwordx4 v[{z}:{z+3}], v{g.tg[t]}, s[28:31], 0 offen')
        st = T + 16
        a(f'v_pk_add_f32 v[{gf}:{gf+1}], v[{yf}:{yf+1}], v[{yf+2}:{yf+3}]')
        a(f'v_pk_add_f32 v[{gf+2}:{gf+3}], v[{yf+4}:{yf+5}], v[{yf+6}:{yf+7}]')
        a(f'v_pk_add_f32 v[{gf}:{gf+1}], v[{gf}:{gf+1}], v[{gf+2}:{gf+3}]')
        a(f'v_add_f32 v{st}, v{gf}, v{gf+1}')
        a(f'v_mul_f32 v{st+2}, 0x3e000000, v{st}')
        a(f'v_mov_b32 v{st+3}, v{st+2}')
        for i in range(0, 8, 2):
            a(f'v_pk_add_f32 v[{yf+i}:{yf+i+1}], v[{yf+i}:{yf+i+1}], v[{st+2}:{st+3}] neg_lo:[0,1] neg_hi:[0,1]')
        a(f'v_pk_mul_f32 v[{gf}:{gf+1}], v[{yf}:{yf+1}], v[{yf}:{yf+1}]')
        for i in range(2, 8, 2):
            a(f'v_pk_fma_f32 v[{gf}:{gf+1}], v[{yf+i}:{yf+i+1}], v[{yf+i}:{yf+i+1}], v[{gf}:{gf+1}]')
        a(f'v_add_f32 v{st+1}, v{gf}, v{gf+1}')
        a(f'ds_write_b64 v{vs}, v[{st}:{st+1}] offset:{512*t}')
    a('s_waitcnt lgkmcnt(0)')
    vr = g.tmp[1]
    a(f'v_mul_u32_u24 v{vr}, 80, v{g.vi16}')
    a(f'v_add_u32 v{vr}, s57, v{vr}')
    E = SB
    for j in range(5):
        a(f'ds_read_b128 v[{E+4*j}:{E+4*j+3}], v{vr} offset:{16*j}')
    a('s_waitcnt lgkmcnt(0)')
    Sg, M, mu, d = SB + 20, SB + 21, SB + 22, SB + 23
    a(f'v_add_f32 v{Sg}, v{E}, v{E+2}')
    a(f'v_add_f32 v{M}, v{E+1}, v{E+3}')
    for j in range(2, 10):
        a(f'v_add_f32 v{Sg}, v{Sg}, v{E+2*j}')
        a(f'v_add_f32 v{M}, v{M}, v{E+2*j+1}')
    a(f'v_mul_f32 v{mu}, 0x3c4ccccd, v{Sg}')
    a(f'v_mov_b32 v{SB+24}, 0')
    for j in range(10):
        a(f'v_fma_f32 v{d}, v{E+2*j}, 0.125, -v{mu}') if False else None
        a(f'v_mul_f32 v{d}, 0x3e000000, v{E+2*j}')
        a(f'v_sub_f32 v{d}, v{d}, v{mu}')
        a(f'v_fmac_f32 v{SB+24}, v{d}, v{d}')
    a(f'v_mov_b32 v{d}, 0x41000000')
    a(f'v_fmac_f32 v{M}, v{d}, v{SB+24}')
    a(f'v_add_u32 v{vr}, s38, v{g.vi16}')
    a(f'v_lshlrev_b32 v{vr}, 6, v{vr}')
    a('s_lshl_b32 s57, s42, 3')
    a(f'v_add_u32 v{vr}, s57, v{vr}')
    a(f'v_cmp_gt_u32 vcc, 16, v{g.vlane}')
    a(f'v_mov_b32 v{d}, 0x7ffffff0')
    a('s_nop 1')
    a(f'v_cndmask_b32 v{vr}, v{d}, v{vr}, vcc')
    srd(a, 60, 4, WS_ST, S * 64)
    a(f'buffer_store_dwordx2 v[{Sg}:{Sg+1}], v{vr}, s[60:63], 0 offen')

class Lst:
    def __init__(self):
        self.l = []
    def __call__(self, s):
        self.l.append(s)

def l2_hpre(a, c, g):
    vl = g.vlane
    srd(a, 72, 4, WS_W1T, F * D * 2)
    srd(a, 76, 4, WS_UW, 2 * F * 4)
    a(f'v_lshlrev_b32 v20, 4, v{vl}')
    a('v_add_u32 v21, 1024, v20')
    a(f'v_cmp_gt_u32 vcc, 16, v{vl}')
    a('v_mov_b32 v22, 0x7ffffff0')
    a('s_nop 1')
    a('v_cndmask_b32 v21, v22, v21, vcc')
    a('s_mov_b32 s80, 5120')
    a('s_mov_b32 s81, 3840')
    CBr, SBr, Wr = 24, 32, 40
    a(f'buffer_load_dwordx4 v[{CBr}:{CBr+3}], v20, s[20:23], s80 offen')
    a(f'buffer_load_dwordx4 v[{CBr+4}:{CBr+7}], v21, s[20:23], s80 offen')
    a(f'buffer_load_dwordx4 v[{SBr}:{SBr+3}], v20, s[20:23], s81 offen')
    a(f'buffer_load_dwordx4 v[{SBr+4}:{SBr+7}], v21, s[20:23], s81 offen')
    a('s_cmp_lt_u32 s50, 2')
    a('s_cselect_b32 s85, 4, 2')
    a('s_mul_i32 s82, s2, 6')
    a('s_add_u32 s82, s82, s50')
    a('s_mul_i32 s83, s82, 1280')
    a(f'buffer_load_dwordx4 v[{Wr}:{Wr+3}], v20, s[72:75], s83 offen')
    a(f'buffer_load_dwordx4 v[{Wr+4}:{Wr+7}], v21, s[72:75], s83 offen')
    a('s_add_u32 s83, s83, 5120')
    a(f'buffer_load_dwordx4 v[{Wr+8}:{Wr+11}], v20, s[72:75], s83 offen')
    a(f'buffer_load_dwordx4 v[{Wr+12}:{Wr+15}], v21, s[72:75], s83 offen')
    return 8

def l2_htail(c, g):
    vl = g.vlane
    CBr, SBr, Wr = 24, 32, 40
    CF, SF, WF, AC = 60, 76, 92, 108
    c0, c1, c2 = Lst(), Lst(), Lst()
    a = c0
    unpack(a, CBr, CF, 8)
    plus1_round(a, CF, 16, 23)
    unpack(a, SBr, SF, 8)
    a = c1
    for r in range(2):
        unpack(a, Wr + 8 * r, WF, 8)
        a(f'v_mul_f32 v{AC+2*r}, v{CF}, v{WF}')
        a(f'v_mul_f32 v{AC+2*r+1}, v{SF}, v{WF}')
        for i in range(1, 16):
            a(f'v_fmac_f32 v{AC+2*r}, v{CF+i}, v{WF+i}')
            a(f'v_fmac_f32 v{AC+2*r+1}, v{SF+i}, v{WF+i}')
    a('s_lshl_b32 s84, s50, 10')
    a(f's_add_u32 s84, s84, {g.XTRA}')
    a(f'v_lshl_add_u32 v20, v{vl}, 2, s84')
    for v in range(4):
        a(f'ds_write_b32 v20, v{AC+v} offset:{256*v}')
    a('s_waitcnt lgkmcnt(0)')
    a(f'v_and_b32 v21, 3, v{vl}')
    a('v_lshlrev_b32 v22, 8, v21')
    a('v_add_u32 v22, s84, v22')
    for j in range(16):
        a(f'ds_read_b128 v[{24+4*j}:{27+4*j}], v22 offset:{16*j}')
    a = c2
    a('s_waitcnt lgkmcnt(0)')
    for j in range(1, 64):
        a(f'v_add_f32 v24, v24, v{24+j}')
    a(f'v_and_b32 v20, 1, v{vl}')
    a('v_mul_u32_u24 v20, 6144, v20')
    a(f'v_lshrrev_b32 v21, 1, v{vl}')
    a('v_lshlrev_b32 v21, 2, v21')
    a('v_add_u32 v21, s82, v21')
    a('v_lshl_add_u32 v20, v21, 2, v20')
    a(f'v_cmp_gt_u32 vcc, s85, v{vl}')
    a('v_mov_b32 v22, 0x7ffffff0')
    a('s_nop 1')
    a('v_cndmask_b32 v20, v22, v20, vcc')
    a('buffer_store_dword v24, v20, s[76:79], 0 offen')
    return [c0.l, c1.l, c2.l]

def l2_setup(a, c):
    srd(a, 20, 4, WS_MOD, 6 * D * 2)
    srd(a, 24, 4, WS_X1, S * D * 2)
    srd(a, 16, 30, 0, S * D * 2)
    srd(a, 28, 4, WS_H2, S * D * 2)

L2 = dict(NWG=256, MPX=4, NT=8, WM=2, WK=2, NB=5, NST=10, BK=64, NBUF=4, lda=2 * D * 2, ldb=2 * D * 2, a_goff=D * 2, b_goff=D * 2,
          kargs=[(30, 'x')], setup=l2_setup, setup_m=setup_m(6), setup_ab=setup_ab(WS_PQ, S * 2 * D * 2, WS_CSH, D * 2 * D * 2), pre0=nop, pre1=l2_pre1, GAP=1, NPRE=3, FPG=5, epi=l2_epi,  ka_bytes=2560, kb_bytes=2560, rot=(1, 3))

def l3_setup(a, c):
    srd(a, 24, 4, WS_HH, S * F * 2)

def l3_pre1(a, c, g):
    row_sgpr(a, g)
    tr_setup(a, g, 's38', F * 2)

def l3_hpre(a, c, g):
    vl = g.vlane
    srd(a, 72, 4, WS_ST, S * 64)
    srd(a, 76, 4, WS_UW, 2 * F * 4)
    a('s_lshl_b32 s80, s50, 5')
    a('s_add_u32 s80, s80, s47')
    a(f'v_and_b32 v20, 31, v{vl}')
    a('v_add_u32 v20, s80, v20')
    a('v_lshlrev_b32 v20, 6, v20')
    for j in range(4):
        a(f'buffer_load_dwordx4 v[{24+4*j}:{27+4*j}], v20, s[72:75], 0 offen offset:{16*j}')
    a('s_lshl_b32 s81, s44, 2')
    a(f'v_lshl_add_u32 v21, v{vl}, 4, s81')
    a('s_mov_b32 s82, 6144')
    a('buffer_load_dwordx4 v[48:51], v21, s[76:79], 0 offen')
    a('buffer_load_dwordx4 v[52:55], v21, s[76:79], s82 offen')
    return 6

def l3_htail(c, g):
    vl = g.vlane
    c0 = Lst()
    a = c0
    E = 24
    Sg, M, mu, d, q = 60, 61, 62, 63, 64
    a(f'v_add_f32 v{Sg}, v{E}, v{E+2}')
    a(f'v_add_f32 v{M}, v{E+1}, v{E+3}')
    for j in range(2, 8):
        a(f'v_add_f32 v{Sg}, v{Sg}, v{E+2*j}')
        a(f'v_add_f32 v{M}, v{M}, v{E+2*j+1}')
    a(f'v_mul_f32 v{mu}, 0x3acccccd, v{Sg}')
    a(f'v_mov_b32 v{q}, 0')
    for j in range(8):
        a(f'v_mul_f32 v{d}, 0x3c4ccccd, v{E+2*j}')
        a(f'v_sub_f32 v{d}, v{d}, v{mu}')
        a(f'v_fmac_f32 v{q}, v{d}, v{d}')
    a(f'v_mov_b32 v{d}, 0x42a00000')
    a(f'v_fmac_f32 v{M}, v{d}, v{q}')
    a(f'v_mul_f32 v{M}, 0x3acccccd, v{M}')
    a(f'v_cvt_pk_bf16_f32 v{d}, v{mu}, v{M}')
    a(f'v_lshlrev_b32 v67, 16, v{d}')
    a(f'v_and_b32 v{M}, {MASK}, v{d}')
    a(f'v_add_f32 v{M}, 0x3727c5ac, v{M}')
    a(f'v_cvt_pk_bf16_f32 v{M}, v{M}, v{M}')
    a(f'v_lshlrev_b32 v{M}, 16, v{M}')
    a(f'v_sqrt_f32 v{M}, v{M}')
    a('s_nop 0')
    a(f'v_cvt_pk_bf16_f32 v{M}, v{M}, v{M}')
    a(f'v_lshlrev_b32 v{M}, 16, v{M}')
    a(f'v_rcp_f32 v66, v{M}')
    a('s_nop 0')
    a('s_lshl_b32 s83, s50, 8')
    a(f's_add_u32 s83, s83, {g.XTRA}')
    a(f'v_and_b32 v20, 31, v{vl}')
    a('v_lshl_add_u32 v20, v20, 3, s83')
    a('ds_write_b64 v20, v[66:67]')
    a(f'v_lshlrev_b32 v21, 4, v{vl}')
    a(f'v_add_u32 v21, {g.XTRA + 1024}, v21')
    a('ds_write_b128 v21, v[48:51]')
    a('ds_write_b128 v21, v[52:55] offset:1024')
    return [c0.l]

def l3_epi(a, c, g):
    SB = g.SB
    n = 2 * g.NB
    vt0, vt1, vt2 = g.tmp
    a('s_lshl_b32 s57, s45, 8')
    a(f's_add_u32 s57, s57, {g.XTRA}')
    a(f'v_lshl_add_u32 v{vt0}, v{g.vi16}, 3, s57')
    a(f'v_lshlrev_b32 v{vt1}, 4, v{g.vg}')
    a(f'v_add_u32 v{vt1}, {g.XTRA + 1024}, v{vt1}')
    STt = SB + 64
    a(f'ds_read_b64 v[{STt}:{STt+1}], v{vt0}')
    a(f'ds_read_b64 v[{STt+2}:{STt+3}], v{vt0} offset:128')
    U, W = SB, SB + 24
    for nb in range(g.NB):
        a(f'ds_read_b128 v[{U+4*nb}:{U+4*nb+3}], v{vt1} offset:{64*nb}')
        a(f'ds_read_b128 v[{W+4*nb}:{W+4*nb+3}], v{vt1} offset:{1024+64*nb}')
    a('s_waitcnt lgkmcnt(0)')
    for rb in g.rbs:
        al = acc_list(g, rb)
        for i, r in enumerate(al):
            a(f'v_fma_f32 v{r}, -v{STt+2*rb+1}, v{U+i}, v{r}')
            a(f'v_fma_f32 v{r}, v{STt+2*rb}, v{r}, v{W+i}')
            a(f'v_max_f32 v{r}, 0, v{r}')
        oo = SB + 48 + 12 * rb
        oo = SB + 68 if rb else SB + 48
        for i in range(n):
            a(f'v_cvt_pk_bf16_f32 v{oo+i}, v{al[2*i]}, v{al[2*i+1]}')
        tr_write(a, g, rb, oo)
    tr_read(a, g, SB)
    for t_ in range(g.nt):
        a(f's_waitcnt lgkmcnt({g.nt-1-t_})')
        a(f'buffer_store_dwordx4 v[{SB+4*t_}:{SB+4*t_+3}], v{g.tg[t_]}, s[24:27], 0 offen')

L3 = dict(NWG=256, MPX=2, NT=16, WM=4, WK=1, NB=6, NST=10, BK=64, NBUF=5, lda=D * 2, ldb=D * 2, a_goff=0, b_goff=0,
          kargs=[], setup=l3_setup, setup_m=setup_m(7), setup_ab=setup_ab(WS_H2, S * D * 2, WS_W1T, F * D * 2), pre0=nop, pre1=l3_pre1, GAP=1, NPRE=3, epi=l3_epi, h_pre=l3_hpre, h_tail=l3_htail, h_start=5, h_chunk=20, h_final_barrier=1, lds_extra=4096, ka_bytes=1280, kb_bytes=1280, rot=(1, 5))

def l4_setup(a, c):
    srd(a, 20, 4, WS_MOD, 6 * D * 2)
    srd(a, 24, 30, 0, S * D * 2)
    srd(a, 16, 4, WS_X1, S * D * 2)

L4 = dict(NWG=256, MPX=4, NT=8, WM=2, WK=2, NB=5, NST=12, BK=64, NBUF=4, lda=F * 2, ldb=F * 2, a_goff=F, b_goff=F,
          kargs=[(30, 'out')], setup=l4_setup, setup_m=setup_m(6), setup_ab=setup_ab(WS_HH, S * F * 2, WS_W2T, F * D * 2), pre0=nop, pre1=res_pre0(5 * D * 2, 16), GAP=1, NPRE=3, FPG=3, epi=res_epi(24), helper=False, ka_bytes=3072, kb_bytes=3072, rot=(1, 3))

L1 = dict(NWG=256, MPX=4, NT=8, WM=4, WK=1, NB=5, NST=32, BK=64, NBUF=6, PRE0=3, lda=S * 2, ldb=S * 2, a_goff=0, b_goff=0,
          kargs=[(30, 'cs'), (32, 'ss')], setup=l1_setup, setup_m=l1_setup_m, setup_ab=l1_setup_ab, pre0=nop, pre1=l1_pre1, epi=l1_epi, rowsum=True, a_nt=(os.environ.get('ANT', '1') == '1'), h_pre=l2_hpre, h_tail=l2_htail, h_start=8, h_chunk=20, lds_extra=4096, helper=False, ka_bytes=4096, kb_bytes=4096, rot=(2, 5))

def main(out, stamp=False):
    for L in (L1, L2, L3, L4):
        L['stamp'] = stamp
        L['rot'] = None
        L['fine'] = int(stamp) if stamp else 0
    hdr = open('adaLN_cond__spectral_fnet__dense_activation_relu__prompt.s.ref').read().split('\n')
    hdr = [l for l in hdr if l.startswith(';') and '@launch' not in l and 'Override' not in l and 'grid=ceil' not in l]
    a = Asm()
    descs = []
    launches = []
    nv = gen_k0(a, 'k0_kernel'); descs.append(kernel_desc('k0_kernel', nv)); launches.append(('k0_kernel', K0_GRID, K0_LDS))
    nv, lds = gen_gemm(a, 'l1_kernel', L1); descs.append(kernel_desc('l1_kernel', nv, 102)); launches.append(('l1_kernel', 256, lds))
    nv, lds = gen_gemm(a, 'l2_kernel', L2); descs.append(kernel_desc('l2_kernel', nv, 102)); launches.append(('l2_kernel', 256, lds))
    nv, lds = gen_gemm(a, 'l3_kernel', L3); descs.append(kernel_desc('l3_kernel', nv, 102)); launches.append(('l3_kernel', 256, lds))
    nv, lds = gen_gemm(a, 'l4_kernel', L4); descs.append(kernel_desc('l4_kernel', nv, 102)); launches.append(('l4_kernel', 256, lds))
    txt = '\n'.join(hdr) + '\n'
    for (k, g, l) in launches:
        blk = 256 if k[0] == 'k' else 512
        txt += f'; @launch kernel={k} grid=({g},1,1) block=({blk},1,1) lds={l}\n'
    txt += '.amdgcn_target "amdgcn-amd-amdhsa--gfx950"\n.text\n'
    txt += a.text()
    txt += '.section .rodata,"a"\n'
    txt += ''.join(descs)
    open(out, 'w').write(txt)

if __name__ == '__main__':
    main(sys.argv[1] if len(sys.argv) > 1 else 'adaLN_cond__spectral_fnet__dense_activation_relu__prompt.s', stamp=(sys.argv[2] if len(sys.argv) > 2 else False))
```

```python
import sys, os
from common import *
from k0 import *
from gemm3 import *
import main as m1

def acc_list(g, rb):
    return [g.acc[rb][nb] + q for nb in range(g.NB) for q in range(4)]

class Rec:
    def __init__(self, g):
        self.g = g
    def __call__(self, s):
        self.g.fill.append(s)

def unpack_inplace(a, base, n):
    for i in range(n):
        a(f'v_lshlrev_b32 v{base+2*i}, 16, v{base+n+i}')
        a(f'v_and_b32 v{base+2*i+1}, {MASK}, v{base+n+i}')

def plus1_round(a, base, n2, tmp):
    for i in range(0, n2, 2):
        a(f'v_add_f32 v{base+i}, 1.0, v{base+i}')
        a(f'v_add_f32 v{base+i+1}, 1.0, v{base+i+1}')
        a(f'v_cvt_pk_bf16_f32 v{tmp}, v{base+i}, v{base+i+1}')
        a(f'v_lshlrev_b32 v{base+i}, 16, v{tmp}')
        a(f'v_and_b32 v{base+i+1}, {MASK}, v{tmp}')

def nop(a, c, g):
    pass

def row_sgpr(a, g):
    a('s_lshl_b32 s38, s45, 5')
    a('s_add_u32 s38, s38, s39')
    if g.WK == 2:
        a('s_lshl_b32 s37, s46, 4')
        a('s_add_u32 s38, s38, s37')

def store_rounds(a, g, src, srd_, soff='0'):
    for t in range(g.nt):
        a(f'buffer_store_dwordx4 v[{src+4*t}:{src+4*t+3}], v{g.tg[t]}, s[{srd_}:{srd_+3}], {soff} offen')

def l1_setup_m(a, c):
    a('s_and_b32 s41, s2, 7')
    a('s_lshl_b32 s41, s41, 1')
    a('s_and_b32 s47, s43, 1')
    a('s_add_u32 s41, s41, s47')
    a('s_lshr_b32 s47, s43, 1')
    a('s_lshl_b32 s47, s47, 4')
    a('s_add_u32 s41, s41, s47')
    a('s_and_b32 s47, s41, 15')
    a('s_lshl_b32 s47, s47, 7')
    a('s_mov_b32 s39, s47')

def l1_setup_ab(a, c):
    a('s_cmp_ge_u32 s41, 16')
    a('s_cselect_b32 s30, s32, s30')
    a('s_cselect_b32 s31, s33, s31')
    srd(a, 8, 30, 0, S * S * 2)
    srd(a, 12, 4, WS_NT, S * D * 2)

def l1_setup(a, c):
    a('s_cmp_ge_u32 s41, 16')
    a('s_cselect_b32 s35, 0x80000000, 0')
    a('s_cselect_b32 s36, 1280, 0')
    srd(a, 20, 4, WS_MOD, 6 * D * 2)
    srd(a, 24, 4, WS_PQ, S * 2 * D * 2)

def setup_m(sh):
    def f(a, c):
        a(f's_lshl_b32 s47, s41, {sh}')
        a('s_mov_b32 s39, s47')
    return f

def setup_ab(aoff, asz, boff, bsz):
    def f(a, c):
        srd(a, 8, 4, aoff, asz)
        srd(a, 12, 4, boff, bsz)
    return f

def l1_pre0(a, c, g):
    R = g.R
    vc = R.alloc()
    a('s_lshl_b32 s60, s44, 1')
    a(f'v_lshl_add_u32 v{vc}, v{g.vg}, 3, s60')
    g.sa = R.alloc(20, 2); g.ca = R.alloc(20, 2); g.ft = R.alloc()
    a('s_mov_b32 s61, 1280')
    for nb in range(g.NB):
        a(f'buffer_load_dwordx2 v[{g.sa+10+2*nb}:{g.sa+10+2*nb+1}], v{vc}, s[20:23], 0 offen offset:{32*nb}')
        g.issued.append(10**6)
    for nb in range(g.NB):
        a(f'buffer_load_dwordx2 v[{g.ca+10+2*nb}:{g.ca+10+2*nb+1}], v{vc}, s[20:23], s61 offen offset:{32*nb}')
        g.issued.append(10**6)
    f = Rec(g)
    unpack_inplace(f, g.sa, 10)
    unpack_inplace(f, g.ca, 10)
    plus1_round(f, g.ca, 20, g.ft)
    for i in range(20):
        f(f'v_xor_b32 v{g.ca+i}, s35, v{g.ca+i}')
        f(f'v_xor_b32 v{g.sa+i}, s35, v{g.sa+i}')

def l1_touch(a, c, g):
    nl = 32 - K0_PFL
    if nl == 0 or os.environ.get('TOUCH', '0') == '0':
        return
    vt0, vt1, vt2 = g.tmp
    per = nl // 16 if nl >= 16 else 1
    a('s_lshl_b32 s60, s42, 4')
    a('s_lshl_b32 s61, s40, 2')
    a('s_add_u32 s60, s60, s61')
    a('s_add_u32 s60, s60, s47')
    a(f'v_add_u32 v{vt0}, s60, v{g.vg}')
    a(f'v_lshlrev_b32 v{vt0}, 12, v{vt0}')
    a(f'v_lshl_add_u32 v{vt0}, v{g.vi16}, 7, v{vt0}')
    g.tdump = g.R.alloc(); g.taddr = g.R.alloc()
    a(f'v_mov_b32 v{g.taddr}, v{vt0}')
    f = Rec(g)
    for j in range((nl + 15) // 16):
        off = (K0_PFL + 16 * j) * 128
        f(f's_mov_b32 s62, {off}')
        f(f'buffer_load_dword v{g.tdump}, v{g.taddr}, s[8:11], s62 offen')

def l1_pre1(a, c, g):
    l1_touch(a, c, g)
    l1_pre0(a, c, g)
    row_sgpr(a, g)
    tr_setup(a, g, 's38', 2 * D * 2)

def l1_epi(a, c, g):
    SB = g.SB
    n = 2 * g.NB
    t = SB + 40
    for rb in g.rbs:
        al = acc_list(g, rb)
        for i in range(2 * n):
            a(f'v_mul_f32 v{t+i}, v{al[i]}, v{g.ca+i}')
            a(f'v_fmac_f32 v{t+i}, v{g.rs[rb]}, v{g.sa+i}')
        oo = SB + 60 + 10 * rb
        for i in range(n):
            a(f'v_cvt_pk_bf16_f32 v{oo+i}, v{t+2*i}, v{t+2*i+1}')
        tr_write(a, g, rb, oo)
    tr_read(a, g, SB)
    for t_ in range(g.nt):
        a(f's_waitcnt lgkmcnt({g.nt-1-t_})')
        a(f'buffer_store_dwordx4 v[{SB+4*t_}:{SB+4*t_+3}], v{g.tg[t_]}, s[24:27], s36 offen')


def res_pre0(goff, xsrd):
    def pre(a, c, g):
        R = g.R
        row_sgpr(a, g)
        tr_setup(a, g, 's38', D * 2)
        n = 4 * g.nt
        g.ga = R.alloc(2 * n, 4); g.x = R.alloc(2 * n, 4)
        a(f's_mov_b32 s61, {goff}')
        for t in range(g.nt):
            a(f'buffer_load_dwordx4 v[{g.ga+n+4*t}:{g.ga+n+4*t+3}], v{g.tc[t]}, s[20:23], s61 offen')
            g.issued.append(10**6)
        for t in range(g.nt):
            a(f'buffer_load_dwordx4 v[{g.x+n+4*t}:{g.x+n+4*t+3}], v{g.tg[t]}, s[{xsrd}:{xsrd+3}], 0 offen')
            g.issued.append(10**6)
        f = Rec(g)
        unpack_inplace(f, g.ga, n)
        unpack_inplace(f, g.x, n)
    return pre

def res_round(a, g, t, Y, yf, u, o):
    unpack(a, Y + 4 * t, yf, 4)
    for i in range(0, 8, 2):
        a(f'v_pk_mul_f32 v[{yf+i}:{yf+i+1}], v[{yf+i}:{yf+i+1}], v[{g.ga+8*t+i}:{g.ga+8*t+i+1}]')
    for i in range(4):
        a(f'v_cvt_pk_bf16_f32 v{u+i}, v{yf+2*i}, v{yf+2*i+1}')
    unpack(a, u, yf, 4)
    for i in range(0, 8, 2):
        a(f'v_pk_add_f32 v[{yf+i}:{yf+i+1}], v[{yf+i}:{yf+i+1}], v[{g.x+8*t+i}:{g.x+8*t+i+1}]')
    for i in range(4):
        a(f'v_cvt_pk_bf16_f32 v{o+i}, v{yf+2*i}, v{yf+2*i+1}')

def res_epi(osrd):
    def epi(a, c, g):
        SB = g.SB
        n = 2 * g.NB
        al = acc_list(g, 0)
        for i in range(n):
            a(f'v_cvt_pk_bf16_f32 v{SB+i}, v{al[2*i]}, v{al[2*i+1]}')
        tr_write(a, g, 0, SB)
        Y = SB + 12
        tr_read(a, g, Y)
        T = SB + 24
        for t in range(g.nt):
            a(f's_waitcnt lgkmcnt({g.nt-1-t})')
            o = T + 20 + 4 * t
            res_round(a, g, t, Y, T, T + 16, o)
            a(f'buffer_store_dwordx4 v[{o}:{o+3}], v{g.tg[t]}, s[{osrd}:{osrd+3}], 0 offen')
    return epi

def l2_pre1(a, c, g):
    res_pre0(2 * D * 2, 16)(a, c, g)
    R = g.R
    n = 4 * g.nt
    g.cb = R.alloc(2 * n, 4); g.ft = R.alloc()
    a('s_mov_b32 s61, 5120')
    for t in range(g.nt):
        a(f'buffer_load_dwordx4 v[{g.cb+n+4*t}:{g.cb+n+4*t+3}], v{g.tc[t]}, s[20:23], s61 offen')
        g.issued.append(10**6)
    f = Rec(g)
    unpack_inplace(f, g.cb, n)
    plus1_round(f, g.cb, 2 * n, g.ft)

def l2_epi(a, c, g):
    SB = g.SB
    n = 2 * g.NB
    al = acc_list(g, 0)
    for i in range(n):
        a(f'v_cvt_pk_bf16_f32 v{SB+i}, v{al[2*i]}, v{al[2*i+1]}')
    tr_write(a, g, 0, SB)
    Y = SB + 12
    tr_read(a, g, Y)
    T = SB + 24
    vs = g.tmp[0]
    a('s_lshl_b32 s57, s40, 11')
    a('s_add_u32 s57, s57, 49152')
    a(f'v_lshl_add_u32 v{vs}, v{g.vlane}, 3, s57')
    for t in range(g.nt):
        a(f's_waitcnt lgkmcnt({g.nt-1})')
        yf, gf, u = T, T + 8, T + 16
        o = T + 20 + 8 * t
        res_round(a, g, t, Y, yf, u, o)
        a(f'buffer_store_dwordx4 v[{o}:{o+3}], v{g.tg[t]}, s[24:27], 0 offen')
        unpack(a, o, yf, 4)
        for i in range(0, 8, 2):
            a(f'v_pk_mul_f32 v[{gf+i}:{gf+i+1}], v[{yf+i}:{yf+i+1}], v[{g.cb+8*t+i}:{g.cb+8*t+i+1}]')
        z = o + 4
        for i in range(4):
            a(f'v_cvt_pk_bf16_f32 v{z+i}, v{gf+2*i}, v{gf+2*i+1}')
        a(f'buffer_store_dwordx4 v[{z}:{z+3}], v{g.tg[t]}, s[28:31], 0 offen')
        st = T + 16
        a(f'v_pk_add_f32 v[{gf}:{gf+1}], v[{yf}:{yf+1}], v[{yf+2}:{yf+3}]')
        a(f'v_pk_add_f32 v[{gf+2}:{gf+3}], v[{yf+4}:{yf+5}], v[{yf+6}:{yf+7}]')
        a(f'v_pk_add_f32 v[{gf}:{gf+1}], v[{gf}:{gf+1}], v[{gf+2}:{gf+3}]')
        a(f'v_add_f32 v{st}, v{gf}, v{gf+1}')
        a(f'v_mul_f32 v{st+2}, 0x3e000000, v{st}')
        a(f'v_mov_b32 v{st+3}, v{st+2}')
        for i in range(0, 8, 2):
            a(f'v_pk_add_f32 v[{yf+i}:{yf+i+1}], v[{yf+i}:{yf+i+1}], v[{st+2}:{st+3}] neg_lo:[0,1] neg_hi:[0,1]')
        a(f'v_pk_mul_f32 v[{gf}:{gf+1}], v[{yf}:{yf+1}], v[{yf}:{yf+1}]')
        for i in range(2, 8, 2):
            a(f'v_pk_fma_f32 v[{gf}:{gf+1}], v[{yf+i}:{yf+i+1}], v[{yf+i}:{yf+i+1}], v[{gf}:{gf+1}]')
        a(f'v_add_f32 v{st+1}, v{gf}, v{gf+1}')
        a(f'ds_write_b64 v{vs}, v[{st}:{st+1}] offset:{512*t}')
    a('s_waitcnt lgkmcnt(0)')
    vr = g.tmp[1]
    a(f'v_mul_u32_u24 v{vr}, 80, v{g.vi16}')
    a(f'v_add_u32 v{vr}, s57, v{vr}')
    E = SB
    for j in range(5):
        a(f'ds_read_b128 v[{E+4*j}:{E+4*j+3}], v{vr} offset:{16*j}')
    a('s_waitcnt lgkmcnt(0)')
    Sg, M, mu, d = SB + 20, SB + 21, SB + 22, SB + 23
    a(f'v_add_f32 v{Sg}, v{E}, v{E+2}')
    a(f'v_add_f32 v{M}, v{E+1}, v{E+3}')
    for j in range(2, 10):
        a(f'v_add_f32 v{Sg}, v{Sg}, v{E+2*j}')
        a(f'v_add_f32 v{M}, v{M}, v{E+2*j+1}')
    a(f'v_mul_f32 v{mu}, 0x3c4ccccd, v{Sg}')
    a(f'v_mov_b32 v{SB+24}, 0')
    for j in range(10):
        a(f'v_fma_f32 v{d}, v{E+2*j}, 0.125, -v{mu}') if False else None
        a(f'v_mul_f32 v{d}, 0x3e000000, v{E+2*j}')
        a(f'v_sub_f32 v{d}, v{d}, v{mu}')
        a(f'v_fmac_f32 v{SB+24}, v{d}, v{d}')
    a(f'v_mov_b32 v{d}, 0x41000000')
    a(f'v_fmac_f32 v{M}, v{d}, v{SB+24}')
    a(f'v_add_u32 v{vr}, s38, v{g.vi16}')
    a(f'v_lshlrev_b32 v{vr}, 6, v{vr}')
    a('s_lshl_b32 s57, s42, 3')
    a(f'v_add_u32 v{vr}, s57, v{vr}')
    a(f'v_cmp_gt_u32 vcc, 16, v{g.vlane}')
    a(f'v_mov_b32 v{d}, 0x7ffffff0')
    a('s_nop 1')
    a(f'v_cndmask_b32 v{vr}, v{d}, v{vr}, vcc')
    srd(a, 60, 4, WS_ST, S * 64)
    a(f'buffer_store_dwordx2 v[{Sg}:{Sg+1}], v{vr}, s[60:63], 0 offen')

class Lst:
    def __init__(self):
        self.l = []
    def __call__(self, s):
        self.l.append(s)

def l2_hpre(a, c, g):
    vl = g.vlane
    srd(a, 72, 4, WS_W1T, F * D * 2)
    srd(a, 76, 4, WS_UW, 2 * F * 4)
    a(f'v_lshlrev_b32 v20, 4, v{vl}')
    a('v_add_u32 v21, 1024, v20')
    a(f'v_cmp_gt_u32 vcc, 16, v{vl}')
    a('v_mov_b32 v22, 0x7ffffff0')
    a('s_nop 1')
    a('v_cndmask_b32 v21, v22, v21, vcc')
    a('s_mov_b32 s80, 5120')
    a('s_mov_b32 s81, 3840')
    CBr, SBr, Wr = 24, 32, 40
    a(f'buffer_load_dwordx4 v[{CBr}:{CBr+3}], v20, s[20:23], s80 offen')
    a(f'buffer_load_dwordx4 v[{CBr+4}:{CBr+7}], v21, s[20:23], s80 offen')
    a(f'buffer_load_dwordx4 v[{SBr}:{SBr+3}], v20, s[20:23], s81 offen')
    a(f'buffer_load_dwordx4 v[{SBr+4}:{SBr+7}], v21, s[20:23], s81 offen')
    a('s_cmp_lt_u32 s50, 2')
    a('s_cselect_b32 s85, 4, 2')
    a('s_mul_i32 s82, s2, 6')
    a('s_add_u32 s82, s82, s50')
    a('s_mul_i32 s83, s82, 1280')
    a(f'buffer_load_dwordx4 v[{Wr}:{Wr+3}], v20, s[72:75], s83 offen')
    a(f'buffer_load_dwordx4 v[{Wr+4}:{Wr+7}], v21, s[72:75], s83 offen')
    a('s_add_u32 s83, s83, 5120')
    a(f'buffer_load_dwordx4 v[{Wr+8}:{Wr+11}], v20, s[72:75], s83 offen')
    a(f'buffer_load_dwordx4 v[{Wr+12}:{Wr+15}], v21, s[72:75], s83 offen')
    return 8

def l2_htail(c, g):
    vl = g.vlane
    CBr, SBr, Wr = 24, 32, 40
    CF, SF, WF, AC = 60, 76, 92, 108
    c0, c1, c2 = Lst(), Lst(), Lst()
    a = c0
    unpack(a, CBr, CF, 8)
    plus1_round(a, CF, 16, 23)
    unpack(a, SBr, SF, 8)
    a = c1
    for r in range(2):
        unpack(a, Wr + 8 * r, WF, 8)
        a(f'v_mul_f32 v{AC+2*r}, v{CF}, v{WF}')
        a(f'v_mul_f32 v{AC+2*r+1}, v{SF}, v{WF}')
        for i in range(1, 16):
            a(f'v_fmac_f32 v{AC+2*r}, v{CF+i}, v{WF+i}')
            a(f'v_fmac_f32 v{AC+2*r+1}, v{SF+i}, v{WF+i}')
    a('s_lshl_b32 s84, s50, 10')
    a(f's_add_u32 s84, s84, {g.XTRA}')
    a(f'v_lshl_add_u32 v20, v{vl}, 2, s84')
    for v in range(4):
        a(f'ds_write_b32 v20, v{AC+v} offset:{256*v}')
    a('s_waitcnt lgkmcnt(0)')
    a(f'v_and_b32 v21, 3, v{vl}')
    a('v_lshlrev_b32 v22, 8, v21')
    a('v_add_u32 v22, s84, v22')
    for j in range(16):
        a(f'ds_read_b128 v[{24+4*j}:{27+4*j}], v22 offset:{16*j}')
    a = c2
    a('s_waitcnt lgkmcnt(0)')
    for j in range(1, 64):
        a(f'v_add_f32 v24, v24, v{24+j}')
    a(f'v_and_b32 v20, 1, v{vl}')
    a('v_mul_u32_u24 v20, 6144, v20')
    a(f'v_lshrrev_b32 v21, 1, v{vl}')
    a('v_lshlrev_b32 v21, 2, v21')
    a('v_add_u32 v21, s82, v21')
    a('v_lshl_add_u32 v20, v21, 2, v20')
    a(f'v_cmp_gt_u32 vcc, s85, v{vl}')
    a('v_mov_b32 v22, 0x7ffffff0')
    a('s_nop 1')
    a('v_cndmask_b32 v20, v22, v20, vcc')
    a('buffer_store_dword v24, v20, s[76:79], 0 offen')
    return [c0.l, c1.l, c2.l]

def l2_setup(a, c):
    srd(a, 20, 4, WS_MOD, 6 * D * 2)
    srd(a, 24, 4, WS_X1, S * D * 2)
    srd(a, 16, 30, 0, S * D * 2)
    srd(a, 28, 4, WS_H2, S * D * 2)

L2 = dict(NWG=256, MPX=4, NT=8, WM=2, WK=2, NB=5, NST=10, BK=64, NBUF=4, lda=2 * D * 2, ldb=2 * D * 2, a_goff=D * 2, b_goff=D * 2,
          kargs=[(30, 'x')], setup=l2_setup, setup_m=setup_m(6), setup_ab=setup_ab(WS_PQ, S * 2 * D * 2, WS_CSH, D * 2 * D * 2), pre0=nop, pre1=l2_pre1, GAP=1, NPRE=3, FPG=5, epi=l2_epi,  ka_bytes=2560, kb_bytes=2560, rot=(1, 3))

def l3_setup(a, c):
    srd(a, 24, 4, WS_HH, S * F * 2)

def l3_pre1(a, c, g):
    row_sgpr(a, g)
    tr_setup(a, g, 's38', F * 2)

def l3_hpre(a, c, g):
    vl = g.vlane
    srd(a, 72, 4, WS_ST, S * 64)
    srd(a, 76, 4, WS_UW, 2 * F * 4)
    a('s_lshl_b32 s80, s50, 5')
    a('s_add_u32 s80, s80, s47')
    a(f'v_and_b32 v20, 31, v{vl}')
    a('v_add_u32 v20, s80, v20')
    a('v_lshlrev_b32 v20, 6, v20')
    for j in range(4):
        a(f'buffer_load_dwordx4 v[{24+4*j}:{27+4*j}], v20, s[72:75], 0 offen offset:{16*j}')
    a('s_lshl_b32 s81, s44, 2')
    a(f'v_lshl_add_u32 v21, v{vl}, 4, s81')
    a('s_mov_b32 s82, 6144')
    a('buffer_load_dwordx4 v[48:51], v21, s[76:79], 0 offen')
    a('buffer_load_dwordx4 v[52:55], v21, s[76:79], s82 offen')
    return 6

def l3_htail(c, g):
    vl = g.vlane
    c0 = Lst()
    a = c0
    E = 24
    Sg, M, mu, d, q = 60, 61, 62, 63, 64
    a(f'v_add_f32 v{Sg}, v{E}, v{E+2}')
    a(f'v_add_f32 v{M}, v{E+1}, v{E+3}')
    for j in range(2, 8):
        a(f'v_add_f32 v{Sg}, v{Sg}, v{E+2*j}')
        a(f'v_add_f32 v{M}, v{M}, v{E+2*j+1}')
    a(f'v_mul_f32 v{mu}, 0x3acccccd, v{Sg}')
    a(f'v_mov_b32 v{q}, 0')
    for j in range(8):
        a(f'v_mul_f32 v{d}, 0x3c4ccccd, v{E+2*j}')
        a(f'v_sub_f32 v{d}, v{d}, v{mu}')
        a(f'v_fmac_f32 v{q}, v{d}, v{d}')
    a(f'v_mov_b32 v{d}, 0x42a00000')
    a(f'v_fmac_f32 v{M}, v{d}, v{q}')
    a(f'v_mul_f32 v{M}, 0x3acccccd, v{M}')
    a(f'v_cvt_pk_bf16_f32 v{d}, v{mu}, v{M}')
    a(f'v_lshlrev_b32 v67, 16, v{d}')
    a(f'v_and_b32 v{M}, {MASK}, v{d}')
    a(f'v_add_f32 v{M}, 0x3727c5ac, v{M}')
    a(f'v_cvt_pk_bf16_f32 v{M}, v{M}, v{M}')
    a(f'v_lshlrev_b32 v{M}, 16, v{M}')
    a(f'v_sqrt_f32 v{M}, v{M}')
    a('s_nop 0')
    a(f'v_cvt_pk_bf16_f32 v{M}, v{M}, v{M}')
    a(f'v_lshlrev_b32 v{M}, 16, v{M}')
    a(f'v_rcp_f32 v66, v{M}')
    a('s_nop 0')
    a('s_lshl_b32 s83, s50, 8')
    a(f's_add_u32 s83, s83, {g.XTRA}')
    a(f'v_and_b32 v20, 31, v{vl}')
    a('v_lshl_add_u32 v20, v20, 3, s83')
    a('ds_write_b64 v20, v[66:67]')
    a(f'v_lshlrev_b32 v21, 4, v{vl}')
    a(f'v_add_u32 v21, {g.XTRA + 1024}, v21')
    a('ds_write_b128 v21, v[48:51]')
    a('ds_write_b128 v21, v[52:55] offset:1024')
    return [c0.l]

def l3_epi(a, c, g):
    SB = g.SB
    n = 2 * g.NB
    vt0, vt1, vt2 = g.tmp
    a('s_lshl_b32 s57, s45, 8')
    a(f's_add_u32 s57, s57, {g.XTRA}')
    a(f'v_lshl_add_u32 v{vt0}, v{g.vi16}, 3, s57')
    a(f'v_lshlrev_b32 v{vt1}, 4, v{g.vg}')
    a(f'v_add_u32 v{vt1}, {g.XTRA + 1024}, v{vt1}')
    STt = SB + 64
    a(f'ds_read_b64 v[{STt}:{STt+1}], v{vt0}')
    a(f'ds_read_b64 v[{STt+2}:{STt+3}], v{vt0} offset:128')
    U, W = SB, SB + 24
    for nb in range(g.NB):
        a(f'ds_read_b128 v[{U+4*nb}:{U+4*nb+3}], v{vt1} offset:{64*nb}')
        a(f'ds_read_b128 v[{W+4*nb}:{W+4*nb+3}], v{vt1} offset:{1024+64*nb}')
    a('s_waitcnt lgkmcnt(0)')
    for rb in g.rbs:
        al = acc_list(g, rb)
        for i, r in enumerate(al):
            a(f'v_fma_f32 v{r}, -v{STt+2*rb+1}, v{U+i}, v{r}')
            a(f'v_fma_f32 v{r}, v{STt+2*rb}, v{r}, v{W+i}')
            a(f'v_max_f32 v{r}, 0, v{r}')
        oo = SB + 48 + 12 * rb
        oo = SB + 68 if rb else SB + 48
        for i in range(n):
            a(f'v_cvt_pk_bf16_f32 v{oo+i}, v{al[2*i]}, v{al[2*i+1]}')
        tr_write(a, g, rb, oo)
    tr_read(a, g, SB)
    for t_ in range(g.nt):
        a(f's_waitcnt lgkmcnt({g.nt-1-t_})')
        a(f'buffer_store_dwordx4 v[{SB+4*t_}:{SB+4*t_+3}], v{g.tg[t_]}, s[24:27], 0 offen')

L3 = dict(NWG=256, MPX=2, NT=16, WM=4, WK=1, NB=6, NST=10, BK=64, NBUF=5, lda=D * 2, ldb=D * 2, a_goff=0, b_goff=0,
          kargs=[], setup=l3_setup, setup_m=setup_m(7), setup_ab=setup_ab(WS_H2, S * D * 2, WS_W1T, F * D * 2), pre0=nop, pre1=l3_pre1, GAP=1, NPRE=3, epi=l3_epi, h_pre=l3_hpre, h_tail=l3_htail, h_start=5, h_chunk=20, h_final_barrier=1, lds_extra=4096, ka_bytes=1280, kb_bytes=1280, rot=(1, 5))

def l4_setup(a, c):
    srd(a, 20, 4, WS_MOD, 6 * D * 2)
    srd(a, 24, 30, 0, S * D * 2)
    srd(a, 16, 4, WS_X1, S * D * 2)

L4 = dict(NWG=256, MPX=4, NT=8, WM=2, WK=2, NB=5, NST=12, BK=64, NBUF=4, lda=F * 2, ldb=F * 2, a_goff=F, b_goff=F,
          kargs=[(30, 'out')], setup=l4_setup, setup_m=setup_m(6), setup_ab=setup_ab(WS_HH, S * F * 2, WS_W2T, F * D * 2), pre0=nop, pre1=res_pre0(5 * D * 2, 16), GAP=1, NPRE=3, FPG=3, epi=res_epi(24), helper=False, ka_bytes=3072, kb_bytes=3072, rot=(1, 3))

L1 = dict(NWG=256, MPX=4, NT=8, WM=4, WK=1, NB=5, NST=32, BK=64, NBUF=6, PRE0=3, lda=S * 2, ldb=S * 2, a_goff=0, b_goff=0,
          kargs=[(30, 'cs'), (32, 'ss')], setup=l1_setup, setup_m=l1_setup_m, setup_ab=l1_setup_ab, pre0=nop, pre1=l1_pre1, epi=l1_epi, rowsum=True, a_nt=(os.environ.get('ANT', '0') == '1'), h_pre=l2_hpre, h_tail=l2_htail, h_start=8, h_chunk=20, lds_extra=4096, helper=False, ka_bytes=4096, kb_bytes=4096, rot=(2, 5))

def main(out, stamp=False):
    for L in (L1, L2, L3, L4):
        L['stamp'] = stamp
        L['rot'] = None
        L['fine'] = int(stamp) if stamp else 0
    hdr = open('adaLN_cond__spectral_fnet__dense_activation_relu__prompt.s.ref').read().split('\n')
    hdr = [l for l in hdr if l.startswith(';') and '@launch' not in l and 'Override' not in l and 'grid=ceil' not in l]
    a = Asm()
    descs = []
    launches = []
    nv = gen_k0(a, 'k0_kernel'); descs.append(kernel_desc('k0_kernel', nv)); launches.append(('k0_kernel', K0_GRID, K0_LDS))
    nv, lds = gen_gemm(a, 'l1_kernel', L1); descs.append(kernel_desc('l1_kernel', nv, 102)); launches.append(('l1_kernel', 256, lds))
    nv, lds = gen_gemm(a, 'l2_kernel', L2); descs.append(kernel_desc('l2_kernel', nv, 102)); launches.append(('l2_kernel', 256, lds))
    nv, lds = gen_gemm(a, 'l3_kernel', L3); descs.append(kernel_desc('l3_kernel', nv, 102)); launches.append(('l3_kernel', 256, lds))
    nv, lds = gen_gemm(a, 'l4_kernel', L4); descs.append(kernel_desc('l4_kernel', nv, 102)); launches.append(('l4_kernel', 256, lds))
    txt = '\n'.join(hdr) + '\n'
    for (k, g, l) in launches:
        blk = 256 if k[0] == 'k' else 512
        txt += f'; @launch kernel={k} grid=({g},1,1) block=({blk},1,1) lds={l}\n'
    txt += '.amdgcn_target "amdgcn-amd-amdhsa--gfx950"\n.text\n'
    txt += a.text()
    txt += '.section .rodata,"a"\n'
    txt += ''.join(descs)
    open(out, 'w').write(txt)

if __name__ == '__main__':
    main(sys.argv[1] if len(sys.argv) > 1 else 'adaLN_cond__spectral_fnet__dense_activation_relu__prompt.s', stamp=(sys.argv[2] if len(sys.argv) > 2 else False))
```

```python
from common import *

K0_NMOD = 120
K0_NLN = 64
K0_NTR = 240
K0_NCP = 80
import os
K0_PFL = int(os.environ.get('PFL', '32'))
K0_NPF = 2048 * K0_PFL // 256
K0_NT = os.environ.get('K0NT', '0') == '1'
K0_GRID = K0_NMOD + K0_NLN + 2 * K0_NTR + K0_NCP + K0_NPF
K0_LDS = 40960

def dpp_allreduce16(a, v, tmp):
    for r in (8, 4, 2, 1):
        a('s_nop 1')
        a(f'v_add_f32_dpp v{tmp}, v{v}, v{v} row_ror:{r} row_mask:0xf bank_mask:0xf')
        a(f'v_mov_b32 v{v}, v{tmp}')

def gen_k0(a, name):
    l0 = len(a.lines)
    kernel_header(a, name)
    a(f's_cmp_ge_u32 s2, {K0_GRID}')
    a('s_cbranch_scc1 k0_end')
    a(f's_load_dwordx2 s[4:5], s[0:1], {KA["ws"]}')
    a(f's_cmp_lt_u32 s2, {K0_NMOD}')
    a('s_cbranch_scc1 k0_mod')
    a(f's_cmp_lt_u32 s2, {K0_NMOD+K0_NLN}')
    a('s_cbranch_scc1 k0_ln')
    a(f's_cmp_ge_u32 s2, {K0_NMOD+K0_NLN+2*K0_NTR+K0_NCP}')
    a('s_cbranch_scc1 k0_pf')
    a(f's_cmp_ge_u32 s2, {K0_NMOD+K0_NLN+2*K0_NTR}')
    a('s_cbranch_scc1 k0_cp')
    a(f's_load_dwordx2 s[6:7], s[0:1], {KA["w1"]}')
    a(f's_load_dwordx2 s[8:9], s[0:1], {KA["w2"]}')
    a(f's_sub_u32 s3, s2, {K0_NMOD+K0_NLN}')
    a('s_waitcnt lgkmcnt(0)')
    a(f's_cmp_lt_u32 s3, {K0_NTR}')
    a('s_cbranch_scc1 k0_tr_w1')
    a(f's_sub_u32 s3, s3, {K0_NTR}')
    srd(a, 12, 8, 0, F * D * 2)
    srd(a, 16, 4, WS_W2T, F * D * 2)
    a('s_mul_i32 s20, s3, 6554')
    a('s_lshr_b32 s20, s20, 16')
    a('s_mul_i32 s21, s20, 10')
    a('s_sub_u32 s21, s3, s21')
    a(f's_mov_b32 s22, {D*2}')
    a(f's_mov_b32 s23, {F*2}')
    a('s_branch k0_tr_go')
    a.label('k0_tr_w1')
    srd(a, 12, 6, 0, F * D * 2)
    srd(a, 16, 4, WS_W1T, F * D * 2)
    a('s_mul_i32 s20, s3, 2731')
    a('s_lshr_b32 s20, s20, 16')
    a('s_mul_i32 s21, s20, 24')
    a('s_sub_u32 s21, s3, s21')
    a(f's_mov_b32 s22, {F*2}')
    a(f's_mov_b32 s23, {D*2}')
    a.label('k0_tr_go')
    a('v_lshrrev_b32 v1, 3, v0')
    a('v_and_b32 v2, 7, v0')
    a('s_lshl_b32 s24, s20, 6')
    a('v_add_u32 v3, s24, v1')
    a('v_mul_lo_u32 v3, v3, s22')
    a('s_lshl_b32 s25, s21, 7')
    a('v_lshlrev_b32 v4, 4, v2')
    a('v_add3_u32 v3, v3, v4, s25')
    a('s_lshl_b32 s26, s22, 5')
    a('buffer_load_dwordx4 v[8:11], v3, s[12:15], 0 offen')
    a('buffer_load_dwordx4 v[12:15], v3, s[12:15], s26 offen')
    a('v_mul_u32_u24 v5, 1056, v2')
    a('v_lshl_add_u32 v5, v1, 1, v5')
    a('s_waitcnt vmcnt(1)')
    for p in range(2):
        if p == 1:
            a('s_waitcnt vmcnt(0)')
        for q in range(4):
            reg = 8 + 4 * p + q
            a(f'ds_write_b16 v5, v{reg} offset:{(2*q)*132 + p*64}')
            a(f'ds_write_b16_d16_hi v5, v{reg} offset:{(2*q+1)*132 + p*64}')
    a('s_waitcnt lgkmcnt(0)')
    a('s_barrier')
    a('v_lshrrev_b32 v1, 2, v0')
    a('v_and_b32 v2, 3, v0')
    a('v_mul_u32_u24 v5, 132, v1')
    a('v_lshl_add_u32 v5, v2, 5, v5')
    for q in range(4):
        a(f'ds_read2_b32 v[{8+2*q}:{9+2*q}], v5 offset0:{2*q} offset1:{2*q+1}')
    a('s_lshl_b32 s24, s21, 6')
    a('v_add_u32 v3, s24, v1')
    a('v_mul_lo_u32 v3, v3, s23')
    a('s_lshl_b32 s25, s20, 7')
    a('v_lshlrev_b32 v4, 5, v2')
    a('v_add3_u32 v3, v3, v4, s25')
    a('s_waitcnt lgkmcnt(0)')
    a('buffer_store_dwordx4 v[8:11], v3, s[16:19], 0 offen')
    a('buffer_store_dwordx4 v[12:15], v3, s[16:19], 0 offen offset:16')
    a('s_endpgm')

    a.label('k0_pf')
    a(f's_load_dwordx2 s[6:7], s[0:1], {KA["cs"]}')
    a(f's_load_dwordx2 s[8:9], s[0:1], {KA["ss"]}')
    a(f's_sub_u32 s3, s2, {K0_NMOD+K0_NLN+2*K0_NTR+K0_NCP}')
    assert K0_PFL in (0, 32) and (K0_NMOD+K0_NLN+2*K0_NTR+K0_NCP) % 8 == 0
    a('s_and_b32 s20, s3, 7')
    a('s_lshr_b32 s21, s3, 3')
    a('s_lshl_b32 s20, s20, 5')
    a('s_add_u32 s3, s20, s21')
    a('s_lshl_b32 s3, s3, 15')
    a('v_lshlrev_b32 v1, 7, v0')
    a('v_add_u32 v1, s3, v1')
    a('s_waitcnt lgkmcnt(0)')
    srd(a, 12, 6, 0, S * S * 2)
    srd(a, 16, 8, 0, S * S * 2)
    a('buffer_load_dword v2, v1, s[12:15], 0 offen')
    a('buffer_load_dword v3, v1, s[16:19], 0 offen')
    a('s_waitcnt vmcnt(0)')
    a('s_endpgm')

    a.label('k0_cp')
    a(f's_load_dwordx2 s[6:7], s[0:1], {KA["ch"]}')
    a(f's_load_dwordx2 s[8:9], s[0:1], {KA["sh"]}')
    a(f's_sub_u32 s3, s2, {K0_NMOD+K0_NLN+2*K0_NTR}')
    a('s_waitcnt lgkmcnt(0)')
    a('s_cmp_ge_u32 s3, 40')
    a('s_cselect_b32 s6, s8, s6')
    a('s_cselect_b32 s7, s9, s7')
    a('s_cselect_b32 s20, 1280, 0')
    a('s_cselect_b32 s21, 40, 0')
    a('s_sub_u32 s3, s3, s21')
    srd(a, 12, 6, 0, D * D * 2)
    srd(a, 16, 4, WS_CSH, D * 2 * D * 2)
    a('s_mul_i32 s22, s3, 16*1280')
    a('s_mul_i32 s23, s3, 16*2560')
    a('s_add_u32 s23, s23, s20')
    a('s_mov_b32 s24, 52429')
    for t in range(5):
        a(f'v_add_u32 v1, {256*t}, v0')
        a(f'v_mul_lo_u32 v2, v1, s24')
        a(f'v_lshrrev_b32 v2, 22, v2')
        a(f'v_lshl_add_u32 v{30+t}, v1, 4, s22')
        a(f'v_mul_u32_u24 v3, 1280, v2')
        a(f'v_lshl_add_u32 v{40+t}, v1, 4, v3')
        a(f'v_add_u32 v{40+t}, s23, v{40+t}')
        a(f'buffer_load_dwordx4 v[{8+4*t}:{11+4*t}], v{30+t}, s[12:15], 0 offen')
    for t in range(5):
        a(f's_waitcnt vmcnt({4-t})')
        a(f'buffer_store_dwordx4 v[{8+4*t}:{11+4*t}], v{40+t}, s[16:19], 0 offen')
    a('s_endpgm')

    a.label('k0_mod')
    a(f's_load_dwordx2 s[6:7], s[0:1], {KA["c"]}')
    a(f's_load_dwordx2 s[8:9], s[0:1], {KA["wmod"]}')
    a('v_and_b32 v1, 3, v0')
    a('v_lshrrev_b32 v2, 2, v0')
    a('v_lshlrev_b32 v3, 1, v2')
    a('v_mul_u32_u24 v4, 7680, v2')
    a('v_lshl_add_u32 v4, v1, 4, v4')
    a('s_lshl_b32 s3, s2, 6')
    a('v_add_u32 v4, s3, v4')
    a('s_waitcnt lgkmcnt(0)')
    srd(a, 12, 6, 0, D * 2)
    srd(a, 16, 8, 0, D * 6 * D * 2)
    srd(a, 20, 4, WS_MOD, 6 * D * 2)
    CB = 10
    WB = 20
    AC = 60
    T0 = 70
    for j in range(10):
        a(f'buffer_load_ushort v{CB+j}, v3, s[12:15], 0 offen offset:{j*128}')
    for j in range(10):
        a(f's_mov_b32 s24, {j*64*7680}')
        a(f'buffer_load_dwordx4 v[{WB+4*j}:{WB+4*j+3}], v4, s[16:19], s24 offen')
    for e in range(8):
        a(f'v_mov_b32 v{AC+e}, 0')
    a('s_waitcnt vmcnt(10)')
    for j in range(10):
        a(f'v_lshlrev_b32 v{CB+j}, 16, v{CB+j}')
    for j in range(10):
        a(f'v_mul_f32 v{T0+j}, 0xbfb8aa3b, v{CB+j}')
    for j in range(10):
        a(f'v_exp_f32 v{T0+j}, v{T0+j}')
    a('s_nop 0')
    for j in range(10):
        a(f'v_add_f32 v{T0+j}, 1.0, v{T0+j}')
    for j in range(10):
        a(f'v_rcp_f32 v{T0+j}, v{T0+j}')
    a('s_nop 0')
    for j in range(10):
        a(f'v_mul_f32 v{CB+j}, v{CB+j}, v{T0+j}')
    for j in range(10):
        a(f'v_cvt_pk_bf16_f32 v{CB+j}, v{CB+j}, v{CB+j}')
    for j in range(10):
        a(f'v_lshlrev_b32 v{CB+j}, 16, v{CB+j}')
    for j in range(10):
        a(f's_waitcnt vmcnt({9-j})')
        for q in range(4):
            w = WB + 4 * j + q
            a(f'v_lshlrev_b32 v{T0}, 16, v{w}')
            a(f'v_and_b32 v{T0+1}, 0xffff0000, v{w}')
            a(f'v_fmac_f32 v{AC+2*q}, v{CB+j}, v{T0}')
            a(f'v_fmac_f32 v{AC+2*q+1}, v{CB+j}, v{T0+1}')
    a('v_lshlrev_b32 v5, 7, v2')
    a('v_lshl_add_u32 v5, v1, 5, v5')
    a(f'ds_write_b128 v5, v[{AC}:{AC+3}]')
    a(f'ds_write_b128 v5, v[{AC+4}:{AC+7}] offset:16')
    a('s_waitcnt lgkmcnt(0)')
    a('s_barrier')
    a('v_and_b32 v1, 31, v0')
    a('v_lshrrev_b32 v2, 5, v0')
    a('v_lshlrev_b32 v5, 10, v2')
    a('v_lshl_add_u32 v5, v1, 2, v5')
    for i in range(8):
        a(f'ds_read_b32 v{10+i}, v5 offset:{i*128}')
    a('s_waitcnt lgkmcnt(0)')
    for i in range(1, 8):
        a(f'v_add_f32 v10, v10, v{10+i}')
    a('v_lshlrev_b32 v5, 7, v2')
    a('v_lshl_add_u32 v5, v1, 2, v5')
    a('ds_write_b32 v5, v10 offset:8192')
    a('s_waitcnt lgkmcnt(0)')
    a('s_barrier')
    a('v_cmp_gt_u32 vcc, 32, v0')
    a('s_and_saveexec_b64 s[26:27], vcc')
    a('s_cbranch_execz k0_end')
    a('v_lshlrev_b32 v5, 2, v0')
    for i in range(8):
        a(f'ds_read_b32 v{10+i}, v5 offset:{8192+i*128}')
    a('s_waitcnt lgkmcnt(0)')
    for i in range(1, 8):
        a(f'v_add_f32 v10, v10, v{10+i}')
    a('v_cvt_pk_bf16_f32 v10, v10, v10')
    a('s_lshl_b32 s3, s2, 6')
    a('v_lshl_add_u32 v5, v0, 1, s3')
    a('buffer_store_short v10, v5, s[20:23], 0 offen')
    a('s_endpgm')

    a.label('k0_ln')
    a(f's_load_dwordx2 s[6:7], s[0:1], {KA["x"]}')
    a(f's_sub_u32 s3, s2, {K0_NMOD}')
    a('v_and_b32 v1, 15, v0')
    a('v_lshrrev_b32 v2, 4, v0')
    a('s_mul_i32 s24, s3, 32*1280')
    a('v_mul_u32_u24 v3, 2560, v2')
    a('v_lshl_add_u32 v3, v1, 4, v3')
    a('v_add_u32 v3, s24, v3')
    a('s_waitcnt lgkmcnt(0)')
    srd(a, 12, 6, 0, S * D * 2)
    srd(a, 16, 4, WS_NT, S * D * 2)
    XB = 50
    FB = 10
    ST = 90
    for p in range(2):
        for j in range(5):
            r = XB + 20 * p + 4 * j
            a(f'buffer_load_dwordx4 v[{r}:{r+3}], v3, s[12:15], 0 offen offset:{p*1280 + j*256}')
    a('s_waitcnt vmcnt(0)')
    for p in range(2):
        for i in range(20):
            r = XB + 20 * p + i
            f = FB + 40 * p + 2 * i
            assert f + 1 <= r
            a(f'v_lshlrev_b32 v{f}, 16, v{r}')
            a(f'v_and_b32 v{f+1}, 0xffff0000, v{r}')
    for p in range(2):
        sm = ST + 8 * p
        a(f'v_add_f32 v{sm}, v{FB+40*p}, v{FB+40*p+1}')
        a(f'v_add_f32 v{sm+1}, v{FB+40*p+2}, v{FB+40*p+3}')
        for i in range(4, 40, 2):
            a(f'v_add_f32 v{sm}, v{sm}, v{FB+40*p+i}')
            a(f'v_add_f32 v{sm+1}, v{sm+1}, v{FB+40*p+i+1}')
        a(f'v_add_f32 v{sm}, v{sm}, v{sm+1}')
        dpp_allreduce16(a, sm, sm + 1)
        a(f'v_mul_f32 v{sm}, 0x3acccccd, v{sm}')
        a(f'v_mov_b32 v{sm+2}, 0')
        a(f'v_mov_b32 v{sm+3}, 0')
        for i in range(0, 40, 2):
            a(f'v_sub_f32 v{sm+4}, v{FB+40*p+i}, v{sm}')
            a(f'v_sub_f32 v{sm+5}, v{FB+40*p+i+1}, v{sm}')
            a(f'v_fmac_f32 v{sm+2}, v{sm+4}, v{sm+4}')
            a(f'v_fmac_f32 v{sm+3}, v{sm+5}, v{sm+5}')
        a(f'v_add_f32 v{sm+2}, v{sm+2}, v{sm+3}')
        dpp_allreduce16(a, sm + 2, sm + 3)
        a(f'v_mul_f32 v{sm+2}, 0x3acccccd, v{sm+2}')
        a(f'v_cvt_pk_bf16_f32 v{sm+3}, v{sm}, v{sm+2}')
        a(f'v_lshlrev_b32 v{sm}, 16, v{sm+3}')
        a(f'v_and_b32 v{sm+2}, 0xffff0000, v{sm+3}')
        a(f'v_add_f32 v{sm+2}, 0x3727c5ac, v{sm+2}')
        a(f'v_cvt_pk_bf16_f32 v{sm+2}, v{sm+2}, v{sm+2}')
        a(f'v_lshlrev_b32 v{sm+2}, 16, v{sm+2}')
        a(f'v_sqrt_f32 v{sm+2}, v{sm+2}')
        a('s_nop 0')
        a(f'v_cvt_pk_bf16_f32 v{sm+2}, v{sm+2}, v{sm+2}')
        a(f'v_lshlrev_b32 v{sm+2}, 16, v{sm+2}')
        a(f'v_rcp_f32 v{sm+2}, v{sm+2}')
        a('s_nop 0')
    a('v_lshrrev_b32 v4, 2, v2')
    a('v_and_b32 v5, 3, v1')
    a('v_xor_b32 v4, v4, v5')
    a('v_lshlrev_b32 v4, 4, v4')
    a('v_and_b32 v5, 3, v2')
    a('v_lshl_add_u32 v4, v5, 2, v4')
    a('v_lshl_add_u32 v4, v1, 9, v4')
    T = 106
    for j in range(5):
        for e in range(8):
            i = j * 8 + e
            t = T + 4 * (i % 4)
            a(f'v_sub_f32 v{t}, v{FB+i}, v{ST}')
            a(f'v_sub_f32 v{t+1}, v{FB+40+i}, v{ST+8}')
            a(f'v_cvt_pk_bf16_f32 v{t+2}, v{t}, v{t+1}')
            a(f'v_lshlrev_b32 v{t}, 16, v{t+2}')
            a(f'v_and_b32 v{t+1}, 0xffff0000, v{t+2}')
            a(f'v_mul_f32 v{t}, v{t}, v{ST+2}')
            a(f'v_mul_f32 v{t+1}, v{t+1}, v{ST+8+2}')
            a(f'v_cvt_pk_bf16_f32 v{t+3}, v{t}, v{t+1}')
            a(f'ds_write_b32 v4, v{t+3} offset:{j*8192 + e*64}')
    a('s_waitcnt lgkmcnt(0)')
    a('s_barrier')
    a('v_lshlrev_b32 v4, 4, v0')
    for i in range(10):
        a(f'ds_read_b128 v[{10+4*i}:{13+4*i}], v4 offset:{i*4096}')
    a('v_lshrrev_b32 v5, 5, v0')
    a('v_xor_b32 v5, v5, v0')
    a('v_and_b32 v5, 3, v5')
    a('v_lshrrev_b32 v6, 2, v0')
    a('v_lshlrev_b32 v6, 12, v6')
    a('v_lshl_add_u32 v6, v5, 4, v6')
    a('s_lshl_b32 s24, s3, 6')
    a('v_add_u32 v6, s24, v6')
    for i in range(10):
        a(f's_mov_b32 s25, {i*262144}')
        a(f's_waitcnt lgkmcnt({9-i})')
        a(f'buffer_store_dwordx4 v[{10+4*i}:{13+4*i}], v6, s[16:19], s25 offen')
    a.label('k0_end')
    a('s_endpgm')
    if K0_NT:
        for i in range(l0, len(a.lines)):
            if 'buffer_load_dwordx4' in a.lines[i]:
                a.lines[i] += ' nt'
    return 124
```

```python
import sys, os
from common import *
from k0 import *
from gemm3 import *
import main as m1

def acc_list(g, rb):
    return [g.acc[rb][nb] + q for nb in range(g.NB) for q in range(4)]

class Rec:
    def __init__(self, g):
        self.g = g
    def __call__(self, s):
        self.g.fill.append(s)

def unpack_inplace(a, base, n):
    for i in range(n):
        a(f'v_lshlrev_b32 v{base+2*i}, 16, v{base+n+i}')
        a(f'v_and_b32 v{base+2*i+1}, {MASK}, v{base+n+i}')

def plus1_round(a, base, n2, tmp):
    for i in range(0, n2, 2):
        a(f'v_add_f32 v{base+i}, 1.0, v{base+i}')
        a(f'v_add_f32 v{base+i+1}, 1.0, v{base+i+1}')
        a(f'v_cvt_pk_bf16_f32 v{tmp}, v{base+i}, v{base+i+1}')
        a(f'v_lshlrev_b32 v{base+i}, 16, v{tmp}')
        a(f'v_and_b32 v{base+i+1}, {MASK}, v{tmp}')

def touch_next(a, g, off, nbytes):
    L = nbytes // 128
    per_w = L // 128
    R = g.R
    va, vd = R.alloc(), R.alloc()
    srd(a, 84, 4, off, nbytes)
    a('s_lshr_b32 s62, s2, 3')
    a('s_lshl_b32 s62, s62, 2')
    a('s_add_u32 s62, s62, s40')
    a(f's_mul_i32 s62, s62, {per_w*128}')
    a(f'v_lshlrev_b32 v{va}, 7, v{g.vlane}')
    a(f'v_add_u32 v{va}, s62, v{va}')
    f = Rec(g)
    for i in range((per_w + 63) // 64):
        f(f's_mov_b32 s63, {i*8192}')
        f(f'buffer_load_dword v{vd}, v{va}, s[84:87], s63 offen')

def with_touch(fn, off, nbytes):
    def h(a, c, g):
        if os.environ.get('TN', '1') == '1':
            touch_next(a, g, off, nbytes)
        fn(a, c, g)
    return h

def nop(a, c, g):
    pass

def row_sgpr(a, g):
    a('s_lshl_b32 s38, s45, 5')
    a('s_add_u32 s38, s38, s39')
    if g.WK == 2:
        a('s_lshl_b32 s37, s46, 4')
        a('s_add_u32 s38, s38, s37')

def store_rounds(a, g, src, srd_, soff='0'):
    for t in range(g.nt):
        a(f'buffer_store_dwordx4 v[{src+4*t}:{src+4*t+3}], v{g.tg[t]}, s[{srd_}:{srd_+3}], {soff} offen')

def l1_setup_m(a, c):
    a('s_and_b32 s41, s2, 7')
    a('s_lshl_b32 s41, s41, 1')
    a('s_and_b32 s47, s43, 1')
    a('s_add_u32 s41, s41, s47')
    a('s_lshr_b32 s47, s43, 1')
    a('s_lshl_b32 s47, s47, 4')
    a('s_add_u32 s41, s41, s47')
    a('s_and_b32 s47, s41, 15')
    a('s_lshl_b32 s47, s47, 7')
    a('s_mov_b32 s39, s47')

def l1_setup_ab(a, c):
    a('s_cmp_ge_u32 s41, 16')
    a('s_cselect_b32 s30, s32, s30')
    a('s_cselect_b32 s31, s33, s31')
    srd(a, 8, 30, 0, S * S * 2)
    srd(a, 12, 4, WS_NT, S * D * 2)

def l1_setup(a, c):
    a('s_cmp_ge_u32 s41, 16')
    a('s_cselect_b32 s35, 0x80000000, 0')
    a('s_cselect_b32 s36, 1280, 0')
    srd(a, 20, 4, WS_MOD, 6 * D * 2)
    srd(a, 24, 4, WS_PQ, S * 2 * D * 2)

def setup_m(sh):
    def f(a, c):
        a(f's_lshl_b32 s47, s41, {sh}')
        a('s_mov_b32 s39, s47')
    return f

def setup_ab(aoff, asz, boff, bsz):
    def f(a, c):
        srd(a, 8, 4, aoff, asz)
        srd(a, 12, 4, boff, bsz)
    return f

def l1_pre0(a, c, g):
    R = g.R
    vc = R.alloc()
    a('s_lshl_b32 s60, s44, 1')
    a(f'v_lshl_add_u32 v{vc}, v{g.vg}, 3, s60')
    g.sa = R.alloc(20, 2); g.ca = R.alloc(20, 2); g.ft = R.alloc()
    a('s_mov_b32 s61, 1280')
    for nb in range(g.NB):
        a(f'buffer_load_dwordx2 v[{g.sa+10+2*nb}:{g.sa+10+2*nb+1}], v{vc}, s[20:23], 0 offen offset:{32*nb}')
        g.issued.append(10**6)
    for nb in range(g.NB):
        a(f'buffer_load_dwordx2 v[{g.ca+10+2*nb}:{g.ca+10+2*nb+1}], v{vc}, s[20:23], s61 offen offset:{32*nb}')
        g.issued.append(10**6)
    f = Rec(g)
    unpack_inplace(f, g.sa, 10)
    unpack_inplace(f, g.ca, 10)
    plus1_round(f, g.ca, 20, g.ft)
    for i in range(20):
        f(f'v_xor_b32 v{g.ca+i}, s35, v{g.ca+i}')
        f(f'v_xor_b32 v{g.sa+i}, s35, v{g.sa+i}')

def l1_touch(a, c, g):
    nl = 32 - K0_PFL
    if nl == 0 or os.environ.get('TOUCH', '0') == '0':
        return
    vt0, vt1, vt2 = g.tmp
    per = nl // 16 if nl >= 16 else 1
    a('s_lshl_b32 s60, s42, 4')
    a('s_lshl_b32 s61, s40, 2')
    a('s_add_u32 s60, s60, s61')
    a('s_add_u32 s60, s60, s47')
    a(f'v_add_u32 v{vt0}, s60, v{g.vg}')
    a(f'v_lshlrev_b32 v{vt0}, 12, v{vt0}')
    a(f'v_lshl_add_u32 v{vt0}, v{g.vi16}, 7, v{vt0}')
    g.tdump = g.R.alloc(); g.taddr = g.R.alloc()
    a(f'v_mov_b32 v{g.taddr}, v{vt0}')
    f = Rec(g)
    for j in range((nl + 15) // 16):
        off = (K0_PFL + 16 * j) * 128
        f(f's_mov_b32 s62, {off}')
        f(f'buffer_load_dword v{g.tdump}, v{g.taddr}, s[8:11], s62 offen')

def l1_pre1(a, c, g):
    l1_touch(a, c, g)
    l1_pre0(a, c, g)
    row_sgpr(a, g)
    tr_setup(a, g, 's38', 2 * D * 2)

def l1_epi(a, c, g):
    SB = g.SB
    n = 2 * g.NB
    t = SB + 40
    for rb in g.rbs:
        al = acc_list(g, rb)
        for i in range(2 * n):
            a(f'v_mul_f32 v{t+i}, v{al[i]}, v{g.ca+i}')
            a(f'v_fmac_f32 v{t+i}, v{g.rs[rb]}, v{g.sa+i}')
        oo = SB + 60 + 10 * rb
        for i in range(n):
            a(f'v_cvt_pk_bf16_f32 v{oo+i}, v{t+2*i}, v{t+2*i+1}')
        tr_write(a, g, rb, oo)
    tr_read(a, g, SB)
    for t_ in range(g.nt):
        a(f's_waitcnt lgkmcnt({g.nt-1-t_})')
        a(f'buffer_store_dwordx4 v[{SB+4*t_}:{SB+4*t_+3}], v{g.tg[t_]}, s[24:27], s36 offen')


def res_pre0(goff, xsrd):
    def pre(a, c, g):
        R = g.R
        row_sgpr(a, g)
        tr_setup(a, g, 's38', D * 2)
        n = 4 * g.nt
        g.ga = R.alloc(2 * n, 4); g.x = R.alloc(2 * n, 4)
        a(f's_mov_b32 s61, {goff}')
        for t in range(g.nt):
            a(f'buffer_load_dwordx4 v[{g.ga+n+4*t}:{g.ga+n+4*t+3}], v{g.tc[t]}, s[20:23], s61 offen')
            g.issued.append(10**6)
        for t in range(g.nt):
            a(f'buffer_load_dwordx4 v[{g.x+n+4*t}:{g.x+n+4*t+3}], v{g.tg[t]}, s[{xsrd}:{xsrd+3}], 0 offen')
            g.issued.append(10**6)
        f = Rec(g)
        unpack_inplace(f, g.ga, n)
        unpack_inplace(f, g.x, n)
    return pre

def res_round(a, g, t, Y, yf, u, o):
    unpack(a, Y + 4 * t, yf, 4)
    for i in range(0, 8, 2):
        a(f'v_pk_mul_f32 v[{yf+i}:{yf+i+1}], v[{yf+i}:{yf+i+1}], v[{g.ga+8*t+i}:{g.ga+8*t+i+1}]')
    for i in range(4):
        a(f'v_cvt_pk_bf16_f32 v{u+i}, v{yf+2*i}, v{yf+2*i+1}')
    unpack(a, u, yf, 4)
    for i in range(0, 8, 2):
        a(f'v_pk_add_f32 v[{yf+i}:{yf+i+1}], v[{yf+i}:{yf+i+1}], v[{g.x+8*t+i}:{g.x+8*t+i+1}]')
    for i in range(4):
        a(f'v_cvt_pk_bf16_f32 v{o+i}, v{yf+2*i}, v{yf+2*i+1}')

def res_epi(osrd):
    def epi(a, c, g):
        SB = g.SB
        n = 2 * g.NB
        al = acc_list(g, 0)
        for i in range(n):
            a(f'v_cvt_pk_bf16_f32 v{SB+i}, v{al[2*i]}, v{al[2*i+1]}')
        tr_write(a, g, 0, SB)
        Y = SB + 12
        tr_read(a, g, Y)
        T = SB + 24
        for t in range(g.nt):
            a(f's_waitcnt lgkmcnt({g.nt-1-t})')
            o = T + 20 + 4 * t
            res_round(a, g, t, Y, T, T + 16, o)
            a(f'buffer_store_dwordx4 v[{o}:{o+3}], v{g.tg[t]}, s[{osrd}:{osrd+3}], 0 offen')
    return epi

def l2_pre1(a, c, g):
    res_pre0(2 * D * 2, 16)(a, c, g)
    R = g.R
    n = 4 * g.nt
    g.cb = R.alloc(2 * n, 4); g.ft = R.alloc()
    a('s_mov_b32 s61, 5120')
    for t in range(g.nt):
        a(f'buffer_load_dwordx4 v[{g.cb+n+4*t}:{g.cb+n+4*t+3}], v{g.tc[t]}, s[20:23], s61 offen')
        g.issued.append(10**6)
    f = Rec(g)
    unpack_inplace(f, g.cb, n)
    plus1_round(f, g.cb, 2 * n, g.ft)

def l2_epi(a, c, g):
    SB = g.SB
    n = 2 * g.NB
    al = acc_list(g, 0)
    for i in range(n):
        a(f'v_cvt_pk_bf16_f32 v{SB+i}, v{al[2*i]}, v{al[2*i+1]}')
    tr_write(a, g, 0, SB)
    Y = SB + 12
    tr_read(a, g, Y)
    T = SB + 24
    vs = g.tmp[0]
    a('s_lshl_b32 s57, s40, 11')
    a('s_add_u32 s57, s57, 49152')
    a(f'v_lshl_add_u32 v{vs}, v{g.vlane}, 3, s57')
    for t in range(g.nt):
        a(f's_waitcnt lgkmcnt({g.nt-1})')
        yf, gf, u = T, T + 8, T + 16
        o = T + 20 + 8 * t
        res_round(a, g, t, Y, yf, u, o)
        a(f'buffer_store_dwordx4 v[{o}:{o+3}], v{g.tg[t]}, s[24:27], 0 offen')
        unpack(a, o, yf, 4)
        for i in range(0, 8, 2):
            a(f'v_pk_mul_f32 v[{gf+i}:{gf+i+1}], v[{yf+i}:{yf+i+1}], v[{g.cb+8*t+i}:{g.cb+8*t+i+1}]')
        z = o + 4
        for i in range(4):
            a(f'v_cvt_pk_bf16_f32 v{z+i}, v{gf+2*i}, v{gf+2*i+1}')
        a(f'buffer_store_dwordx4 v[{z}:{z+3}], v{g.tg[t]}, s[28:31], 0 offen')
        st = T + 16
        a(f'v_pk_add_f32 v[{gf}:{gf+1}], v[{yf}:{yf+1}], v[{yf+2}:{yf+3}]')
        a(f'v_pk_add_f32 v[{gf+2}:{gf+3}], v[{yf+4}:{yf+5}], v[{yf+6}:{yf+7}]')
        a(f'v_pk_add_f32 v[{gf}:{gf+1}], v[{gf}:{gf+1}], v[{gf+2}:{gf+3}]')
        a(f'v_add_f32 v{st}, v{gf}, v{gf+1}')
        a(f'v_mul_f32 v{st+2}, 0x3e000000, v{st}')
        a(f'v_mov_b32 v{st+3}, v{st+2}')
        for i in range(0, 8, 2):
            a(f'v_pk_add_f32 v[{yf+i}:{yf+i+1}], v[{yf+i}:{yf+i+1}], v[{st+2}:{st+3}] neg_lo:[0,1] neg_hi:[0,1]')
        a(f'v_pk_mul_f32 v[{gf}:{gf+1}], v[{yf}:{yf+1}], v[{yf}:{yf+1}]')
        for i in range(2, 8, 2):
            a(f'v_pk_fma_f32 v[{gf}:{gf+1}], v[{yf+i}:{yf+i+1}], v[{yf+i}:{yf+i+1}], v[{gf}:{gf+1}]')
        a(f'v_add_f32 v{st+1}, v{gf}, v{gf+1}')
        a(f'ds_write_b64 v{vs}, v[{st}:{st+1}] offset:{512*t}')
    a('s_waitcnt lgkmcnt(0)')
    vr = g.tmp[1]
    a(f'v_mul_u32_u24 v{vr}, 80, v{g.vi16}')
    a(f'v_add_u32 v{vr}, s57, v{vr}')
    E = SB
    for j in range(5):
        a(f'ds_read_b128 v[{E+4*j}:{E+4*j+3}], v{vr} offset:{16*j}')
    a('s_waitcnt lgkmcnt(0)')
    Sg, M, mu, d = SB + 20, SB + 21, SB + 22, SB + 23
    a(f'v_add_f32 v{Sg}, v{E}, v{E+2}')
    a(f'v_add_f32 v{M}, v{E+1}, v{E+3}')
    for j in range(2, 10):
        a(f'v_add_f32 v{Sg}, v{Sg}, v{E+2*j}')
        a(f'v_add_f32 v{M}, v{M}, v{E+2*j+1}')
    a(f'v_mul_f32 v{mu}, 0x3c4ccccd, v{Sg}')
    a(f'v_mov_b32 v{SB+24}, 0')
    for j in range(10):
        a(f'v_fma_f32 v{d}, v{E+2*j}, 0.125, -v{mu}') if False else None
        a(f'v_mul_f32 v{d}, 0x3e000000, v{E+2*j}')
        a(f'v_sub_f32 v{d}, v{d}, v{mu}')
        a(f'v_fmac_f32 v{SB+24}, v{d}, v{d}')
    a(f'v_mov_b32 v{d}, 0x41000000')
    a(f'v_fmac_f32 v{M}, v{d}, v{SB+24}')
    a(f'v_add_u32 v{vr}, s38, v{g.vi16}')
    a(f'v_lshlrev_b32 v{vr}, 6, v{vr}')
    a('s_lshl_b32 s57, s42, 3')
    a(f'v_add_u32 v{vr}, s57, v{vr}')
    a(f'v_cmp_gt_u32 vcc, 16, v{g.vlane}')
    a(f'v_mov_b32 v{d}, 0x7ffffff0')
    a('s_nop 1')
    a(f'v_cndmask_b32 v{vr}, v{d}, v{vr}, vcc')
    srd(a, 60, 4, WS_ST, S * 64)
    a(f'buffer_store_dwordx2 v[{Sg}:{Sg+1}], v{vr}, s[60:63], 0 offen')

class Lst:
    def __init__(self):
        self.l = []
    def __call__(self, s):
        self.l.append(s)

def l2_hpre(a, c, g):
    vl = g.vlane
    srd(a, 72, 4, WS_W1T, F * D * 2)
    srd(a, 76, 4, WS_UW, 2 * F * 4)
    a(f'v_lshlrev_b32 v20, 4, v{vl}')
    a('v_add_u32 v21, 1024, v20')
    a(f'v_cmp_gt_u32 vcc, 16, v{vl}')
    a('v_mov_b32 v22, 0x7ffffff0')
    a('s_nop 1')
    a('v_cndmask_b32 v21, v22, v21, vcc')
    a('s_mov_b32 s80, 5120')
    a('s_mov_b32 s81, 3840')
    CBr, SBr, Wr = 24, 32, 40
    a(f'buffer_load_dwordx4 v[{CBr}:{CBr+3}], v20, s[20:23], s80 offen')
    a(f'buffer_load_dwordx4 v[{CBr+4}:{CBr+7}], v21, s[20:23], s80 offen')
    a(f'buffer_load_dwordx4 v[{SBr}:{SBr+3}], v20, s[20:23], s81 offen')
    a(f'buffer_load_dwordx4 v[{SBr+4}:{SBr+7}], v21, s[20:23], s81 offen')
    a('s_cmp_lt_u32 s50, 2')
    a('s_cselect_b32 s85, 4, 2')
    a('s_mul_i32 s82, s2, 6')
    a('s_add_u32 s82, s82, s50')
    a('s_mul_i32 s83, s82, 1280')
    a(f'buffer_load_dwordx4 v[{Wr}:{Wr+3}], v20, s[72:75], s83 offen')
    a(f'buffer_load_dwordx4 v[{Wr+4}:{Wr+7}], v21, s[72:75], s83 offen')
    a('s_add_u32 s83, s83, 5120')
    a(f'buffer_load_dwordx4 v[{Wr+8}:{Wr+11}], v20, s[72:75], s83 offen')
    a(f'buffer_load_dwordx4 v[{Wr+12}:{Wr+15}], v21, s[72:75], s83 offen')
    return 8

def l2_htail(c, g):
    vl = g.vlane
    CBr, SBr, Wr = 24, 32, 40
    CF, SF, WF, AC = 60, 76, 92, 108
    c0, c1, c2 = Lst(), Lst(), Lst()
    a = c0
    unpack(a, CBr, CF, 8)
    plus1_round(a, CF, 16, 23)
    unpack(a, SBr, SF, 8)
    a = c1
    for r in range(2):
        unpack(a, Wr + 8 * r, WF, 8)
        a(f'v_mul_f32 v{AC+2*r}, v{CF}, v{WF}')
        a(f'v_mul_f32 v{AC+2*r+1}, v{SF}, v{WF}')
        for i in range(1, 16):
            a(f'v_fmac_f32 v{AC+2*r}, v{CF+i}, v{WF+i}')
            a(f'v_fmac_f32 v{AC+2*r+1}, v{SF+i}, v{WF+i}')
    a('s_lshl_b32 s84, s50, 10')
    a(f's_add_u32 s84, s84, {g.XTRA}')
    a(f'v_lshl_add_u32 v20, v{vl}, 2, s84')
    for v in range(4):
        a(f'ds_write_b32 v20, v{AC+v} offset:{256*v}')
    a('s_waitcnt lgkmcnt(0)')
    a(f'v_and_b32 v21, 3, v{vl}')
    a('v_lshlrev_b32 v22, 8, v21')
    a('v_add_u32 v22, s84, v22')
    for j in range(16):
        a(f'ds_read_b128 v[{24+4*j}:{27+4*j}], v22 offset:{16*j}')
    a = c2
    a('s_waitcnt lgkmcnt(0)')
    for j in range(1, 64):
        a(f'v_add_f32 v24, v24, v{24+j}')
    a(f'v_and_b32 v20, 1, v{vl}')
    a('v_mul_u32_u24 v20, 6144, v20')
    a(f'v_lshrrev_b32 v21, 1, v{vl}')
    a('v_lshlrev_b32 v21, 2, v21')
    a('v_add_u32 v21, s82, v21')
    a('v_lshl_add_u32 v20, v21, 2, v20')
    a(f'v_cmp_gt_u32 vcc, s85, v{vl}')
    a('v_mov_b32 v22, 0x7ffffff0')
    a('s_nop 1')
    a('v_cndmask_b32 v20, v22, v20, vcc')
    a('buffer_store_dword v24, v20, s[76:79], 0 offen')
    return [c0.l, c1.l, c2.l]

def l2_setup(a, c):
    srd(a, 20, 4, WS_MOD, 6 * D * 2)
    srd(a, 24, 4, WS_X1, S * D * 2)
    srd(a, 16, 30, 0, S * D * 2)
    srd(a, 28, 4, WS_H2, S * D * 2)

L2 = dict(NWG=256, MPX=4, NT=8, WM=2, WK=2, NB=5, NST=10, BK=64, NBUF=4, lda=2 * D * 2, ldb=2 * D * 2, a_goff=D * 2, b_goff=D * 2,
          kargs=[(30, 'x')], setup=l2_setup, setup_m=setup_m(6), setup_ab=setup_ab(WS_PQ, S * 2 * D * 2, WS_CSH, D * 2 * D * 2), pre0=nop, pre1=with_touch(l2_pre1, WS_W1T, F * D * 2), GAP=1, NPRE=3, FPG=5, epi=l2_epi,  ka_bytes=2560, kb_bytes=2560, rot=(1, 3))

def l3_setup(a, c):
    srd(a, 24, 4, WS_HH, S * F * 2)

def l3_pre1(a, c, g):
    row_sgpr(a, g)
    tr_setup(a, g, 's38', F * 2)

def l3_hpre(a, c, g):
    vl = g.vlane
    srd(a, 72, 4, WS_ST, S * 64)
    srd(a, 76, 4, WS_UW, 2 * F * 4)
    a('s_lshl_b32 s80, s50, 5')
    a('s_add_u32 s80, s80, s47')
    a(f'v_and_b32 v20, 31, v{vl}')
    a('v_add_u32 v20, s80, v20')
    a('v_lshlrev_b32 v20, 6, v20')
    for j in range(4):
        a(f'buffer_load_dwordx4 v[{24+4*j}:{27+4*j}], v20, s[72:75], 0 offen offset:{16*j}')
    a('s_lshl_b32 s81, s44, 2')
    a(f'v_lshl_add_u32 v21, v{vl}, 4, s81')
    a('s_mov_b32 s82, 6144')
    a('buffer_load_dwordx4 v[48:51], v21, s[76:79], 0 offen')
    a('buffer_load_dwordx4 v[52:55], v21, s[76:79], s82 offen')
    return 6

def l3_htail(c, g):
    vl = g.vlane
    c0 = Lst()
    a = c0
    E = 24
    Sg, M, mu, d, q = 60, 61, 62, 63, 64
    a(f'v_add_f32 v{Sg}, v{E}, v{E+2}')
    a(f'v_add_f32 v{M}, v{E+1}, v{E+3}')
    for j in range(2, 8):
        a(f'v_add_f32 v{Sg}, v{Sg}, v{E+2*j}')
        a(f'v_add_f32 v{M}, v{M}, v{E+2*j+1}')
    a(f'v_mul_f32 v{mu}, 0x3acccccd, v{Sg}')
    a(f'v_mov_b32 v{q}, 0')
    for j in range(8):
        a(f'v_mul_f32 v{d}, 0x3c4ccccd, v{E+2*j}')
        a(f'v_sub_f32 v{d}, v{d}, v{mu}')
        a(f'v_fmac_f32 v{q}, v{d}, v{d}')
    a(f'v_mov_b32 v{d}, 0x42a00000')
    a(f'v_fmac_f32 v{M}, v{d}, v{q}')
    a(f'v_mul_f32 v{M}, 0x3acccccd, v{M}')
    a(f'v_cvt_pk_bf16_f32 v{d}, v{mu}, v{M}')
    a(f'v_lshlrev_b32 v67, 16, v{d}')
    a(f'v_and_b32 v{M}, {MASK}, v{d}')
    a(f'v_add_f32 v{M}, 0x3727c5ac, v{M}')
    a(f'v_cvt_pk_bf16_f32 v{M}, v{M}, v{M}')
    a(f'v_lshlrev_b32 v{M}, 16, v{M}')
    a(f'v_sqrt_f32 v{M}, v{M}')
    a('s_nop 0')
    a(f'v_cvt_pk_bf16_f32 v{M}, v{M}, v{M}')
    a(f'v_lshlrev_b32 v{M}, 16, v{M}')
    a(f'v_rcp_f32 v66, v{M}')
    a('s_nop 0')
    a('s_lshl_b32 s83, s50, 8')
    a(f's_add_u32 s83, s83, {g.XTRA}')
    a(f'v_and_b32 v20, 31, v{vl}')
    a('v_lshl_add_u32 v20, v20, 3, s83')
    a('ds_write_b64 v20, v[66:67]')
    a(f'v_lshlrev_b32 v21, 4, v{vl}')
    a(f'v_add_u32 v21, {g.XTRA + 1024}, v21')
    a('ds_write_b128 v21, v[48:51]')
    a('ds_write_b128 v21, v[52:55] offset:1024')
    return [c0.l]

def l3_epi(a, c, g):
    SB = g.SB
    n = 2 * g.NB
    vt0, vt1, vt2 = g.tmp
    a('s_lshl_b32 s57, s45, 8')
    a(f's_add_u32 s57, s57, {g.XTRA}')
    a(f'v_lshl_add_u32 v{vt0}, v{g.vi16}, 3, s57')
    a(f'v_lshlrev_b32 v{vt1}, 4, v{g.vg}')
    a(f'v_add_u32 v{vt1}, {g.XTRA + 1024}, v{vt1}')
    STt = SB + 64
    a(f'ds_read_b64 v[{STt}:{STt+1}], v{vt0}')
    a(f'ds_read_b64 v[{STt+2}:{STt+3}], v{vt0} offset:128')
    U, W = SB, SB + 24
    for nb in range(g.NB):
        a(f'ds_read_b128 v[{U+4*nb}:{U+4*nb+3}], v{vt1} offset:{64*nb}')
        a(f'ds_read_b128 v[{W+4*nb}:{W+4*nb+3}], v{vt1} offset:{1024+64*nb}')
    a('s_waitcnt lgkmcnt(0)')
    for rb in g.rbs:
        al = acc_list(g, rb)
        for i, r in enumerate(al):
            a(f'v_fma_f32 v{r}, -v{STt+2*rb+1}, v{U+i}, v{r}')
            a(f'v_fma_f32 v{r}, v{STt+2*rb}, v{r}, v{W+i}')
            a(f'v_max_f32 v{r}, 0, v{r}')
        oo = SB + 48 + 12 * rb
        oo = SB + 68 if rb else SB + 48
        for i in range(n):
            a(f'v_cvt_pk_bf16_f32 v{oo+i}, v{al[2*i]}, v{al[2*i+1]}')
        tr_write(a, g, rb, oo)
    tr_read(a, g, SB)
    for t_ in range(g.nt):
        a(f's_waitcnt lgkmcnt({g.nt-1-t_})')
        a(f'buffer_store_dwordx4 v[{SB+4*t_}:{SB+4*t_+3}], v{g.tg[t_]}, s[24:27], 0 offen')

L3 = dict(NWG=256, MPX=2, NT=16, WM=4, WK=1, NB=6, NST=10, BK=64, NBUF=5, lda=D * 2, ldb=D * 2, a_goff=0, b_goff=0,
          kargs=[], setup=l3_setup, setup_m=setup_m(7), setup_ab=setup_ab(WS_H2, S * D * 2, WS_W1T, F * D * 2), pre0=nop, pre1=with_touch(l3_pre1, WS_W2T, F * D * 2), GAP=1, NPRE=3, epi=l3_epi, h_pre=l3_hpre, h_tail=l3_htail, h_start=5, h_chunk=20, h_final_barrier=1, lds_extra=4096, ka_bytes=1280, kb_bytes=1280, rot=(1, 5))

def l4_setup(a, c):
    srd(a, 20, 4, WS_MOD, 6 * D * 2)
    srd(a, 24, 30, 0, S * D * 2)
    srd(a, 16, 4, WS_X1, S * D * 2)

L4 = dict(NWG=256, MPX=4, NT=8, WM=2, WK=2, NB=5, NST=12, BK=64, NBUF=4, lda=F * 2, ldb=F * 2, a_goff=F, b_goff=F,
          kargs=[(30, 'out')], setup=l4_setup, setup_m=setup_m(6), setup_ab=setup_ab(WS_HH, S * F * 2, WS_W2T, F * D * 2), pre0=nop, pre1=res_pre0(5 * D * 2, 16), GAP=1, NPRE=3, FPG=3, epi=res_epi(24), helper=False, ka_bytes=3072, kb_bytes=3072, rot=(1, 3))

L1 = dict(NWG=256, MPX=4, NT=8, WM=4, WK=1, NB=5, NST=32, BK=64, NBUF=6, PRE0=3, lda=S * 2, ldb=S * 2, a_goff=0, b_goff=0,
          kargs=[(30, 'cs'), (32, 'ss')], setup=l1_setup, setup_m=l1_setup_m, setup_ab=l1_setup_ab, pre0=nop, pre1=l1_pre1, epi=l1_epi, rowsum=True, a_nt=(os.environ.get('ANT', '0') == '1'), h_pre=l2_hpre, h_tail=l2_htail, h_start=8, h_chunk=20, lds_extra=4096, helper=False, ka_bytes=4096, kb_bytes=4096, rot=(2, 5))

def main(out, stamp=False):
    for L in (L1, L2, L3, L4):
        L['stamp'] = stamp
        L['rot'] = None
        L['fine'] = int(stamp) if stamp else 0
    hdr = open('adaLN_cond__spectral_fnet__dense_activation_relu__prompt.s.ref').read().split('\n')
    hdr = [l for l in hdr if l.startswith(';') and '@launch' not in l and 'Override' not in l and 'grid=ceil' not in l]
    a = Asm()
    descs = []
    launches = []
    nv = gen_k0(a, 'k0_kernel'); descs.append(kernel_desc('k0_kernel', nv)); launches.append(('k0_kernel', K0_GRID, K0_LDS))
    nv, lds = gen_gemm(a, 'l1_kernel', L1); descs.append(kernel_desc('l1_kernel', nv, 102)); launches.append(('l1_kernel', 256, lds))
    nv, lds = gen_gemm(a, 'l2_kernel', L2); descs.append(kernel_desc('l2_kernel', nv, 102)); launches.append(('l2_kernel', 256, lds))
    nv, lds = gen_gemm(a, 'l3_kernel', L3); descs.append(kernel_desc('l3_kernel', nv, 102)); launches.append(('l3_kernel', 256, lds))
    nv, lds = gen_gemm(a, 'l4_kernel', L4); descs.append(kernel_desc('l4_kernel', nv, 102)); launches.append(('l4_kernel', 256, lds))
    txt = '\n'.join(hdr) + '\n'
    for (k, g, l) in launches:
        blk = 256 if k[0] == 'k' else 512
        txt += f'; @launch kernel={k} grid=({g},1,1) block=({blk},1,1) lds={l}\n'
    txt += '.amdgcn_target "amdgcn-amd-amdhsa--gfx950"\n.text\n'
    txt += a.text()
    txt += '.section .rodata,"a"\n'
    txt += ''.join(descs)
    open(out, 'w').write(txt)

if __name__ == '__main__':
    main(sys.argv[1] if len(sys.argv) > 1 else 'adaLN_cond__spectral_fnet__dense_activation_relu__prompt.s', stamp=(sys.argv[2] if len(sys.argv) > 2 else False))
```

```python
from common import *

class G:
    pass

MASK = '0xffff0000'

def unpack(a, src, dst, n):
    for i in range(n):
        a(f'v_lshlrev_b32 v{dst+2*i}, 16, v{src+i}')
        a(f'v_and_b32 v{dst+2*i+1}, {MASK}, v{src+i}')

def gen_gemm(a, name, c):
    NB, WM, WK, NST, BK, NBUF = c['NB'], c['WM'], c['WK'], c['NST'], c['BK'], c['NBUF']
    BM, BN = WM * 32, NB * 16
    RB = BK * 2
    CPR = RB // 16
    RPI = 64 // CPR
    KS = BK // 32
    nA = WK * BM // RPI
    nB = WK * BN // RPI
    assert nA % 4 == 0 and nB % 2 == 0
    padB = nB % 4 != 0
    cntA, cntB = BM // RPI, BN // RPI
    BUFSZ = WK * (BM + BN) * RB
    AOFF = lambda gam: gam * BM * RB
    BOFF = lambda gam: WK * BM * RB + gam * BN * RB
    XCH = 0
    lds_total = NBUF * BUFSZ + c.get('lds_extra', 0)
    XTRA = NBUF * BUFSZ
    TS = BN * 2 + 16
    assert TS % 16 == 0
    end = name + '_end'
    kernel_header(a, name)
    a(f's_cmp_ge_u32 s2, {c["NWG"]}')
    a(f's_cbranch_scc1 {end}')
    if c.get('stamp'):
        a('s_memtime s[90:91]')
        a('s_memrealtime s[92:93]')
        a(f's_load_dwordx2 s[98:99], s[0:1], {KA["dbg"]}')
    a(f's_load_dwordx2 s[4:5], s[0:1], {KA["ws"]}')
    for (reg, slot) in c['kargs']:
        a(f's_load_dwordx2 s[{reg}:{reg+1}], s[0:1], {KA[slot]}')
    R = Regs(1)
    vlane = R.alloc(); vi16 = R.alloc(); vg = R.alloc(); vt0 = R.alloc(); vt1 = R.alloc(); vt2 = R.alloc()
    a(f'v_lshrrev_b32 v{vt0}, 6, v0')
    a(f'v_and_b32 v{vlane}, 63, v0')
    a(f'v_and_b32 v{vi16}, 15, v0')
    a(f'v_readfirstlane_b32 s40, v{vt0}')
    a(f'v_lshrrev_b32 v{vg}, 4, v{vlane}')
    ntl = c['NT'].bit_length() - 1
    a('s_and_b32 s41, s2, 7')
    a('s_lshr_b32 s42, s2, 3')
    a(f's_lshr_b32 s43, s42, {ntl}')
    a(f's_mul_i32 s41, s41, {c["MPX"]}')
    a('s_add_u32 s41, s41, s43')
    a(f's_and_b32 s42, s42, {c["NT"]-1}')
    a(f's_mul_i32 s44, s42, {BN}')
    if WK == 2:
        a(f's_and_b32 s45, s40, {WM-1}')
        a(f's_lshr_b32 s46, s40, {WM.bit_length()-1}')
    else:
        a('s_mov_b32 s45, s40')
        a('s_mov_b32 s46, 0')
    c['setup_m'](a, c)
    a('s_cmp_ge_u32 s40, 4')
    a(f's_cbranch_scc1 {name}_prod')
    a('s_waitcnt lgkmcnt(0)')
    c['setup_ab'](a, c)
    c['setup'](a, c)

    g = G()
    g.R, g.vi16, g.vg, g.vlane = R, vi16, vg, vlane
    g.tmp = (vt0, vt1, vt2)
    g.NB, g.WK, g.BN, g.TS = NB, WK, BN, TS
    g.XTRA = XTRA

    g.issued = []
    g.fill = []
    c['pre0'](a, c, g)
    vda = [[R.alloc() for ks in range(KS)] for b in range(NBUF)]
    vdb = [[R.alloc() for ks in range(KS)] for b in range(NBUF)]
    if BK == 128:
        a(f'v_xor_b32 v{vt0}, v{vg}, v{vi16}')
    else:
        a(f'v_lshrrev_b32 v{vt0}, 1, v{vi16}')
        a(f'v_xor_b32 v{vt0}, v{vg}, v{vt0}')
    a(f's_mul_i32 s53, s46, {BM*RB}')
    a(f's_mul_i32 s56, s45, {32*RB}')
    a('s_add_u32 s53, s53, s56')
    a(f's_mul_i32 s56, s46, {BN*RB}')
    a(f's_add_u32 s56, s56, {WK*BM*RB}')
    lrb = RB.bit_length() - 1
    for ks in range(KS):
        a(f'v_xor_b32 v{vt1}, {ks<<2}, v{vt0}')
        a(f'v_lshlrev_b32 v{vt1}, 4, v{vt1}')
        a(f'v_lshl_add_u32 v{vt1}, v{vi16}, {lrb}, v{vt1}')
        a(f'v_add_u32 v{vda[0][ks]}, s53, v{vt1}')
        a(f'v_add_u32 v{vdb[0][ks]}, s56, v{vt1}')
        for b in range(1, NBUF):
            a(f'v_add_u32 v{vda[b][ks]}, {b*BUFSZ}, v{vda[0][ks]}')
            a(f'v_add_u32 v{vdb[b][ks]}, {b*BUFSZ}, v{vdb[0][ks]}')
    SBASE = R.alloc(max(84, 8 * (NB + 2)), 4)
    Af = [[SBASE + 8 * s + 4 * rb for rb in range(2)] for s in range(2)]
    Bf = [[SBASE + 16 + 4 * NB * s + 4 * nb for nb in range(NB)] for s in range(2)]
    acc = [[R.alloc(4, 4) for nb in range(NB)] for rb in range(2)]
    g.acc = acc
    if c.get('rowsum'):
        rs = [R.alloc(4, 4) for rb in range(2)]
        ones = R.alloc(4, 4)
        g.rs = rs
        for q in range(4):
            a(f'v_mov_b32 v{ones+q}, 0x3f803f80')
        for rb in range(2):
            for q in range(4):
                a(f'v_mov_b32 v{rs[rb]+q}, 0')
    for rb in range(2):
        for nb in range(NB):
            for q in range(4):
                a(f'v_mov_b32 v{acc[rb][nb]+q}, 0')
    g.SB = SBASE
    c['pre1'](a, c, g)

    rq = []
    def read_f(st, ks, setid, defer=False):
        b = st % NBUF
        l = []
        r = Af[setid][0]
        l.append(f'ds_read_b128 v[{r}:{r+3}], v{vda[b][ks]} offset:0')
        for nb in range(NB):
            r = Bf[setid][nb]
            l.append(f'ds_read_b128 v[{r}:{r+3}], v{vdb[b][ks]} offset:{nb*16*RB}')
        r = Af[setid][1]
        l.append(f'ds_read_b128 v[{r}:{r+3}], v{vda[b][ks]} offset:{16*RB}')
        if defer:
            rq.extend(l)
        else:
            for x in l:
                a(x)
    GAP = c.get('GAP', 3)
    cnt = [0]
    g.fill_ok = False
    FPG = c.get('FPG', 2)
    def mf(line):
        a(line)
        cnt[0] += 1
        if rq:
            a(rq.pop(0))
        elif g.fill_ok:
            for _ in range(FPG):
                if g.fill:
                    a(g.fill.pop(0))
    def mfmas(setid):
        for rb in range(2):
            ar = Af[setid][rb]
            for nb in range(NB):
                br = Bf[setid][nb]
                d = acc[rb][nb]
                mf(f'v_mfma_f32_16x16x32_bf16 v[{d}:{d+3}], v[{br}:{br+3}], v[{ar}:{ar+3}], v[{d}:{d+3}]')
            if c.get('rowsum'):
                d = rs[rb]
                mf(f'v_mfma_f32_16x16x32_bf16 v[{d}:{d+3}], v[{ones}:{ones+3}], v[{ar}:{ar+3}], v[{d}:{d+3}]')
    NF = NB + 2
    fine = c.get('fine')
    if fine:
        vst = R.alloc()
        a(f'v_mov_b32 v{vst}, 0')
        stn = [0]
        def fstamp():
            a('s_memtime s[86:87]')
            a('s_waitcnt lgkmcnt(0)')
            a('s_sub_u32 s86, s86, s90')
            a(f'v_writelane_b32 v{vst}, s86, {stn[0]}')
            stn[0] += 1
    else:
        def fstamp():
            pass
    fstamp()
    a('s_barrier')
    read_f(0, 0, 0)
    par = 0
    cloop = c.get('cloop', 0)
    def stage(st, inloop):
        nonlocal par
        for ks in range(KS - 1):
            a('s_waitcnt lgkmcnt(0)')
            read_f(st, ks + 1, par ^ 1, defer=True)
            mfmas(par)
            assert not rq
            par ^= 1
        if st + 1 < NST:
            a('s_waitcnt lgkmcnt(0)')
            if not inloop:
                fstamp()
            a('s_barrier')
            if st == 1 and not cloop:
                a('s_waitcnt vmcnt(0)')
                g.fill_ok = True
            read_f(st + 1, 0, par ^ 1, defer=True)
            mfmas(par)
            assert not rq
            par ^= 1
        else:
            a('s_waitcnt lgkmcnt(0)')
            mfmas(par)
    if cloop:
        assert KS % 2 == 0
        lp = a.newlabel(name + '_cl')
        a('s_mov_b32 s58, 0')
        a.label(lp)
        for st in range(NBUF):
            stage(st, True)
        a('s_add_u32 s58, s58, 1')
        a(f's_cmp_lt_u32 s58, {cloop}')
        a(f's_cbranch_scc1 {lp}')
        a('s_waitcnt vmcnt(0)')
        g.fill_ok = True
        for st in range(NBUF * cloop, NST):
            stage(st, False)
    else:
        for st in range(NST):
            stage(st, False)
    for l in g.fill:
        a(l)
    g.fill = []
    a('s_nop 7')
    a('s_nop 7')
    if WK == 2:
        a('s_barrier')
        lk0, lk1 = a.newlabel(name), a.newlabel(name)
        a(f'v_lshlrev_b32 v{vt0}, 4, v{vlane}')
        a(f's_mul_i32 s57, s40, {NB*1024}')
        a(f's_add_u32 s57, s57, {XCH}')
        a(f'v_add_u32 v{vt1}, s57, v{vt0}')
        a(f's_xor_b32 s57, s40, {WM}')
        a(f's_mul_i32 s57, s57, {NB*1024}')
        a(f's_add_u32 s57, s57, {XCH}')
        a(f'v_add_u32 v{vt2}, s57, v{vt0}')
        T = Bf[0]
        a('s_cmp_eq_u32 s46, 0')
        a(f's_cbranch_scc0 {lk1}')
        for nb in range(NB):
            d = acc[1][nb]
            a(f'ds_write_b128 v{vt1}, v[{d}:{d+3}] offset:{nb*1024}')
        a('s_waitcnt lgkmcnt(0)')
        a('s_barrier')
        for nb in range(NB):
            a(f'ds_read_b128 v[{T[nb]}:{T[nb]+3}], v{vt2} offset:{nb*1024}')
        a('s_waitcnt lgkmcnt(0)')
        for nb in range(NB):
            for q in range(4):
                a(f'v_add_f32 v{acc[0][nb]+q}, v{acc[0][nb]+q}, v{T[nb]+q}')
        a(f's_branch {lk0}')
        a.label(lk1)
        for nb in range(NB):
            d = acc[0][nb]
            a(f'ds_write_b128 v{vt1}, v[{d}:{d+3}] offset:{nb*1024}')
        a('s_waitcnt lgkmcnt(0)')
        a('s_barrier')
        for nb in range(NB):
            a(f'ds_read_b128 v[{T[nb]}:{T[nb]+3}], v{vt2} offset:{nb*1024}')
        a('s_waitcnt lgkmcnt(0)')
        for nb in range(NB):
            for q in range(4):
                a(f'v_add_f32 v{acc[0][nb]+q}, v{acc[1][nb]+q}, v{T[nb]+q}')
        a.label(lk0)
        g.rbs = [0]
    else:
        a('s_barrier')
        g.rbs = [0, 1]
    fstamp()
    c['epi'](a, c, g)
    if fine:
        a('s_waitcnt vmcnt(0)')
        fstamp()
        a('s_mov_b32 s60, s98')
        a('s_mov_b32 s61, s99')
        a('s_mov_b32 s62, 256')
        a('s_mov_b32 s63, 0x00020000')
        a('s_mov_b64 exec, -1')
        a(f'v_cmp_gt_u32 vcc, 32, v{vlane}')
        a(f'v_lshlrev_b32 v1, 2, v{vlane}')
        a('v_mov_b32 v2, 0x7ffffff0')
        a('s_nop 1')
        a('v_cndmask_b32 v1, v2, v1, vcc')
        a(f's_cmp_eq_u32 s2, {fine-1}')
        a(f's_cbranch_scc0 {end}')
        a('s_cmp_eq_u32 s40, 0')
        a(f's_cbranch_scc0 {end}')
        a(f'buffer_store_dword v{vst}, v1, s[60:63], 0 offen')
    elif c.get('stamp'):
        a('s_waitcnt vmcnt(0)')
        a('s_memtime s[94:95]')
        a('s_memrealtime s[96:97]')
        a('s_waitcnt lgkmcnt(0)')
        a('s_sub_u32 s94, s94, s90')
        a('s_sub_u32 s96, s96, s92')
        a('s_mov_b32 s60, s98')
        a('s_mov_b32 s61, s99')
        a('s_mov_b32 s62, 256')
        a('s_mov_b32 s63, 0x00020000')
        a('s_and_b32 s58, s2, 31')
        a('s_lshl_b32 s58, s58, 3')
        a('s_mov_b64 exec, -1')
        a('v_mov_b32 v1, s58')
        a('v_mov_b32 v2, s94')
        a('v_mov_b32 v3, s96')
        a('s_cmp_lt_u32 s2, 32')
        a(f's_cbranch_scc0 {end}')
        a('v_cmp_eq_u32 vcc, 0, v0')
        a('s_and_saveexec_b64 s[58:59], vcc')
        a(f's_cbranch_execz {end}')
        a('buffer_store_dwordx2 v[2:3], v1, s[60:63], 0 offen')
    a.label(end)
    a('s_endpgm')
    NP = 4
    a.label(f'{name}_prod')
    a('s_sub_u32 s50, s40, 4')
    lc = CPR.bit_length() - 1
    a(f'v_lshrrev_b32 v10, {lc}, v{vlane}')
    a(f'v_and_b32 v11, {CPR-1}, v{vlane}')
    if BK == 128:
        a('s_lshl_b32 s51, s50, 2')
        a('v_add_u32 v12, s51, v10')
    else:
        a('s_and_b32 s51, s50, 1')
        a('s_lshl_b32 s51, s51, 2')
        a('v_lshrrev_b32 v12, 1, v10')
        a('v_add_u32 v12, s51, v12')
    a('v_xor_b32 v12, v11, v12')
    a('v_lshlrev_b32 v12, 4, v12')
    a(f'v_mul_u32_u24 v14, {c["lda"]}, v10')
    a('v_add_u32 v14, v14, v12')
    a(f'v_mul_u32_u24 v15, {c["ldb"]}, v10')
    a('v_add_u32 v15, v15, v12')
    a('s_lshl_b32 s54, s50, 10')
    a(f's_mul_i32 s52, s50, {RPI}')
    a('s_add_u32 s53, s52, s47')
    a(f's_mul_i32 s53, s53, {c["lda"]}')
    a('s_add_u32 s56, s52, s44')
    a(f's_mul_i32 s56, s56, {c["ldb"]}')
    special = {}
    for q in range(nB // NP):
        ib = NP * q
        if WK == 2 and ib < cntB < ib + NP:
            sreg = 64 + len(special)
            special[q] = sreg
            a(f's_cmp_ge_u32 s50, {cntB-ib}')
            a(f's_mov_b32 s57, {ib*RPI*c["ldb"]}')
            a(f's_cselect_b32 s{sreg}, {((ib-cntB)*RPI*c["ldb"] + c["b_goff"]) & 0xffffffff}, s57')
            a(f's_add_u32 s{sreg}, s{sreg}, s56')
    NSL = (nA + nB + NP - 1) // NP
    if padB:
        assert WK == 1
        a('s_cmp_ge_u32 s50, 2')
        a(f's_cselect_b32 s66, {(-2*RPI*c["ldb"]) & 0xffffffff}, 0')
        a('s_cselect_b32 s67, 2048, 0')
        a('s_add_u32 s66, s66, s56')
        a('s_sub_u32 s67, s54, s67')
    rot = c.get('rot')
    if rot:
        a(f's_mul_i32 s48, s42, {rot[0]}')
        a(f's_and_b32 s49, s41, {c["MPX"]-1}')
        a(f's_mul_i32 s49, s49, {rot[1]}')
        a('s_add_u32 s48, s48, s49')
        for k in (4, 2, 1):
            a(f's_cmp_ge_u32 s48, {k*NST}')
            a(f's_cselect_b32 s49, {k*NST}, 0')
            a('s_sub_u32 s48, s48, s49')
        a(f's_mul_i32 s48, s48, {RB}')
        a('s_mov_b32 s88, s53')
        a('s_mov_b32 s89, s56')
        for i_, sr_ in enumerate(special.values()):
            a(f's_mov_b32 s{68+i_}, s{sr_}')
    def p_issue(st_):
        b = st_ % NBUF
        st = st_
        if rot:
            st = 0
            a(f's_add_u32 s49, s48, {st_*RB}')
            a(f's_cmp_ge_u32 s49, {NST*RB}')
            a(f's_cselect_b32 s55, {NST*RB}, 0')
            a('s_sub_u32 s49, s49, s55')
            a('s_add_u32 s53, s88, s49')
            a('s_add_u32 s56, s89, s49')
            for i_, sr_ in enumerate(special.values()):
                a(f's_add_u32 s{sr_}, s{68+i_}, s49')
        for q in range(NSL):
            io = NP * q
            if padB and q == NSL - 1:
                ib = io - nA
                a(f's_add_u32 m0, s67, {b*BUFSZ + io*1024}')
                a(f's_add_u32 s55, s66, {ib*RPI*c["ldb"] + st*RB}')
                a('buffer_load_dwordx4 v15, s[12:15], s55 offen lds')
                continue
            a(f's_add_u32 m0, s54, {b*BUFSZ + io*1024}')
            if io < nA:
                gam, loc0 = io // cntA, io % cntA
                a(f's_add_u32 s55, s53, {loc0*RPI*c["lda"] + gam*c["a_goff"] + st*RB}')
                a('buffer_load_dwordx4 v14, s[8:11], s55 offen' + (' nt' if c.get('a_nt') else '') + ' lds')
            else:
                ib = io - nA
                qb = ib // NP
                if qb in special:
                    a(f's_add_u32 s55, s{special[qb]}, {st*RB}')
                else:
                    gam, loc0 = ib // cntB, ib % cntB
                    a(f's_add_u32 s55, s56, {loc0*RPI*c["ldb"] + gam*c["b_goff"] + st*RB}')
                a('buffer_load_dwordx4 v15, s[12:15], s55 offen lds')
    chunks = []
    a('s_waitcnt lgkmcnt(0)')
    c['setup_ab'](a, c)
    NH = 0
    npre = min(NBUF, NST)
    pst = [32]
    if fine:
        a('v_mov_b32 v9, 0')
    def pstamp():
        if fine and pst[0] < 40:
            a('s_memtime s[86:87]')
            a('s_waitcnt lgkmcnt(0)')
            a('s_sub_u32 s86, s86, s90')
            a(f'v_writelane_b32 v9, s86, {pst[0]}')
            pst[0] += 1
    PRE0 = c.get('PRE0', 2)
    PER = c.get('PER', 2)
    nxt = [0]
    order = []
    def pwait(st):
        n = 0
        for t in reversed(order):
            if t <= st:
                break
            n += 1
        assert n <= 63
        a(f's_waitcnt vmcnt({n})')
    def issue_upto(limit, maxn):
        n = 0
        while nxt[0] < NST and nxt[0] <= limit and n < maxn:
            p_issue(nxt[0])
            order.extend([nxt[0]] * NSL)
            nxt[0] += 1
            n += 1
            pstamp()
    pstamp()
    issue_upto(NBUF - 1, PRE0)
    pwait(0)
    pstamp()
    if fine:
        lb = a.newlabel(name)
        a('s_mov_b32 s60, s98')
        a('s_mov_b32 s61, s99')
        a('s_mov_b32 s62, 256')
        a('s_mov_b32 s63, 0x00020000')
        a(f'v_lshlrev_b32 v8, 2, v{vlane}')
        a(f'v_cmp_lt_u32 vcc, 31, v{vlane}')
        a('v_mov_b32 v7, 0x7ffffff0')
        a('s_nop 1')
        a('v_cndmask_b32 v8, v7, v8, vcc')
        a(f's_cmp_eq_u32 s2, {fine-1}')
        a(f's_cbranch_scc0 {lb}')
        a('s_cmp_eq_u32 s40, 4')
        a(f's_cbranch_scc0 {lb}')
        a('buffer_store_dword v9, v8, s[60:63], 0 offen')
        a('s_waitcnt vmcnt(0)')
        a.label(lb)
    a('s_barrier')
    fine_save = fine
    fine = 0
    issue_upto(NBUF - 1, PER)
    if c.get('h_pre'):
        c['setup'](a, c)
        NH = c['h_pre'](a, c, g)
        order.extend([10**6] * NH)
        flat = [l for ch in c['h_tail'](c, g) for l in ch]
        CS = c.get('h_chunk', 24)
        chunks = [flat[i:i + CS] for i in range(0, len(flat), CS)]
        assert c['h_start'] >= nxt[0]
    ploop = c.get('ploop')
    st = 0
    while st < NST - 1:
        if ploop and st == ploop[0]:
            assert nxt[0] == st + NBUF and not special and not rot
            lp = a.newlabel(name + '_pl')
            a('s_mov_b32 s58, 0')
            a.label(lp)
            for i in range(NBUF):
                pwait(st + i + 1)
                a('s_barrier')
                issue_upto(st + i + NBUF, 1)
            a(f's_add_u32 s53, s53, {NBUF*RB}')
            a(f's_add_u32 s56, s56, {NBUF*RB}')
            if padB:
                a(f's_add_u32 s66, s66, {NBUF*RB}')
            a('s_add_u32 s58, s58, 1')
            a(f's_cmp_lt_u32 s58, {ploop[1]}')
            a(f's_cbranch_scc1 {lp}')
            a(f's_sub_u32 s53, s53, {ploop[1]*NBUF*RB}')
            a(f's_sub_u32 s56, s56, {ploop[1]*NBUF*RB}')
            if padB:
                a(f's_sub_u32 s66, s66, {ploop[1]*NBUF*RB}')
            for t in range(1, ploop[1]):
                for i in range(NBUF):
                    order.extend([nxt[0]] * NSL)
                    nxt[0] += 1
            st += NBUF * ploop[1]
            continue
        if nxt[0] <= st + 1:
            issue_upto(st + 1, NST)
        pwait(st + 1)
        a('s_barrier')
        if nxt[0] < NST:
            issue_upto(st + NBUF, PER)
        if chunks and st + 1 >= c['h_start']:
            for l in chunks.pop(0):
                a(l)
        st += 1
    for ch in chunks:
        for l in ch:
            a(l)
    if c.get('h_final_barrier'):
        a('s_waitcnt lgkmcnt(0)')
        for _ in range(c['h_final_barrier']):
            a('s_barrier')
    a('s_endpgm')
    return R.n, lds_total

def tr_setup(a, g, row_sgpr, ldo):
    R = g.R
    CH = g.BN // 8
    nrows = 16 * len_rbs(g)
    tot = nrows * CH
    g.nt = (tot + 63) // 64
    g.tot = tot
    g.tl = [R.alloc() for _ in range(g.nt)]
    g.tg = [R.alloc() for _ in range(g.nt)]
    g.tc = [R.alloc() for _ in range(g.nt)]
    vt0, vt1, vt2 = g.tmp
    magic = {10: 6554, 12: 5462}[CH]
    a(f's_mul_i32 s57, s40, {nrows*g.TS}')
    if g.WK == 2:
        a('s_add_u32 s57, s57, 32768')
    a('s_lshl_b32 s58, s44, 1')
    a(f's_mov_b32 s59, {ldo}')
    for t in range(g.nt):
        a(f'v_add_u32 v{vt0}, {64*t}, v{g.vlane}')
        a(f'v_mul_u32_u24 v{vt1}, {magic}, v{vt0}')
        a(f'v_lshrrev_b32 v{vt1}, 16, v{vt1}')
        a(f'v_mul_u32_u24 v{vt2}, {CH}, v{vt1}')
        a(f'v_sub_u32 v{vt2}, v{vt0}, v{vt2}')
        a(f'v_lshlrev_b32 v{vt2}, 4, v{vt2}')
        a(f'v_mul_u32_u24 v{g.tl[t]}, {g.TS}, v{vt1}')
        a(f'v_add3_u32 v{g.tl[t]}, v{g.tl[t]}, v{vt2}, s57')
        a(f'v_add_u32 v{g.tc[t]}, s58, v{vt2}')
        a(f'v_add_u32 v{vt1}, {row_sgpr}, v{vt1}')
        a(f'v_mul_lo_u32 v{g.tg[t]}, v{vt1}, s59')
        a(f'v_add_u32 v{g.tg[t]}, v{g.tg[t]}, v{g.tc[t]}')
        if 64 * (t + 1) > tot:
            a(f'v_cmp_gt_u32 vcc, {tot}, v{vt0}')
            a(f'v_mov_b32 v{vt1}, 0x7ffffff0')
            a('s_nop 1')
            a(f'v_cndmask_b32 v{g.tg[t]}, v{vt1}, v{g.tg[t]}, vcc')
            a(f'v_cndmask_b32 v{g.tl[t]}, 0, v{g.tl[t]}, vcc')
    g.tw = R.alloc()
    a(f'v_mul_u32_u24 v{g.tw}, {g.TS}, v{g.vi16}')
    a(f'v_lshl_add_u32 v{g.tw}, v{g.vg}, 3, v{g.tw}')
    a(f'v_add_u32 v{g.tw}, s57, v{g.tw}')

def len_rbs(g):
    return 1 if g.WK == 2 else 2

def tr_write(a, g, rbi, pk):
    for nb in range(g.NB):
        a(f'ds_write_b64 v{g.tw}, v[{pk+2*nb}:{pk+2*nb+1}] offset:{rbi*16*g.TS + nb*32}')

def tr_read(a, g, dst):
    a('s_waitcnt lgkmcnt(0)')
    for t in range(g.nt):
        a(f'ds_read_b128 v[{dst+4*t}:{dst+4*t+3}], v{g.tl[t]}')
```

```python
import sys, os
from common import *
from k0 import *
from gemm3 import *
import main as m1

def acc_list(g, rb):
    return [g.acc[rb][nb] + q for nb in range(g.NB) for q in range(4)]

class Rec:
    def __init__(self, g):
        self.g = g
    def __call__(self, s):
        self.g.fill.append(s)

def unpack_inplace(a, base, n):
    for i in range(n):
        a(f'v_lshlrev_b32 v{base+2*i}, 16, v{base+n+i}')
        a(f'v_and_b32 v{base+2*i+1}, {MASK}, v{base+n+i}')

def plus1_round(a, base, n2, tmp):
    for i in range(0, n2, 2):
        a(f'v_add_f32 v{base+i}, 1.0, v{base+i}')
        a(f'v_add_f32 v{base+i+1}, 1.0, v{base+i+1}')
        a(f'v_cvt_pk_bf16_f32 v{tmp}, v{base+i}, v{base+i+1}')
        a(f'v_lshlrev_b32 v{base+i}, 16, v{tmp}')
        a(f'v_and_b32 v{base+i+1}, {MASK}, v{tmp}')

def touch_next(a, g, off, nbytes):
    L = nbytes // 128
    per_w = L // 128
    R = g.R
    va, vd = R.alloc(), R.alloc()
    srd(a, 84, 4, off, nbytes)
    a('s_lshr_b32 s62, s2, 3')
    a('s_lshl_b32 s62, s62, 2')
    a('s_add_u32 s62, s62, s40')
    a(f's_mul_i32 s62, s62, {per_w*128}')
    a(f'v_lshlrev_b32 v{va}, 7, v{g.vlane}')
    a(f'v_add_u32 v{va}, s62, v{va}')
    f = Rec(g)
    for i in range((per_w + 63) // 64):
        f(f's_mov_b32 s63, {i*8192}')
        f(f'buffer_load_dword v{vd}, v{va}, s[84:87], s63 offen')

def with_touch(fn, off, nbytes):
    def h(a, c, g):
        if os.environ.get('TN', '0') == '1':
            touch_next(a, g, off, nbytes)
        fn(a, c, g)
    return h

def nop(a, c, g):
    pass

def row_sgpr(a, g):
    a('s_lshl_b32 s38, s45, 5')
    a('s_add_u32 s38, s38, s39')
    if g.WK == 2:
        a('s_lshl_b32 s37, s46, 4')
        a('s_add_u32 s38, s38, s37')

def store_rounds(a, g, src, srd_, soff='0'):
    for t in range(g.nt):
        a(f'buffer_store_dwordx4 v[{src+4*t}:{src+4*t+3}], v{g.tg[t]}, s[{srd_}:{srd_+3}], {soff} offen')

def l1_setup_m(a, c):
    a('s_and_b32 s41, s2, 7')
    a('s_lshl_b32 s41, s41, 1')
    a('s_and_b32 s47, s43, 1')
    a('s_add_u32 s41, s41, s47')
    a('s_lshr_b32 s47, s43, 1')
    a('s_lshl_b32 s47, s47, 4')
    a('s_add_u32 s41, s41, s47')
    a('s_and_b32 s47, s41, 15')
    a('s_lshl_b32 s47, s47, 7')
    a('s_mov_b32 s39, s47')

def l1_setup_ab(a, c):
    a('s_cmp_ge_u32 s41, 16')
    a('s_cselect_b32 s30, s32, s30')
    a('s_cselect_b32 s31, s33, s31')
    srd(a, 8, 30, 0, S * S * 2)
    srd(a, 12, 4, WS_NT, S * D * 2)

def l1_setup(a, c):
    a('s_cmp_ge_u32 s41, 16')
    a('s_cselect_b32 s35, 0x80000000, 0')
    a('s_cselect_b32 s36, 1280, 0')
    srd(a, 20, 4, WS_MOD, 6 * D * 2)
    srd(a, 24, 4, WS_PQ, S * 2 * D * 2)

def setup_m(sh):
    def f(a, c):
        a(f's_lshl_b32 s47, s41, {sh}')
        a('s_mov_b32 s39, s47')
    return f

def setup_ab(aoff, asz, boff, bsz):
    def f(a, c):
        srd(a, 8, 4, aoff, asz)
        srd(a, 12, 4, boff, bsz)
    return f

def l1_pre0(a, c, g):
    R = g.R
    vc = R.alloc()
    a('s_lshl_b32 s60, s44, 1')
    a(f'v_lshl_add_u32 v{vc}, v{g.vg}, 3, s60')
    g.sa = R.alloc(20, 2); g.ca = R.alloc(20, 2); g.ft = R.alloc()
    a('s_mov_b32 s61, 1280')
    for nb in range(g.NB):
        a(f'buffer_load_dwordx2 v[{g.sa+10+2*nb}:{g.sa+10+2*nb+1}], v{vc}, s[20:23], 0 offen offset:{32*nb}')
        g.issued.append(10**6)
    for nb in range(g.NB):
        a(f'buffer_load_dwordx2 v[{g.ca+10+2*nb}:{g.ca+10+2*nb+1}], v{vc}, s[20:23], s61 offen offset:{32*nb}')
        g.issued.append(10**6)
    f = Rec(g)
    unpack_inplace(f, g.sa, 10)
    unpack_inplace(f, g.ca, 10)
    plus1_round(f, g.ca, 20, g.ft)
    for i in range(20):
        f(f'v_xor_b32 v{g.ca+i}, s35, v{g.ca+i}')
        f(f'v_xor_b32 v{g.sa+i}, s35, v{g.sa+i}')

def l1_touch(a, c, g):
    nl = 32 - K0_PFL
    if nl == 0 or os.environ.get('TOUCH', '0') == '0':
        return
    vt0, vt1, vt2 = g.tmp
    per = nl // 16 if nl >= 16 else 1
    a('s_lshl_b32 s60, s42, 4')
    a('s_lshl_b32 s61, s40, 2')
    a('s_add_u32 s60, s60, s61')
    a('s_add_u32 s60, s60, s47')
    a(f'v_add_u32 v{vt0}, s60, v{g.vg}')
    a(f'v_lshlrev_b32 v{vt0}, 12, v{vt0}')
    a(f'v_lshl_add_u32 v{vt0}, v{g.vi16}, 7, v{vt0}')
    g.tdump = g.R.alloc(); g.taddr = g.R.alloc()
    a(f'v_mov_b32 v{g.taddr}, v{vt0}')
    f = Rec(g)
    for j in range((nl + 15) // 16):
        off = (K0_PFL + 16 * j) * 128
        f(f's_mov_b32 s62, {off}')
        f(f'buffer_load_dword v{g.tdump}, v{g.taddr}, s[8:11], s62 offen')

def l1_pre1(a, c, g):
    l1_touch(a, c, g)
    l1_pre0(a, c, g)
    row_sgpr(a, g)
    tr_setup(a, g, 's38', 2 * D * 2)

def l1_epi(a, c, g):
    SB = g.SB
    n = 2 * g.NB
    t = SB + 40
    for rb in g.rbs:
        al = acc_list(g, rb)
        for i in range(2 * n):
            a(f'v_mul_f32 v{t+i}, v{al[i]}, v{g.ca+i}')
            a(f'v_fmac_f32 v{t+i}, v{g.rs[rb]}, v{g.sa+i}')
        oo = SB + 60 + 10 * rb
        for i in range(n):
            a(f'v_cvt_pk_bf16_f32 v{oo+i}, v{t+2*i}, v{t+2*i+1}')
        tr_write(a, g, rb, oo)
    tr_read(a, g, SB)
    for t_ in range(g.nt):
        a(f's_waitcnt lgkmcnt({g.nt-1-t_})')
        a(f'buffer_store_dwordx4 v[{SB+4*t_}:{SB+4*t_+3}], v{g.tg[t_]}, s[24:27], s36 offen')


def res_pre0(goff, xsrd):
    def pre(a, c, g):
        R = g.R
        row_sgpr(a, g)
        tr_setup(a, g, 's38', D * 2)
        n = 4 * g.nt
        g.ga = R.alloc(2 * n, 4); g.x = R.alloc(2 * n, 4)
        a(f's_mov_b32 s61, {goff}')
        for t in range(g.nt):
            a(f'buffer_load_dwordx4 v[{g.ga+n+4*t}:{g.ga+n+4*t+3}], v{g.tc[t]}, s[20:23], s61 offen')
            g.issued.append(10**6)
        for t in range(g.nt):
            a(f'buffer_load_dwordx4 v[{g.x+n+4*t}:{g.x+n+4*t+3}], v{g.tg[t]}, s[{xsrd}:{xsrd+3}], 0 offen')
            g.issued.append(10**6)
        f = Rec(g)
        unpack_inplace(f, g.ga, n)
        unpack_inplace(f, g.x, n)
    return pre

def res_round(a, g, t, Y, yf, u, o):
    unpack(a, Y + 4 * t, yf, 4)
    for i in range(0, 8, 2):
        a(f'v_pk_mul_f32 v[{yf+i}:{yf+i+1}], v[{yf+i}:{yf+i+1}], v[{g.ga+8*t+i}:{g.ga+8*t+i+1}]')
    for i in range(4):
        a(f'v_cvt_pk_bf16_f32 v{u+i}, v{yf+2*i}, v{yf+2*i+1}')
    unpack(a, u, yf, 4)
    for i in range(0, 8, 2):
        a(f'v_pk_add_f32 v[{yf+i}:{yf+i+1}], v[{yf+i}:{yf+i+1}], v[{g.x+8*t+i}:{g.x+8*t+i+1}]')
    for i in range(4):
        a(f'v_cvt_pk_bf16_f32 v{o+i}, v{yf+2*i}, v{yf+2*i+1}')

def res_epi(osrd):
    def epi(a, c, g):
        SB = g.SB
        n = 2 * g.NB
        al = acc_list(g, 0)
        for i in range(n):
            a(f'v_cvt_pk_bf16_f32 v{SB+i}, v{al[2*i]}, v{al[2*i+1]}')
        tr_write(a, g, 0, SB)
        Y = SB + 12
        tr_read(a, g, Y)
        T = SB + 24
        for t in range(g.nt):
            a(f's_waitcnt lgkmcnt({g.nt-1-t})')
            o = T + 20 + 4 * t
            res_round(a, g, t, Y, T, T + 16, o)
            a(f'buffer_store_dwordx4 v[{o}:{o+3}], v{g.tg[t]}, s[{osrd}:{osrd+3}], 0 offen')
    return epi

def l2_pre1(a, c, g):
    res_pre0(2 * D * 2, 16)(a, c, g)
    R = g.R
    n = 4 * g.nt
    g.cb = R.alloc(2 * n, 4); g.ft = R.alloc()
    a('s_mov_b32 s61, 5120')
    for t in range(g.nt):
        a(f'buffer_load_dwordx4 v[{g.cb+n+4*t}:{g.cb+n+4*t+3}], v{g.tc[t]}, s[20:23], s61 offen')
        g.issued.append(10**6)
    f = Rec(g)
    unpack_inplace(f, g.cb, n)
    plus1_round(f, g.cb, 2 * n, g.ft)

def l2_epi(a, c, g):
    SB = g.SB
    n = 2 * g.NB
    al = acc_list(g, 0)
    for i in range(n):
        a(f'v_cvt_pk_bf16_f32 v{SB+i}, v{al[2*i]}, v{al[2*i+1]}')
    tr_write(a, g, 0, SB)
    Y = SB + 12
    tr_read(a, g, Y)
    T = SB + 24
    vs = g.tmp[0]
    a('s_lshl_b32 s57, s40, 11')
    a('s_add_u32 s57, s57, 49152')
    a(f'v_lshl_add_u32 v{vs}, v{g.vlane}, 3, s57')
    for t in range(g.nt):
        a(f's_waitcnt lgkmcnt({g.nt-1})')
        yf, gf, u = T, T + 8, T + 16
        o = T + 20 + 8 * t
        res_round(a, g, t, Y, yf, u, o)
        a(f'buffer_store_dwordx4 v[{o}:{o+3}], v{g.tg[t]}, s[24:27], 0 offen')
        unpack(a, o, yf, 4)
        for i in range(0, 8, 2):
            a(f'v_pk_mul_f32 v[{gf+i}:{gf+i+1}], v[{yf+i}:{yf+i+1}], v[{g.cb+8*t+i}:{g.cb+8*t+i+1}]')
        z = o + 4
        for i in range(4):
            a(f'v_cvt_pk_bf16_f32 v{z+i}, v{gf+2*i}, v{gf+2*i+1}')
        a(f'buffer_store_dwordx4 v[{z}:{z+3}], v{g.tg[t]}, s[28:31], 0 offen')
        st = T + 16
        a(f'v_pk_add_f32 v[{gf}:{gf+1}], v[{yf}:{yf+1}], v[{yf+2}:{yf+3}]')
        a(f'v_pk_add_f32 v[{gf+2}:{gf+3}], v[{yf+4}:{yf+5}], v[{yf+6}:{yf+7}]')
        a(f'v_pk_add_f32 v[{gf}:{gf+1}], v[{gf}:{gf+1}], v[{gf+2}:{gf+3}]')
        a(f'v_add_f32 v{st}, v{gf}, v{gf+1}')
        a(f'v_mul_f32 v{st+2}, 0x3e000000, v{st}')
        a(f'v_mov_b32 v{st+3}, v{st+2}')
        for i in range(0, 8, 2):
            a(f'v_pk_add_f32 v[{yf+i}:{yf+i+1}], v[{yf+i}:{yf+i+1}], v[{st+2}:{st+3}] neg_lo:[0,1] neg_hi:[0,1]')
        a(f'v_pk_mul_f32 v[{gf}:{gf+1}], v[{yf}:{yf+1}], v[{yf}:{yf+1}]')
        for i in range(2, 8, 2):
            a(f'v_pk_fma_f32 v[{gf}:{gf+1}], v[{yf+i}:{yf+i+1}], v[{yf+i}:{yf+i+1}], v[{gf}:{gf+1}]')
        a(f'v_add_f32 v{st+1}, v{gf}, v{gf+1}')
        a(f'ds_write_b64 v{vs}, v[{st}:{st+1}] offset:{512*t}')
    a('s_waitcnt lgkmcnt(0)')
    vr = g.tmp[1]
    a(f'v_mul_u32_u24 v{vr}, 80, v{g.vi16}')
    a(f'v_add_u32 v{vr}, s57, v{vr}')
    E = SB
    for j in range(5):
        a(f'ds_read_b128 v[{E+4*j}:{E+4*j+3}], v{vr} offset:{16*j}')
    a('s_waitcnt lgkmcnt(0)')
    Sg, M, mu, d = SB + 20, SB + 21, SB + 22, SB + 23
    a(f'v_add_f32 v{Sg}, v{E}, v{E+2}')
    a(f'v_add_f32 v{M}, v{E+1}, v{E+3}')
    for j in range(2, 10):
        a(f'v_add_f32 v{Sg}, v{Sg}, v{E+2*j}')
        a(f'v_add_f32 v{M}, v{M}, v{E+2*j+1}')
    a(f'v_mul_f32 v{mu}, 0x3c4ccccd, v{Sg}')
    a(f'v_mov_b32 v{SB+24}, 0')
    for j in range(10):
        a(f'v_fma_f32 v{d}, v{E+2*j}, 0.125, -v{mu}') if False else None
        a(f'v_mul_f32 v{d}, 0x3e000000, v{E+2*j}')
        a(f'v_sub_f32 v{d}, v{d}, v{mu}')
        a(f'v_fmac_f32 v{SB+24}, v{d}, v{d}')
    a(f'v_mov_b32 v{d}, 0x41000000')
    a(f'v_fmac_f32 v{M}, v{d}, v{SB+24}')
    a(f'v_add_u32 v{vr}, s38, v{g.vi16}')
    a(f'v_lshlrev_b32 v{vr}, 6, v{vr}')
    a('s_lshl_b32 s57, s42, 3')
    a(f'v_add_u32 v{vr}, s57, v{vr}')
    a(f'v_cmp_gt_u32 vcc, 16, v{g.vlane}')
    a(f'v_mov_b32 v{d}, 0x7ffffff0')
    a('s_nop 1')
    a(f'v_cndmask_b32 v{vr}, v{d}, v{vr}, vcc')
    srd(a, 60, 4, WS_ST, S * 64)
    a(f'buffer_store_dwordx2 v[{Sg}:{Sg+1}], v{vr}, s[60:63], 0 offen')

class Lst:
    def __init__(self):
        self.l = []
    def __call__(self, s):
        self.l.append(s)

def l2_hpre(a, c, g):
    vl = g.vlane
    srd(a, 72, 4, WS_W1T, F * D * 2)
    srd(a, 76, 4, WS_UW, 2 * F * 4)
    a(f'v_lshlrev_b32 v20, 4, v{vl}')
    a('v_add_u32 v21, 1024, v20')
    a(f'v_cmp_gt_u32 vcc, 16, v{vl}')
    a('v_mov_b32 v22, 0x7ffffff0')
    a('s_nop 1')
    a('v_cndmask_b32 v21, v22, v21, vcc')
    a('s_mov_b32 s80, 5120')
    a('s_mov_b32 s81, 3840')
    CBr, SBr, Wr = 24, 32, 40
    a(f'buffer_load_dwordx4 v[{CBr}:{CBr+3}], v20, s[20:23], s80 offen')
    a(f'buffer_load_dwordx4 v[{CBr+4}:{CBr+7}], v21, s[20:23], s80 offen')
    a(f'buffer_load_dwordx4 v[{SBr}:{SBr+3}], v20, s[20:23], s81 offen')
    a(f'buffer_load_dwordx4 v[{SBr+4}:{SBr+7}], v21, s[20:23], s81 offen')
    a('s_cmp_lt_u32 s50, 2')
    a('s_cselect_b32 s85, 4, 2')
    a('s_mul_i32 s82, s2, 6')
    a('s_add_u32 s82, s82, s50')
    a('s_mul_i32 s83, s82, 1280')
    a(f'buffer_load_dwordx4 v[{Wr}:{Wr+3}], v20, s[72:75], s83 offen')
    a(f'buffer_load_dwordx4 v[{Wr+4}:{Wr+7}], v21, s[72:75], s83 offen')
    a('s_add_u32 s83, s83, 5120')
    a(f'buffer_load_dwordx4 v[{Wr+8}:{Wr+11}], v20, s[72:75], s83 offen')
    a(f'buffer_load_dwordx4 v[{Wr+12}:{Wr+15}], v21, s[72:75], s83 offen')
    return 8

def l2_htail(c, g):
    vl = g.vlane
    CBr, SBr, Wr = 24, 32, 40
    CF, SF, WF, AC = 60, 76, 92, 108
    c0, c1, c2 = Lst(), Lst(), Lst()
    a = c0
    unpack(a, CBr, CF, 8)
    plus1_round(a, CF, 16, 23)
    unpack(a, SBr, SF, 8)
    a = c1
    for r in range(2):
        unpack(a, Wr + 8 * r, WF, 8)
        a(f'v_mul_f32 v{AC+2*r}, v{CF}, v{WF}')
        a(f'v_mul_f32 v{AC+2*r+1}, v{SF}, v{WF}')
        for i in range(1, 16):
            a(f'v_fmac_f32 v{AC+2*r}, v{CF+i}, v{WF+i}')
            a(f'v_fmac_f32 v{AC+2*r+1}, v{SF+i}, v{WF+i}')
    a('s_lshl_b32 s84, s50, 10')
    a(f's_add_u32 s84, s84, {g.XTRA}')
    a(f'v_lshl_add_u32 v20, v{vl}, 2, s84')
    for v in range(4):
        a(f'ds_write_b32 v20, v{AC+v} offset:{256*v}')
    a('s_waitcnt lgkmcnt(0)')
    a(f'v_and_b32 v21, 3, v{vl}')
    a('v_lshlrev_b32 v22, 8, v21')
    a('v_add_u32 v22, s84, v22')
    for j in range(16):
        a(f'ds_read_b128 v[{24+4*j}:{27+4*j}], v22 offset:{16*j}')
    a = c2
    a('s_waitcnt lgkmcnt(0)')
    for j in range(1, 64):
        a(f'v_add_f32 v24, v24, v{24+j}')
    a(f'v_and_b32 v20, 1, v{vl}')
    a('v_mul_u32_u24 v20, 6144, v20')
    a(f'v_lshrrev_b32 v21, 1, v{vl}')
    a('v_lshlrev_b32 v21, 2, v21')
    a('v_add_u32 v21, s82, v21')
    a('v_lshl_add_u32 v20, v21, 2, v20')
    a(f'v_cmp_gt_u32 vcc, s85, v{vl}')
    a('v_mov_b32 v22, 0x7ffffff0')
    a('s_nop 1')
    a('v_cndmask_b32 v20, v22, v20, vcc')
    a('buffer_store_dword v24, v20, s[76:79], 0 offen')
    return [c0.l, c1.l, c2.l]

def l2_setup(a, c):
    srd(a, 20, 4, WS_MOD, 6 * D * 2)
    srd(a, 24, 4, WS_X1, S * D * 2)
    srd(a, 16, 30, 0, S * D * 2)
    srd(a, 28, 4, WS_H2, S * D * 2)

L2 = dict(NWG=256, MPX=4, NT=8, WM=2, WK=2, NB=5, NST=10, BK=64, NBUF=4, lda=2 * D * 2, ldb=2 * D * 2, a_goff=D * 2, b_goff=D * 2,
          kargs=[(30, 'x')], setup=l2_setup, setup_m=setup_m(6), setup_ab=setup_ab(WS_PQ, S * 2 * D * 2, WS_CSH, D * 2 * D * 2), pre0=nop, pre1=with_touch(l2_pre1, WS_W1T, F * D * 2), GAP=1, NPRE=3, FPG=5, epi=l2_epi,  ka_bytes=2560, kb_bytes=2560, rot=(1, 3))

def l3_setup(a, c):
    srd(a, 24, 4, WS_HH, S * F * 2)

def l3_pre1(a, c, g):
    row_sgpr(a, g)
    tr_setup(a, g, 's38', F * 2)

def l3_hpre(a, c, g):
    vl = g.vlane
    srd(a, 72, 4, WS_ST, S * 64)
    srd(a, 76, 4, WS_UW, 2 * F * 4)
    a('s_lshl_b32 s80, s50, 5')
    a('s_add_u32 s80, s80, s47')
    a(f'v_and_b32 v20, 31, v{vl}')
    a('v_add_u32 v20, s80, v20')
    a('v_lshlrev_b32 v20, 6, v20')
    for j in range(4):
        a(f'buffer_load_dwordx4 v[{24+4*j}:{27+4*j}], v20, s[72:75], 0 offen offset:{16*j}')
    a('s_lshl_b32 s81, s44, 2')
    a(f'v_lshl_add_u32 v21, v{vl}, 4, s81')
    a('s_mov_b32 s82, 6144')
    a('buffer_load_dwordx4 v[48:51], v21, s[76:79], 0 offen')
    a('buffer_load_dwordx4 v[52:55], v21, s[76:79], s82 offen')
    return 6

def l3_htail(c, g):
    vl = g.vlane
    c0 = Lst()
    a = c0
    E = 24
    Sg, M, mu, d, q = 60, 61, 62, 63, 64
    a(f'v_add_f32 v{Sg}, v{E}, v{E+2}')
    a(f'v_add_f32 v{M}, v{E+1}, v{E+3}')
    for j in range(2, 8):
        a(f'v_add_f32 v{Sg}, v{Sg}, v{E+2*j}')
        a(f'v_add_f32 v{M}, v{M}, v{E+2*j+1}')
    a(f'v_mul_f32 v{mu}, 0x3acccccd, v{Sg}')
    a(f'v_mov_b32 v{q}, 0')
    for j in range(8):
        a(f'v_mul_f32 v{d}, 0x3c4ccccd, v{E+2*j}')
        a(f'v_sub_f32 v{d}, v{d}, v{mu}')
        a(f'v_fmac_f32 v{q}, v{d}, v{d}')
    a(f'v_mov_b32 v{d}, 0x42a00000')
    a(f'v_fmac_f32 v{M}, v{d}, v{q}')
    a(f'v_mul_f32 v{M}, 0x3acccccd, v{M}')
    a(f'v_cvt_pk_bf16_f32 v{d}, v{mu}, v{M}')
    a(f'v_lshlrev_b32 v67, 16, v{d}')
    a(f'v_and_b32 v{M}, {MASK}, v{d}')
    a(f'v_add_f32 v{M}, 0x3727c5ac, v{M}')
    a(f'v_cvt_pk_bf16_f32 v{M}, v{M}, v{M}')
    a(f'v_lshlrev_b32 v{M}, 16, v{M}')
    a(f'v_sqrt_f32 v{M}, v{M}')
    a('s_nop 0')
    a(f'v_cvt_pk_bf16_f32 v{M}, v{M}, v{M}')
    a(f'v_lshlrev_b32 v{M}, 16, v{M}')
    a(f'v_rcp_f32 v66, v{M}')
    a('s_nop 0')
    a('s_lshl_b32 s83, s50, 8')
    a(f's_add_u32 s83, s83, {g.XTRA}')
    a(f'v_and_b32 v20, 31, v{vl}')
    a('v_lshl_add_u32 v20, v20, 3, s83')
    a('ds_write_b64 v20, v[66:67]')
    a(f'v_lshlrev_b32 v21, 4, v{vl}')
    a(f'v_add_u32 v21, {g.XTRA + 1024}, v21')
    a('ds_write_b128 v21, v[48:51]')
    a('ds_write_b128 v21, v[52:55] offset:1024')
    return [c0.l]

def l3_epi(a, c, g):
    SB = g.SB
    n = 2 * g.NB
    vt0, vt1, vt2 = g.tmp
    a('s_lshl_b32 s57, s45, 8')
    a(f's_add_u32 s57, s57, {g.XTRA}')
    a(f'v_lshl_add_u32 v{vt0}, v{g.vi16}, 3, s57')
    a(f'v_lshlrev_b32 v{vt1}, 4, v{g.vg}')
    a(f'v_add_u32 v{vt1}, {g.XTRA + 1024}, v{vt1}')
    STt = SB + 64
    a(f'ds_read_b64 v[{STt}:{STt+1}], v{vt0}')
    a(f'ds_read_b64 v[{STt+2}:{STt+3}], v{vt0} offset:128')
    U, W = SB, SB + 24
    for nb in range(g.NB):
        a(f'ds_read_b128 v[{U+4*nb}:{U+4*nb+3}], v{vt1} offset:{64*nb}')
        a(f'ds_read_b128 v[{W+4*nb}:{W+4*nb+3}], v{vt1} offset:{1024+64*nb}')
    a('s_waitcnt lgkmcnt(0)')
    for rb in g.rbs:
        al = acc_list(g, rb)
        for i, r in enumerate(al):
            a(f'v_fma_f32 v{r}, -v{STt+2*rb+1}, v{U+i}, v{r}')
            a(f'v_fma_f32 v{r}, v{STt+2*rb}, v{r}, v{W+i}')
            a(f'v_max_f32 v{r}, 0, v{r}')
        oo = SB + 48 + 12 * rb
        oo = SB + 68 if rb else SB + 48
        for i in range(n):
            a(f'v_cvt_pk_bf16_f32 v{oo+i}, v{al[2*i]}, v{al[2*i+1]}')
        tr_write(a, g, rb, oo)
    tr_read(a, g, SB)
    for t_ in range(g.nt):
        a(f's_waitcnt lgkmcnt({g.nt-1-t_})')
        a(f'buffer_store_dwordx4 v[{SB+4*t_}:{SB+4*t_+3}], v{g.tg[t_]}, s[24:27], 0 offen')

L3 = dict(NWG=256, MPX=2, NT=16, WM=4, WK=1, NB=6, NST=10, BK=64, NBUF=5, lda=D * 2, ldb=D * 2, a_goff=0, b_goff=0,
          kargs=[], setup=l3_setup, setup_m=setup_m(7), setup_ab=setup_ab(WS_H2, S * D * 2, WS_W1T, F * D * 2), pre0=nop, pre1=with_touch(l3_pre1, WS_W2T, F * D * 2), GAP=1, NPRE=3, epi=l3_epi, h_pre=l3_hpre, h_tail=l3_htail, h_start=5, h_chunk=20, h_final_barrier=1, lds_extra=4096, ka_bytes=1280, kb_bytes=1280, rot=(1, 5))

def l4_setup(a, c):
    srd(a, 20, 4, WS_MOD, 6 * D * 2)
    srd(a, 24, 30, 0, S * D * 2)
    srd(a, 16, 4, WS_X1, S * D * 2)

L4 = dict(NWG=256, MPX=4, NT=8, WM=2, WK=2, NB=5, NST=12, BK=64, NBUF=4, lda=F * 2, ldb=F * 2, a_goff=F, b_goff=F,
          kargs=[(30, 'out')], setup=l4_setup, setup_m=setup_m(6), setup_ab=setup_ab(WS_HH, S * F * 2, WS_W2T, F * D * 2), pre0=nop, pre1=res_pre0(5 * D * 2, 16), GAP=1, NPRE=3, FPG=3, epi=res_epi(24), helper=False, ka_bytes=3072, kb_bytes=3072, rot=(1, 3))

L1 = dict(NWG=256, MPX=4, NT=8, WM=4, WK=1, NB=5, NST=32, BK=64, NBUF=6, PRE0=3, lda=S * 2, ldb=S * 2, a_goff=0, b_goff=0,
          kargs=[(30, 'cs'), (32, 'ss')], setup=l1_setup, setup_m=l1_setup_m, setup_ab=l1_setup_ab, pre0=nop, pre1=l1_pre1, epi=l1_epi, rowsum=True, a_nt=(os.environ.get('ANT', '0') == '1'), h_pre=l2_hpre, h_tail=l2_htail, h_start=(23 if os.environ.get('LOOP','0')=='1' else 8), h_chunk=(32 if os.environ.get('LOOP','0')=='1' else 20), lds_extra=4096, **(dict(cloop=5, ploop=(4, 3), FPG=6) if os.environ.get('LOOP','0')=='1' else {}), helper=False, ka_bytes=4096, kb_bytes=4096, rot=(2, 5))

def main(out, stamp=False):
    for L in (L1, L2, L3, L4):
        L['stamp'] = stamp
        L['rot'] = None
        if os.environ.get('PRE0'):
            L['PRE0'] = int(os.environ['PRE0'])
        if os.environ.get('PER'):
            L['PER'] = int(os.environ['PER'])
        L['fine'] = int(stamp) if stamp else 0
    hdr = open('adaLN_cond__spectral_fnet__dense_activation_relu__prompt.s.ref').read().split('\n')
    hdr = [l for l in hdr if l.startswith(';') and '@launch' not in l and 'Override' not in l and 'grid=ceil' not in l]
    a = Asm()
    descs = []
    launches = []
    nv = gen_k0(a, 'k0_kernel'); descs.append(kernel_desc('k0_kernel', nv)); launches.append(('k0_kernel', K0_GRID, K0_LDS))
    nv, lds = gen_gemm(a, 'l1_kernel', L1); descs.append(kernel_desc('l1_kernel', nv, 102)); launches.append(('l1_kernel', 256, lds))
    nv, lds = gen_gemm(a, 'l2_kernel', L2); descs.append(kernel_desc('l2_kernel', nv, 102)); launches.append(('l2_kernel', 256, lds))
    nv, lds = gen_gemm(a, 'l3_kernel', L3); descs.append(kernel_desc('l3_kernel', nv, 102)); launches.append(('l3_kernel', 256, lds))
    nv, lds = gen_gemm(a, 'l4_kernel', L4); descs.append(kernel_desc('l4_kernel', nv, 102)); launches.append(('l4_kernel', 256, lds))
    txt = '\n'.join(hdr) + '\n'
    for (k, g, l) in launches:
        blk = 256 if k[0] == 'k' else 512
        txt += f'; @launch kernel={k} grid=({g},1,1) block=({blk},1,1) lds={l}\n'
    txt += '.amdgcn_target "amdgcn-amd-amdhsa--gfx950"\n.text\n'
    txt += a.text()
    txt += '.section .rodata,"a"\n'
    txt += ''.join(descs)
    open(out, 'w').write(txt)

if __name__ == '__main__':
    main(sys.argv[1] if len(sys.argv) > 1 else 'adaLN_cond__spectral_fnet__dense_activation_relu__prompt.s', stamp=(sys.argv[2] if len(sys.argv) > 2 else False))
```

```python
from common import *

class G:
    pass

MASK = '0xffff0000'

def unpack(a, src, dst, n):
    for i in range(n):
        a(f'v_lshlrev_b32 v{dst+2*i}, 16, v{src+i}')
        a(f'v_and_b32 v{dst+2*i+1}, {MASK}, v{src+i}')

def gen_gemm(a, name, c):
    NB, WM, WK, NST, BK, NBUF = c['NB'], c['WM'], c['WK'], c['NST'], c['BK'], c['NBUF']
    BM, BN = WM * 32, NB * 16
    RB = BK * 2
    CPR = RB // 16
    RPI = 64 // CPR
    KS = BK // 32
    nA = WK * BM // RPI
    nB = WK * BN // RPI
    assert nA % 4 == 0 and nB % 2 == 0
    padB = nB % 4 != 0
    cntA, cntB = BM // RPI, BN // RPI
    BUFSZ = WK * (BM + BN) * RB
    AOFF = lambda gam: gam * BM * RB
    BOFF = lambda gam: WK * BM * RB + gam * BN * RB
    XCH = 0
    lds_total = NBUF * BUFSZ + c.get('lds_extra', 0)
    XTRA = NBUF * BUFSZ
    TS = BN * 2 + 16
    assert TS % 16 == 0
    end = name + '_end'
    kernel_header(a, name)
    a(f's_cmp_ge_u32 s2, {c["NWG"]}')
    a(f's_cbranch_scc1 {end}')
    if c.get('stamp'):
        a('s_memtime s[90:91]')
        a('s_memrealtime s[92:93]')
        a(f's_load_dwordx2 s[98:99], s[0:1], {KA["dbg"]}')
    a(f's_load_dwordx2 s[4:5], s[0:1], {KA["ws"]}')
    for (reg, slot) in c['kargs']:
        a(f's_load_dwordx2 s[{reg}:{reg+1}], s[0:1], {KA[slot]}')
    R = Regs(1)
    vlane = R.alloc(); vi16 = R.alloc(); vg = R.alloc(); vt0 = R.alloc(); vt1 = R.alloc(); vt2 = R.alloc()
    a(f'v_lshrrev_b32 v{vt0}, 6, v0')
    a(f'v_and_b32 v{vlane}, 63, v0')
    a(f'v_and_b32 v{vi16}, 15, v0')
    a(f'v_readfirstlane_b32 s40, v{vt0}')
    a(f'v_lshrrev_b32 v{vg}, 4, v{vlane}')
    ntl = c['NT'].bit_length() - 1
    a('s_and_b32 s41, s2, 7')
    a('s_lshr_b32 s42, s2, 3')
    a(f's_lshr_b32 s43, s42, {ntl}')
    a(f's_mul_i32 s41, s41, {c["MPX"]}')
    a('s_add_u32 s41, s41, s43')
    a(f's_and_b32 s42, s42, {c["NT"]-1}')
    a(f's_mul_i32 s44, s42, {BN}')
    if WK == 2:
        a(f's_and_b32 s45, s40, {WM-1}')
        a(f's_lshr_b32 s46, s40, {WM.bit_length()-1}')
    else:
        a('s_mov_b32 s45, s40')
        a('s_mov_b32 s46, 0')
    c['setup_m'](a, c)
    a('s_cmp_ge_u32 s40, 4')
    a(f's_cbranch_scc1 {name}_prod')
    a('s_waitcnt lgkmcnt(0)')
    c['setup_ab'](a, c)
    c['setup'](a, c)

    g = G()
    g.R, g.vi16, g.vg, g.vlane = R, vi16, vg, vlane
    g.tmp = (vt0, vt1, vt2)
    g.NB, g.WK, g.BN, g.TS = NB, WK, BN, TS
    g.XTRA = XTRA

    g.issued = []
    g.fill = []
    c['pre0'](a, c, g)
    vda = [[R.alloc() for ks in range(KS)] for b in range(NBUF)]
    vdb = [[R.alloc() for ks in range(KS)] for b in range(NBUF)]
    if BK == 128:
        a(f'v_xor_b32 v{vt0}, v{vg}, v{vi16}')
    else:
        a(f'v_lshrrev_b32 v{vt0}, 1, v{vi16}')
        a(f'v_xor_b32 v{vt0}, v{vg}, v{vt0}')
    a(f's_mul_i32 s53, s46, {BM*RB}')
    a(f's_mul_i32 s56, s45, {32*RB}')
    a('s_add_u32 s53, s53, s56')
    a(f's_mul_i32 s56, s46, {BN*RB}')
    a(f's_add_u32 s56, s56, {WK*BM*RB}')
    lrb = RB.bit_length() - 1
    for ks in range(KS):
        a(f'v_xor_b32 v{vt1}, {ks<<2}, v{vt0}')
        a(f'v_lshlrev_b32 v{vt1}, 4, v{vt1}')
        a(f'v_lshl_add_u32 v{vt1}, v{vi16}, {lrb}, v{vt1}')
        a(f'v_add_u32 v{vda[0][ks]}, s53, v{vt1}')
        a(f'v_add_u32 v{vdb[0][ks]}, s56, v{vt1}')
        for b in range(1, NBUF):
            a(f'v_add_u32 v{vda[b][ks]}, {b*BUFSZ}, v{vda[0][ks]}')
            a(f'v_add_u32 v{vdb[b][ks]}, {b*BUFSZ}, v{vdb[0][ks]}')
    SBASE = R.alloc(max(84, 8 * (NB + 2)), 4)
    Af = [[SBASE + 8 * s + 4 * rb for rb in range(2)] for s in range(2)]
    Bf = [[SBASE + 16 + 4 * NB * s + 4 * nb for nb in range(NB)] for s in range(2)]
    acc = [[R.alloc(4, 4) for nb in range(NB)] for rb in range(2)]
    g.acc = acc
    if c.get('rowsum'):
        rs = [R.alloc(4, 4) for rb in range(2)]
        ones = R.alloc(4, 4)
        g.rs = rs
        for q in range(4):
            a(f'v_mov_b32 v{ones+q}, 0x3f803f80')
        for rb in range(2):
            for q in range(4):
                a(f'v_mov_b32 v{rs[rb]+q}, 0')
    for rb in range(2):
        for nb in range(NB):
            for q in range(4):
                a(f'v_mov_b32 v{acc[rb][nb]+q}, 0')
    g.SB = SBASE
    c['pre1'](a, c, g)

    rq = []
    def read_f(st, ks, setid, defer=False):
        b = st % NBUF
        l = []
        r = Af[setid][0]
        l.append(f'ds_read_b128 v[{r}:{r+3}], v{vda[b][ks]} offset:0')
        for nb in range(NB):
            r = Bf[setid][nb]
            l.append(f'ds_read_b128 v[{r}:{r+3}], v{vdb[b][ks]} offset:{nb*16*RB}')
        r = Af[setid][1]
        l.append(f'ds_read_b128 v[{r}:{r+3}], v{vda[b][ks]} offset:{16*RB}')
        if defer:
            rq.extend(l)
        else:
            for x in l:
                a(x)
    GAP = c.get('GAP', 3)
    cnt = [0]
    g.fill_ok = False
    FPG = c.get('FPG', 2)
    def mf(line):
        a(line)
        cnt[0] += 1
        if rq:
            a(rq.pop(0))
        elif g.fill_ok:
            for _ in range(FPG):
                if g.fill:
                    a(g.fill.pop(0))
    def mfmas(setid):
        for rb in range(2):
            ar = Af[setid][rb]
            for nb in range(NB):
                br = Bf[setid][nb]
                d = acc[rb][nb]
                mf(f'v_mfma_f32_16x16x32_bf16 v[{d}:{d+3}], v[{br}:{br+3}], v[{ar}:{ar+3}], v[{d}:{d+3}]')
            if c.get('rowsum'):
                d = rs[rb]
                mf(f'v_mfma_f32_16x16x32_bf16 v[{d}:{d+3}], v[{ones}:{ones+3}], v[{ar}:{ar+3}], v[{d}:{d+3}]')
    NF = NB + 2
    fine = c.get('fine')
    if fine:
        vst = R.alloc()
        a(f'v_mov_b32 v{vst}, 0')
        stn = [0]
        def fstamp():
            a('s_memtime s[86:87]')
            a('s_waitcnt lgkmcnt(0)')
            a('s_sub_u32 s86, s86, s90')
            a(f'v_writelane_b32 v{vst}, s86, {stn[0]}')
            stn[0] += 1
    else:
        def fstamp():
            pass
    fstamp()
    a('s_barrier')
    read_f(0, 0, 0)
    par = 0
    cloop = c.get('cloop', 0)
    def stage(st, inloop):
        nonlocal par
        for ks in range(KS - 1):
            a('s_waitcnt lgkmcnt(0)')
            read_f(st, ks + 1, par ^ 1, defer=True)
            mfmas(par)
            assert not rq
            par ^= 1
        if st + 1 < NST:
            a('s_waitcnt lgkmcnt(0)')
            if not inloop:
                fstamp()
            a('s_barrier')
            if st == 1 and not cloop:
                a('s_waitcnt vmcnt(0)')
                g.fill_ok = True
            read_f(st + 1, 0, par ^ 1, defer=True)
            mfmas(par)
            assert not rq
            par ^= 1
        else:
            a('s_waitcnt lgkmcnt(0)')
            mfmas(par)
    if cloop:
        assert KS % 2 == 0
        lp = a.newlabel(name + '_cl')
        a('s_mov_b32 s58, 0')
        a.label(lp)
        for st in range(NBUF):
            stage(st, True)
        a('s_add_u32 s58, s58, 1')
        a(f's_cmp_lt_u32 s58, {cloop}')
        a(f's_cbranch_scc1 {lp}')
        a('s_waitcnt vmcnt(0)')
        g.fill_ok = True
        for st in range(NBUF * cloop, NST):
            stage(st, False)
    else:
        for st in range(NST):
            stage(st, False)
    for l in g.fill:
        a(l)
    g.fill = []
    a('s_nop 7')
    a('s_nop 7')
    if WK == 2:
        a('s_barrier')
        lk0, lk1 = a.newlabel(name), a.newlabel(name)
        a(f'v_lshlrev_b32 v{vt0}, 4, v{vlane}')
        a(f's_mul_i32 s57, s40, {NB*1024}')
        a(f's_add_u32 s57, s57, {XCH}')
        a(f'v_add_u32 v{vt1}, s57, v{vt0}')
        a(f's_xor_b32 s57, s40, {WM}')
        a(f's_mul_i32 s57, s57, {NB*1024}')
        a(f's_add_u32 s57, s57, {XCH}')
        a(f'v_add_u32 v{vt2}, s57, v{vt0}')
        T = Bf[0]
        a('s_cmp_eq_u32 s46, 0')
        a(f's_cbranch_scc0 {lk1}')
        for nb in range(NB):
            d = acc[1][nb]
            a(f'ds_write_b128 v{vt1}, v[{d}:{d+3}] offset:{nb*1024}')
        a('s_waitcnt lgkmcnt(0)')
        a('s_barrier')
        for nb in range(NB):
            a(f'ds_read_b128 v[{T[nb]}:{T[nb]+3}], v{vt2} offset:{nb*1024}')
        a('s_waitcnt lgkmcnt(0)')
        for nb in range(NB):
            for q in range(4):
                a(f'v_add_f32 v{acc[0][nb]+q}, v{acc[0][nb]+q}, v{T[nb]+q}')
        a(f's_branch {lk0}')
        a.label(lk1)
        for nb in range(NB):
            d = acc[0][nb]
            a(f'ds_write_b128 v{vt1}, v[{d}:{d+3}] offset:{nb*1024}')
        a('s_waitcnt lgkmcnt(0)')
        a('s_barrier')
        for nb in range(NB):
            a(f'ds_read_b128 v[{T[nb]}:{T[nb]+3}], v{vt2} offset:{nb*1024}')
        a('s_waitcnt lgkmcnt(0)')
        for nb in range(NB):
            for q in range(4):
                a(f'v_add_f32 v{acc[0][nb]+q}, v{acc[1][nb]+q}, v{T[nb]+q}')
        a.label(lk0)
        g.rbs = [0]
    else:
        a('s_barrier')
        g.rbs = [0, 1]
    fstamp()
    c['epi'](a, c, g)
    if fine:
        a('s_waitcnt vmcnt(0)')
        fstamp()
        a('s_mov_b32 s60, s98')
        a('s_mov_b32 s61, s99')
        a('s_mov_b32 s62, 256')
        a('s_mov_b32 s63, 0x00020000')
        a('s_mov_b64 exec, -1')
        a(f'v_cmp_gt_u32 vcc, 32, v{vlane}')
        a(f'v_lshlrev_b32 v1, 2, v{vlane}')
        a('v_mov_b32 v2, 0x7ffffff0')
        a('s_nop 1')
        a('v_cndmask_b32 v1, v2, v1, vcc')
        a(f's_cmp_eq_u32 s2, {fine-1}')
        a(f's_cbranch_scc0 {end}')
        a('s_cmp_eq_u32 s40, 0')
        a(f's_cbranch_scc0 {end}')
        a(f'buffer_store_dword v{vst}, v1, s[60:63], 0 offen')
    elif c.get('stamp'):
        a('s_waitcnt vmcnt(0)')
        a('s_memtime s[94:95]')
        a('s_memrealtime s[96:97]')
        a('s_waitcnt lgkmcnt(0)')
        a('s_sub_u32 s94, s94, s90')
        a('s_sub_u32 s96, s96, s92')
        a('s_mov_b32 s60, s98')
        a('s_mov_b32 s61, s99')
        a('s_mov_b32 s62, 256')
        a('s_mov_b32 s63, 0x00020000')
        a('s_and_b32 s58, s2, 31')
        a('s_lshl_b32 s58, s58, 3')
        a('s_mov_b64 exec, -1')
        a('v_mov_b32 v1, s58')
        a('v_mov_b32 v2, s94')
        a('v_mov_b32 v3, s96')
        a('s_cmp_lt_u32 s2, 32')
        a(f's_cbranch_scc0 {end}')
        a('v_cmp_eq_u32 vcc, 0, v0')
        a('s_and_saveexec_b64 s[58:59], vcc')
        a(f's_cbranch_execz {end}')
        a('buffer_store_dwordx2 v[2:3], v1, s[60:63], 0 offen')
    a.label(end)
    a('s_endpgm')
    NP = 4
    a.label(f'{name}_prod')
    a('s_sub_u32 s50, s40, 4')
    lc = CPR.bit_length() - 1
    a(f'v_lshrrev_b32 v10, {lc}, v{vlane}')
    a(f'v_and_b32 v11, {CPR-1}, v{vlane}')
    if BK == 128:
        a('s_lshl_b32 s51, s50, 2')
        a('v_add_u32 v12, s51, v10')
    else:
        a('s_and_b32 s51, s50, 1')
        a('s_lshl_b32 s51, s51, 2')
        a('v_lshrrev_b32 v12, 1, v10')
        a('v_add_u32 v12, s51, v12')
    a('v_xor_b32 v12, v11, v12')
    a('v_lshlrev_b32 v12, 4, v12')
    a(f'v_mul_u32_u24 v14, {c["lda"]}, v10')
    a('v_add_u32 v14, v14, v12')
    a(f'v_mul_u32_u24 v15, {c["ldb"]}, v10')
    a('v_add_u32 v15, v15, v12')
    a('s_lshl_b32 s54, s50, 10')
    a(f's_mul_i32 s52, s50, {RPI}')
    a('s_add_u32 s53, s52, s47')
    a(f's_mul_i32 s53, s53, {c["lda"]}')
    a('s_add_u32 s56, s52, s44')
    a(f's_mul_i32 s56, s56, {c["ldb"]}')
    special = {}
    for q in range(nB // NP):
        ib = NP * q
        if WK == 2 and ib < cntB < ib + NP:
            sreg = 64 + len(special)
            special[q] = sreg
            a(f's_cmp_ge_u32 s50, {cntB-ib}')
            a(f's_mov_b32 s57, {ib*RPI*c["ldb"]}')
            a(f's_cselect_b32 s{sreg}, {((ib-cntB)*RPI*c["ldb"] + c["b_goff"]) & 0xffffffff}, s57')
            a(f's_add_u32 s{sreg}, s{sreg}, s56')
    NSL = (nA + nB + NP - 1) // NP
    if padB:
        assert WK == 1
        a('s_cmp_ge_u32 s50, 2')
        a(f's_cselect_b32 s66, {(-2*RPI*c["ldb"]) & 0xffffffff}, 0')
        a('s_cselect_b32 s67, 2048, 0')
        a('s_add_u32 s66, s66, s56')
        a('s_sub_u32 s67, s54, s67')
    rot = c.get('rot')
    if rot:
        a(f's_mul_i32 s48, s42, {rot[0]}')
        a(f's_and_b32 s49, s41, {c["MPX"]-1}')
        a(f's_mul_i32 s49, s49, {rot[1]}')
        a('s_add_u32 s48, s48, s49')
        for k in (4, 2, 1):
            a(f's_cmp_ge_u32 s48, {k*NST}')
            a(f's_cselect_b32 s49, {k*NST}, 0')
            a('s_sub_u32 s48, s48, s49')
        a(f's_mul_i32 s48, s48, {RB}')
        a('s_mov_b32 s88, s53')
        a('s_mov_b32 s89, s56')
        for i_, sr_ in enumerate(special.values()):
            a(f's_mov_b32 s{68+i_}, s{sr_}')
    def p_issue(st_):
        b = st_ % NBUF
        st = st_
        if rot:
            st = 0
            a(f's_add_u32 s49, s48, {st_*RB}')
            a(f's_cmp_ge_u32 s49, {NST*RB}')
            a(f's_cselect_b32 s55, {NST*RB}, 0')
            a('s_sub_u32 s49, s49, s55')
            a('s_add_u32 s53, s88, s49')
            a('s_add_u32 s56, s89, s49')
            for i_, sr_ in enumerate(special.values()):
                a(f's_add_u32 s{sr_}, s{68+i_}, s49')
        for q in range(NSL):
            io = NP * q
            if padB and q == NSL - 1:
                ib = io - nA
                a(f's_add_u32 m0, s67, {b*BUFSZ + io*1024}')
                a(f's_add_u32 s55, s66, {ib*RPI*c["ldb"] + st*RB}')
                a('buffer_load_dwordx4 v15, s[12:15], s55 offen lds')
                continue
            a(f's_add_u32 m0, s54, {b*BUFSZ + io*1024}')
            if io < nA:
                gam, loc0 = io // cntA, io % cntA
                a(f's_add_u32 s55, s53, {loc0*RPI*c["lda"] + gam*c["a_goff"] + st*RB}')
                a('buffer_load_dwordx4 v14, s[8:11], s55 offen' + (' nt' if c.get('a_nt') else '') + ' lds')
            else:
                ib = io - nA
                qb = ib // NP
                if qb in special:
                    a(f's_add_u32 s55, s{special[qb]}, {st*RB}')
                else:
                    gam, loc0 = ib // cntB, ib % cntB
                    a(f's_add_u32 s55, s56, {loc0*RPI*c["ldb"] + gam*c["b_goff"] + st*RB}')
                a('buffer_load_dwordx4 v15, s[12:15], s55 offen lds')
    chunks = []
    a('s_waitcnt lgkmcnt(0)')
    c['setup_ab'](a, c)
    NH = 0
    if c.get('VP'):
        DV = c['VP']
        RB0 = 120 if c.get('h_pre') else 20
        RB0 = c.get('VPBASE', 20)
        assert RB0 + DV * NSL * 4 <= 256
        vp_need = RB0 + DV * NSL * 4
        a(f'v_lshl_add_u32 v16, v{vlane}, 4, s54')
        a('v_add_u32 v17, 0x10000, v16')
        a('v_add_u32 v18, 0x20000, v16')
        if padB:
            a(f'v_lshl_add_u32 v19, v{vlane}, 4, s67')
        order = []
        def regs(st, q):
            return RB0 + ((st % DV) * NSL + q) * 4
        def v_load(st):
            for q in range(NSL):
                io = NP * q
                r = regs(st, q)
                if padB and q == NSL - 1:
                    ib = io - nA
                    a(f's_add_u32 s55, s66, {ib*RPI*c["ldb"] + st*RB}')
                    a(f'buffer_load_dwordx4 v[{r}:{r+3}], v15, s[12:15], s55 offen')
                elif io < nA:
                    gam, loc0 = io // cntA, io % cntA
                    a(f's_add_u32 s55, s53, {loc0*RPI*c["lda"] + gam*c["a_goff"] + st*RB}')
                    a(f'buffer_load_dwordx4 v[{r}:{r+3}], v14, s[8:11], s55 offen')
                else:
                    ib = io - nA
                    qb = ib // NP
                    if qb in special:
                        a(f's_add_u32 s55, s{special[qb]}, {st*RB}')
                    else:
                        gam, loc0 = ib // cntB, ib % cntB
                        a(f's_add_u32 s55, s56, {loc0*RPI*c["ldb"] + gam*c["b_goff"] + st*RB}')
                    a(f'buffer_load_dwordx4 v[{r}:{r+3}], v15, s[12:15], s55 offen')
            order.extend([st] * NSL)
        def v_wait(st):
            n = 0
            for t in reversed(order):
                if t <= st:
                    break
                n += 1
            a(f's_waitcnt vmcnt({min(n, 63)})')
        def v_write(st):
            v_wait(st)
            b = st % NBUF
            for q in range(NSL):
                r = regs(st, q)
                off = b * BUFSZ + NP * q * 1024
                if padB and q == NSL - 1:
                    a(f'v_add_u32 v13, {off}, v19')
                    a(f'ds_write_b128 v13, v[{r}:{r+3}]')
                else:
                    base = 16 + off // 65536
                    a(f'ds_write_b128 v{base}, v[{r}:{r+3}] offset:{off % 65536}')
            a('s_waitcnt lgkmcnt(0)')
        nl = [0]; nw = [0]
        def load_more():
            while nl[0] < NST and nl[0] < nw[0] + DV:
                v_load(nl[0]); nl[0] += 1
        load_more()
        if c.get('h_pre'):
            c['setup'](a, c)
            NHh = c['h_pre'](a, c, g)
            order.extend([10**6] * NHh)
            hmark = nl[0]
            flat = [l for ch in c['h_tail'](c, g) for l in ch]
            CS = c.get('h_chunk', 24)
            chunks = [flat[i:i + CS] for i in range(0, len(flat), CS)]
        v_write(0); nw[0] = 1
        load_more()
        a('s_barrier')
        for st in range(NST - 1):
            k = 0
            while nw[0] < NST and nw[0] <= st + NBUF - 1 and (k < 2 or nw[0] <= st + 1):
                v_write(nw[0]); nw[0] += 1; k += 1
                load_more()
            if chunks and nw[0] > hmark:
                for l in chunks.pop(0):
                    a(l)
            a('s_barrier')
        for ch in chunks:
            for l in ch:
                a(l)
        if c.get('h_final_barrier'):
            a('s_waitcnt lgkmcnt(0)')
            for _ in range(c['h_final_barrier']):
                a('s_barrier')
        a('s_endpgm')
        return max(R.n, vp_need), lds_total
    npre = min(NBUF, NST)
    pst = [32]
    if fine:
        a('v_mov_b32 v9, 0')
    def pstamp():
        if fine and pst[0] < 40:
            a('s_memtime s[86:87]')
            a('s_waitcnt lgkmcnt(0)')
            a('s_sub_u32 s86, s86, s90')
            a(f'v_writelane_b32 v9, s86, {pst[0]}')
            pst[0] += 1
    PRE0 = c.get('PRE0', 2)
    PER = c.get('PER', 2)
    nxt = [0]
    order = []
    def pwait(st):
        n = 0
        for t in reversed(order):
            if t <= st:
                break
            n += 1
        assert n <= 63
        a(f's_waitcnt vmcnt({n})')
    def issue_upto(limit, maxn):
        n = 0
        while nxt[0] < NST and nxt[0] <= limit and n < maxn:
            p_issue(nxt[0])
            order.extend([nxt[0]] * NSL)
            nxt[0] += 1
            n += 1
            pstamp()
    pstamp()
    issue_upto(NBUF - 1, PRE0)
    pwait(0)
    pstamp()
    if fine:
        lb = a.newlabel(name)
        a('s_mov_b32 s60, s98')
        a('s_mov_b32 s61, s99')
        a('s_mov_b32 s62, 256')
        a('s_mov_b32 s63, 0x00020000')
        a(f'v_lshlrev_b32 v8, 2, v{vlane}')
        a(f'v_cmp_lt_u32 vcc, 31, v{vlane}')
        a('v_mov_b32 v7, 0x7ffffff0')
        a('s_nop 1')
        a('v_cndmask_b32 v8, v7, v8, vcc')
        a(f's_cmp_eq_u32 s2, {fine-1}')
        a(f's_cbranch_scc0 {lb}')
        a('s_cmp_eq_u32 s40, 4')
        a(f's_cbranch_scc0 {lb}')
        a('buffer_store_dword v9, v8, s[60:63], 0 offen')
        a('s_waitcnt vmcnt(0)')
        a.label(lb)
    a('s_barrier')
    fine_save = fine
    fine = 0
    issue_upto(NBUF - 1, PER)
    if c.get('h_pre'):
        c['setup'](a, c)
        NH = c['h_pre'](a, c, g)
        order.extend([10**6] * NH)
        flat = [l for ch in c['h_tail'](c, g) for l in ch]
        CS = c.get('h_chunk', 24)
        chunks = [flat[i:i + CS] for i in range(0, len(flat), CS)]
        assert c['h_start'] >= nxt[0]
    ploop = c.get('ploop')
    st = 0
    while st < NST - 1:
        if ploop and st == ploop[0]:
            assert nxt[0] == st + NBUF and not special and not rot
            lp = a.newlabel(name + '_pl')
            a('s_mov_b32 s58, 0')
            a.label(lp)
            for i in range(NBUF):
                pwait(st + i + 1)
                a('s_barrier')
                issue_upto(st + i + NBUF, 1)
            a(f's_add_u32 s53, s53, {NBUF*RB}')
            a(f's_add_u32 s56, s56, {NBUF*RB}')
            if padB:
                a(f's_add_u32 s66, s66, {NBUF*RB}')
            a('s_add_u32 s58, s58, 1')
            a(f's_cmp_lt_u32 s58, {ploop[1]}')
            a(f's_cbranch_scc1 {lp}')
            a(f's_sub_u32 s53, s53, {ploop[1]*NBUF*RB}')
            a(f's_sub_u32 s56, s56, {ploop[1]*NBUF*RB}')
            if padB:
                a(f's_sub_u32 s66, s66, {ploop[1]*NBUF*RB}')
            for t in range(1, ploop[1]):
                for i in range(NBUF):
                    order.extend([nxt[0]] * NSL)
                    nxt[0] += 1
            st += NBUF * ploop[1]
            continue
        if nxt[0] <= st + 1:
            issue_upto(st + 1, NST)
        pwait(st + 1)
        a('s_barrier')
        if nxt[0] < NST:
            issue_upto(st + NBUF, PER)
        if chunks and st + 1 >= c['h_start']:
            for l in chunks.pop(0):
                a(l)
        st += 1
    for ch in chunks:
        for l in ch:
            a(l)
    if c.get('h_final_barrier'):
        a('s_waitcnt lgkmcnt(0)')
        for _ in range(c['h_final_barrier']):
            a('s_barrier')
    a('s_endpgm')
    return R.n, lds_total

def tr_setup(a, g, row_sgpr, ldo):
    R = g.R
    CH = g.BN // 8
    nrows = 16 * len_rbs(g)
    tot = nrows * CH
    g.nt = (tot + 63) // 64
    g.tot = tot
    g.tl = [R.alloc() for _ in range(g.nt)]
    g.tg = [R.alloc() for _ in range(g.nt)]
    g.tc = [R.alloc() for _ in range(g.nt)]
    vt0, vt1, vt2 = g.tmp
    magic = {10: 6554, 12: 5462}[CH]
    a(f's_mul_i32 s57, s40, {nrows*g.TS}')
    if g.WK == 2:
        a('s_add_u32 s57, s57, 32768')
    a('s_lshl_b32 s58, s44, 1')
    a(f's_mov_b32 s59, {ldo}')
    for t in range(g.nt):
        a(f'v_add_u32 v{vt0}, {64*t}, v{g.vlane}')
        a(f'v_mul_u32_u24 v{vt1}, {magic}, v{vt0}')
        a(f'v_lshrrev_b32 v{vt1}, 16, v{vt1}')
        a(f'v_mul_u32_u24 v{vt2}, {CH}, v{vt1}')
        a(f'v_sub_u32 v{vt2}, v{vt0}, v{vt2}')
        a(f'v_lshlrev_b32 v{vt2}, 4, v{vt2}')
        a(f'v_mul_u32_u24 v{g.tl[t]}, {g.TS}, v{vt1}')
        a(f'v_add3_u32 v{g.tl[t]}, v{g.tl[t]}, v{vt2}, s57')
        a(f'v_add_u32 v{g.tc[t]}, s58, v{vt2}')
        a(f'v_add_u32 v{vt1}, {row_sgpr}, v{vt1}')
        a(f'v_mul_lo_u32 v{g.tg[t]}, v{vt1}, s59')
        a(f'v_add_u32 v{g.tg[t]}, v{g.tg[t]}, v{g.tc[t]}')
        if 64 * (t + 1) > tot:
            a(f'v_cmp_gt_u32 vcc, {tot}, v{vt0}')
            a(f'v_mov_b32 v{vt1}, 0x7ffffff0')
            a('s_nop 1')
            a(f'v_cndmask_b32 v{g.tg[t]}, v{vt1}, v{g.tg[t]}, vcc')
            a(f'v_cndmask_b32 v{g.tl[t]}, 0, v{g.tl[t]}, vcc')
    g.tw = R.alloc()
    a(f'v_mul_u32_u24 v{g.tw}, {g.TS}, v{g.vi16}')
    a(f'v_lshl_add_u32 v{g.tw}, v{g.vg}, 3, v{g.tw}')
    a(f'v_add_u32 v{g.tw}, s57, v{g.tw}')

def len_rbs(g):
    return 1 if g.WK == 2 else 2

def tr_write(a, g, rbi, pk):
    for nb in range(g.NB):
        a(f'ds_write_b64 v{g.tw}, v[{pk+2*nb}:{pk+2*nb+1}] offset:{rbi*16*g.TS + nb*32}')

def tr_read(a, g, dst):
    a('s_waitcnt lgkmcnt(0)')
    for t in range(g.nt):
        a(f'ds_read_b128 v[{dst+4*t}:{dst+4*t+3}], v{g.tl[t]}')
```

```python
from common import *

K0_NMOD = 120
K0_NLN = 64
K0_NTR = 240
K0_NCP = 80
import os
K0_PFL = int(os.environ.get('PFL', '32'))
K0_NPF = 2048 * K0_PFL // 256
K0_NT = os.environ.get('K0NT', '0') == '1'
K0_GRID = K0_NMOD + K0_NLN + 2 * K0_NTR + K0_NCP + K0_NPF
K0_LDS = 40960

def dpp_allreduce16(a, v, tmp):
    for r in (8, 4, 2, 1):
        a('s_nop 1')
        a(f'v_add_f32_dpp v{tmp}, v{v}, v{v} row_ror:{r} row_mask:0xf bank_mask:0xf')
        a(f'v_mov_b32 v{v}, v{tmp}')

def gen_k0(a, name):
    l0 = len(a.lines)
    kernel_header(a, name)
    a(f's_cmp_ge_u32 s2, {K0_GRID}')
    a('s_cbranch_scc1 k0_end')
    if K0_NPF and os.environ.get('PFIRST', '0') == '1':
        a(f's_add_u32 s3, s2, {K0_GRID-K0_NPF}')
        a(f's_sub_u32 s4, s2, {K0_NPF}')
        a(f's_cmp_lt_u32 s2, {K0_NPF}')
        a('s_cselect_b32 s2, s3, s4')
    a(f's_load_dwordx2 s[4:5], s[0:1], {KA["ws"]}')
    a(f's_cmp_lt_u32 s2, {K0_NMOD}')
    a('s_cbranch_scc1 k0_mod')
    a(f's_cmp_lt_u32 s2, {K0_NMOD+K0_NLN}')
    a('s_cbranch_scc1 k0_ln')
    a(f's_cmp_ge_u32 s2, {K0_NMOD+K0_NLN+2*K0_NTR+K0_NCP}')
    a('s_cbranch_scc1 k0_pf')
    a(f's_cmp_ge_u32 s2, {K0_NMOD+K0_NLN+2*K0_NTR}')
    a('s_cbranch_scc1 k0_cp')
    a(f's_load_dwordx2 s[6:7], s[0:1], {KA["w1"]}')
    a(f's_load_dwordx2 s[8:9], s[0:1], {KA["w2"]}')
    a(f's_sub_u32 s3, s2, {K0_NMOD+K0_NLN}')
    a('s_waitcnt lgkmcnt(0)')
    a(f's_cmp_lt_u32 s3, {K0_NTR}')
    a('s_cbranch_scc1 k0_tr_w1')
    a(f's_sub_u32 s3, s3, {K0_NTR}')
    srd(a, 12, 8, 0, F * D * 2)
    srd(a, 16, 4, WS_W2T, F * D * 2)
    a('s_mul_i32 s20, s3, 6554')
    a('s_lshr_b32 s20, s20, 16')
    a('s_mul_i32 s21, s20, 10')
    a('s_sub_u32 s21, s3, s21')
    a(f's_mov_b32 s22, {D*2}')
    a(f's_mov_b32 s23, {F*2}')
    a('s_branch k0_tr_go')
    a.label('k0_tr_w1')
    srd(a, 12, 6, 0, F * D * 2)
    srd(a, 16, 4, WS_W1T, F * D * 2)
    a('s_mul_i32 s20, s3, 2731')
    a('s_lshr_b32 s20, s20, 16')
    a('s_mul_i32 s21, s20, 24')
    a('s_sub_u32 s21, s3, s21')
    a(f's_mov_b32 s22, {F*2}')
    a(f's_mov_b32 s23, {D*2}')
    a.label('k0_tr_go')
    a('v_lshrrev_b32 v1, 3, v0')
    a('v_and_b32 v2, 7, v0')
    a('s_lshl_b32 s24, s20, 6')
    a('v_add_u32 v3, s24, v1')
    a('v_mul_lo_u32 v3, v3, s22')
    a('s_lshl_b32 s25, s21, 7')
    a('v_lshlrev_b32 v4, 4, v2')
    a('v_add3_u32 v3, v3, v4, s25')
    a('s_lshl_b32 s26, s22, 5')
    a('buffer_load_dwordx4 v[8:11], v3, s[12:15], 0 offen')
    a('buffer_load_dwordx4 v[12:15], v3, s[12:15], s26 offen')
    a('v_mul_u32_u24 v5, 1056, v2')
    a('v_lshl_add_u32 v5, v1, 1, v5')
    a('s_waitcnt vmcnt(1)')
    for p in range(2):
        if p == 1:
            a('s_waitcnt vmcnt(0)')
        for q in range(4):
            reg = 8 + 4 * p + q
            a(f'ds_write_b16 v5, v{reg} offset:{(2*q)*132 + p*64}')
            a(f'ds_write_b16_d16_hi v5, v{reg} offset:{(2*q+1)*132 + p*64}')
    a('s_waitcnt lgkmcnt(0)')
    a('s_barrier')
    a('v_lshrrev_b32 v1, 2, v0')
    a('v_and_b32 v2, 3, v0')
    a('v_mul_u32_u24 v5, 132, v1')
    a('v_lshl_add_u32 v5, v2, 5, v5')
    for q in range(4):
        a(f'ds_read2_b32 v[{8+2*q}:{9+2*q}], v5 offset0:{2*q} offset1:{2*q+1}')
    a('s_lshl_b32 s24, s21, 6')
    a('v_add_u32 v3, s24, v1')
    a('v_mul_lo_u32 v3, v3, s23')
    a('s_lshl_b32 s25, s20, 7')
    a('v_lshlrev_b32 v4, 5, v2')
    a('v_add3_u32 v3, v3, v4, s25')
    a('s_waitcnt lgkmcnt(0)')
    a('buffer_store_dwordx4 v[8:11], v3, s[16:19], 0 offen')
    a('buffer_store_dwordx4 v[12:15], v3, s[16:19], 0 offen offset:16')
    a('s_endpgm')

    a.label('k0_pf')
    a(f's_load_dwordx2 s[6:7], s[0:1], {KA["cs"]}')
    a(f's_load_dwordx2 s[8:9], s[0:1], {KA["ss"]}')
    a(f's_sub_u32 s3, s2, {K0_NMOD+K0_NLN+2*K0_NTR+K0_NCP}')
    assert K0_PFL in (0, 32) and (K0_NMOD+K0_NLN+2*K0_NTR+K0_NCP) % 8 == 0
    a('s_and_b32 s20, s3, 7')
    a('s_lshr_b32 s21, s3, 3')
    a('s_lshl_b32 s20, s20, 5')
    a('s_add_u32 s3, s20, s21')
    a('s_lshl_b32 s3, s3, 15')
    a('v_lshlrev_b32 v1, 7, v0')
    a('v_add_u32 v1, s3, v1')
    a('s_waitcnt lgkmcnt(0)')
    srd(a, 12, 6, 0, S * S * 2)
    srd(a, 16, 8, 0, S * S * 2)
    a('buffer_load_dword v2, v1, s[12:15], 0 offen')
    a('buffer_load_dword v3, v1, s[16:19], 0 offen')
    a('s_waitcnt vmcnt(0)')
    a('s_endpgm')

    a.label('k0_cp')
    a(f's_load_dwordx2 s[6:7], s[0:1], {KA["ch"]}')
    a(f's_load_dwordx2 s[8:9], s[0:1], {KA["sh"]}')
    a(f's_sub_u32 s3, s2, {K0_NMOD+K0_NLN+2*K0_NTR}')
    a('s_waitcnt lgkmcnt(0)')
    a('s_cmp_ge_u32 s3, 40')
    a('s_cselect_b32 s6, s8, s6')
    a('s_cselect_b32 s7, s9, s7')
    a('s_cselect_b32 s20, 1280, 0')
    a('s_cselect_b32 s21, 40, 0')
    a('s_sub_u32 s3, s3, s21')
    srd(a, 12, 6, 0, D * D * 2)
    srd(a, 16, 4, WS_CSH, D * 2 * D * 2)
    a('s_mul_i32 s22, s3, 16*1280')
    a('s_mul_i32 s23, s3, 16*2560')
    a('s_add_u32 s23, s23, s20')
    a('s_mov_b32 s24, 52429')
    for t in range(5):
        a(f'v_add_u32 v1, {256*t}, v0')
        a(f'v_mul_lo_u32 v2, v1, s24')
        a(f'v_lshrrev_b32 v2, 22, v2')
        a(f'v_lshl_add_u32 v{30+t}, v1, 4, s22')
        a(f'v_mul_u32_u24 v3, 1280, v2')
        a(f'v_lshl_add_u32 v{40+t}, v1, 4, v3')
        a(f'v_add_u32 v{40+t}, s23, v{40+t}')
        a(f'buffer_load_dwordx4 v[{8+4*t}:{11+4*t}], v{30+t}, s[12:15], 0 offen')
    for t in range(5):
        a(f's_waitcnt vmcnt({4-t})')
        a(f'buffer_store_dwordx4 v[{8+4*t}:{11+4*t}], v{40+t}, s[16:19], 0 offen')
    a('s_endpgm')

    a.label('k0_mod')
    a(f's_load_dwordx2 s[6:7], s[0:1], {KA["c"]}')
    a(f's_load_dwordx2 s[8:9], s[0:1], {KA["wmod"]}')
    a('v_and_b32 v1, 3, v0')
    a('v_lshrrev_b32 v2, 2, v0')
    a('v_lshlrev_b32 v3, 1, v2')
    a('v_mul_u32_u24 v4, 7680, v2')
    a('v_lshl_add_u32 v4, v1, 4, v4')
    a('s_lshl_b32 s3, s2, 6')
    a('v_add_u32 v4, s3, v4')
    a('s_waitcnt lgkmcnt(0)')
    srd(a, 12, 6, 0, D * 2)
    srd(a, 16, 8, 0, D * 6 * D * 2)
    srd(a, 20, 4, WS_MOD, 6 * D * 2)
    CB = 10
    WB = 20
    AC = 60
    T0 = 70
    for j in range(10):
        a(f'buffer_load_ushort v{CB+j}, v3, s[12:15], 0 offen offset:{j*128}')
    for j in range(10):
        a(f's_mov_b32 s24, {j*64*7680}')
        a(f'buffer_load_dwordx4 v[{WB+4*j}:{WB+4*j+3}], v4, s[16:19], s24 offen')
    for e in range(8):
        a(f'v_mov_b32 v{AC+e}, 0')
    a('s_waitcnt vmcnt(10)')
    for j in range(10):
        a(f'v_lshlrev_b32 v{CB+j}, 16, v{CB+j}')
    for j in range(10):
        a(f'v_mul_f32 v{T0+j}, 0xbfb8aa3b, v{CB+j}')
    for j in range(10):
        a(f'v_exp_f32 v{T0+j}, v{T0+j}')
    a('s_nop 0')
    for j in range(10):
        a(f'v_add_f32 v{T0+j}, 1.0, v{T0+j}')
    for j in range(10):
        a(f'v_rcp_f32 v{T0+j}, v{T0+j}')
    a('s_nop 0')
    for j in range(10):
        a(f'v_mul_f32 v{CB+j}, v{CB+j}, v{T0+j}')
    for j in range(10):
        a(f'v_cvt_pk_bf16_f32 v{CB+j}, v{CB+j}, v{CB+j}')
    for j in range(10):
        a(f'v_lshlrev_b32 v{CB+j}, 16, v{CB+j}')
    for j in range(10):
        a(f's_waitcnt vmcnt({9-j})')
        for q in range(4):
            w = WB + 4 * j + q
            a(f'v_lshlrev_b32 v{T0}, 16, v{w}')
            a(f'v_and_b32 v{T0+1}, 0xffff0000, v{w}')
            a(f'v_fmac_f32 v{AC+2*q}, v{CB+j}, v{T0}')
            a(f'v_fmac_f32 v{AC+2*q+1}, v{CB+j}, v{T0+1}')
    a('v_lshlrev_b32 v5, 7, v2')
    a('v_lshl_add_u32 v5, v1, 5, v5')
    a(f'ds_write_b128 v5, v[{AC}:{AC+3}]')
    a(f'ds_write_b128 v5, v[{AC+4}:{AC+7}] offset:16')
    a('s_waitcnt lgkmcnt(0)')
    a('s_barrier')
    a('v_and_b32 v1, 31, v0')
    a('v_lshrrev_b32 v2, 5, v0')
    a('v_lshlrev_b32 v5, 10, v2')
    a('v_lshl_add_u32 v5, v1, 2, v5')
    for i in range(8):
        a(f'ds_read_b32 v{10+i}, v5 offset:{i*128}')
    a('s_waitcnt lgkmcnt(0)')
    for i in range(1, 8):
        a(f'v_add_f32 v10, v10, v{10+i}')
    a('v_lshlrev_b32 v5, 7, v2')
    a('v_lshl_add_u32 v5, v1, 2, v5')
    a('ds_write_b32 v5, v10 offset:8192')
    a('s_waitcnt lgkmcnt(0)')
    a('s_barrier')
    a('v_cmp_gt_u32 vcc, 32, v0')
    a('s_and_saveexec_b64 s[26:27], vcc')
    a('s_cbranch_execz k0_end')
    a('v_lshlrev_b32 v5, 2, v0')
    for i in range(8):
        a(f'ds_read_b32 v{10+i}, v5 offset:{8192+i*128}')
    a('s_waitcnt lgkmcnt(0)')
    for i in range(1, 8):
        a(f'v_add_f32 v10, v10, v{10+i}')
    a('v_cvt_pk_bf16_f32 v10, v10, v10')
    a('s_lshl_b32 s3, s2, 6')
    a('v_lshl_add_u32 v5, v0, 1, s3')
    a('buffer_store_short v10, v5, s[20:23], 0 offen')
    a('s_endpgm')

    a.label('k0_ln')
    a(f's_load_dwordx2 s[6:7], s[0:1], {KA["x"]}')
    a(f's_sub_u32 s3, s2, {K0_NMOD}')
    a('v_and_b32 v1, 15, v0')
    a('v_lshrrev_b32 v2, 4, v0')
    a('s_mul_i32 s24, s3, 32*1280')
    a('v_mul_u32_u24 v3, 2560, v2')
    a('v_lshl_add_u32 v3, v1, 4, v3')
    a('v_add_u32 v3, s24, v3')
    a('s_waitcnt lgkmcnt(0)')
    srd(a, 12, 6, 0, S * D * 2)
    srd(a, 16, 4, WS_NT, S * D * 2)
    XB = 50
    FB = 10
    ST = 90
    for p in range(2):
        for j in range(5):
            r = XB + 20 * p + 4 * j
            a(f'buffer_load_dwordx4 v[{r}:{r+3}], v3, s[12:15], 0 offen offset:{p*1280 + j*256}')
    a('s_waitcnt vmcnt(0)')
    for p in range(2):
        for i in range(20):
            r = XB + 20 * p + i
            f = FB + 40 * p + 2 * i
            assert f + 1 <= r
            a(f'v_lshlrev_b32 v{f}, 16, v{r}')
            a(f'v_and_b32 v{f+1}, 0xffff0000, v{r}')
    for p in range(2):
        sm = ST + 8 * p
        a(f'v_add_f32 v{sm}, v{FB+40*p}, v{FB+40*p+1}')
        a(f'v_add_f32 v{sm+1}, v{FB+40*p+2}, v{FB+40*p+3}')
        for i in range(4, 40, 2):
            a(f'v_add_f32 v{sm}, v{sm}, v{FB+40*p+i}')
            a(f'v_add_f32 v{sm+1}, v{sm+1}, v{FB+40*p+i+1}')
        a(f'v_add_f32 v{sm}, v{sm}, v{sm+1}')
        dpp_allreduce16(a, sm, sm + 1)
        a(f'v_mul_f32 v{sm}, 0x3acccccd, v{sm}')
        a(f'v_mov_b32 v{sm+2}, 0')
        a(f'v_mov_b32 v{sm+3}, 0')
        for i in range(0, 40, 2):
            a(f'v_sub_f32 v{sm+4}, v{FB+40*p+i}, v{sm}')
            a(f'v_sub_f32 v{sm+5}, v{FB+40*p+i+1}, v{sm}')
            a(f'v_fmac_f32 v{sm+2}, v{sm+4}, v{sm+4}')
            a(f'v_fmac_f32 v{sm+3}, v{sm+5}, v{sm+5}')
        a(f'v_add_f32 v{sm+2}, v{sm+2}, v{sm+3}')
        dpp_allreduce16(a, sm + 2, sm + 3)
        a(f'v_mul_f32 v{sm+2}, 0x3acccccd, v{sm+2}')
        a(f'v_cvt_pk_bf16_f32 v{sm+3}, v{sm}, v{sm+2}')
        a(f'v_lshlrev_b32 v{sm}, 16, v{sm+3}')
        a(f'v_and_b32 v{sm+2}, 0xffff0000, v{sm+3}')
        a(f'v_add_f32 v{sm+2}, 0x3727c5ac, v{sm+2}')
        a(f'v_cvt_pk_bf16_f32 v{sm+2}, v{sm+2}, v{sm+2}')
        a(f'v_lshlrev_b32 v{sm+2}, 16, v{sm+2}')
        a(f'v_sqrt_f32 v{sm+2}, v{sm+2}')
        a('s_nop 0')
        a(f'v_cvt_pk_bf16_f32 v{sm+2}, v{sm+2}, v{sm+2}')
        a(f'v_lshlrev_b32 v{sm+2}, 16, v{sm+2}')
        a(f'v_rcp_f32 v{sm+2}, v{sm+2}')
        a('s_nop 0')
    a('v_lshrrev_b32 v4, 2, v2')
    a('v_and_b32 v5, 3, v1')
    a('v_xor_b32 v4, v4, v5')
    a('v_lshlrev_b32 v4, 4, v4')
    a('v_and_b32 v5, 3, v2')
    a('v_lshl_add_u32 v4, v5, 2, v4')
    a('v_lshl_add_u32 v4, v1, 9, v4')
    T = 106
    for j in range(5):
        for e in range(8):
            i = j * 8 + e
            t = T + 4 * (i % 4)
            a(f'v_sub_f32 v{t}, v{FB+i}, v{ST}')
            a(f'v_sub_f32 v{t+1}, v{FB+40+i}, v{ST+8}')
            a(f'v_cvt_pk_bf16_f32 v{t+2}, v{t}, v{t+1}')
            a(f'v_lshlrev_b32 v{t}, 16, v{t+2}')
            a(f'v_and_b32 v{t+1}, 0xffff0000, v{t+2}')
            a(f'v_mul_f32 v{t}, v{t}, v{ST+2}')
            a(f'v_mul_f32 v{t+1}, v{t+1}, v{ST+8+2}')
            a(f'v_cvt_pk_bf16_f32 v{t+3}, v{t}, v{t+1}')
            a(f'ds_write_b32 v4, v{t+3} offset:{j*8192 + e*64}')
    a('s_waitcnt lgkmcnt(0)')
    a('s_barrier')
    a('v_lshlrev_b32 v4, 4, v0')
    for i in range(10):
        a(f'ds_read_b128 v[{10+4*i}:{13+4*i}], v4 offset:{i*4096}')
    a('v_lshrrev_b32 v5, 5, v0')
    a('v_xor_b32 v5, v5, v0')
    a('v_and_b32 v5, 3, v5')
    a('v_lshrrev_b32 v6, 2, v0')
    a('v_lshlrev_b32 v6, 12, v6')
    a('v_lshl_add_u32 v6, v5, 4, v6')
    a('s_lshl_b32 s24, s3, 6')
    a('v_add_u32 v6, s24, v6')
    for i in range(10):
        a(f's_mov_b32 s25, {i*262144}')
        a(f's_waitcnt lgkmcnt({9-i})')
        a(f'buffer_store_dwordx4 v[{10+4*i}:{13+4*i}], v6, s[16:19], s25 offen')
    a.label('k0_end')
    a('s_endpgm')
    if K0_NT:
        for i in range(l0, len(a.lines)):
            if 'buffer_load_dwordx4' in a.lines[i]:
                a.lines[i] += ' nt'
    return 124
```

```python
import sys, os
from common import *
from k0 import *
from gemm3 import *
import main as m1

def acc_list(g, rb):
    return [g.acc[rb][nb] + q for nb in range(g.NB) for q in range(4)]

class Rec:
    def __init__(self, g):
        self.g = g
    def __call__(self, s):
        self.g.fill.append(s)

def unpack_inplace(a, base, n):
    for i in range(n):
        a(f'v_lshlrev_b32 v{base+2*i}, 16, v{base+n+i}')
        a(f'v_and_b32 v{base+2*i+1}, {MASK}, v{base+n+i}')

def plus1_round(a, base, n2, tmp):
    for i in range(0, n2, 2):
        a(f'v_add_f32 v{base+i}, 1.0, v{base+i}')
        a(f'v_add_f32 v{base+i+1}, 1.0, v{base+i+1}')
        a(f'v_cvt_pk_bf16_f32 v{tmp}, v{base+i}, v{base+i+1}')
        a(f'v_lshlrev_b32 v{base+i}, 16, v{tmp}')
        a(f'v_and_b32 v{base+i+1}, {MASK}, v{tmp}')

def touch_next(a, g, off, nbytes):
    L = nbytes // 128
    per_w = L // 128
    R = g.R
    va, vd = R.alloc(), R.alloc()
    srd(a, 84, 4, off, nbytes)
    a('s_lshr_b32 s62, s2, 3')
    a('s_lshl_b32 s62, s62, 2')
    a('s_add_u32 s62, s62, s40')
    a(f's_mul_i32 s62, s62, {per_w*128}')
    a(f'v_lshlrev_b32 v{va}, 7, v{g.vlane}')
    a(f'v_add_u32 v{va}, s62, v{va}')
    f = Rec(g)
    for i in range((per_w + 63) // 64):
        f(f's_mov_b32 s63, {i*8192}')
        f(f'buffer_load_dword v{vd}, v{va}, s[84:87], s63 offen')

def with_touch(fn, off, nbytes):
    def h(a, c, g):
        if os.environ.get('TN', '0') == '1':
            touch_next(a, g, off, nbytes)
        fn(a, c, g)
    return h

def nop(a, c, g):
    pass

def row_sgpr(a, g):
    a('s_lshl_b32 s38, s45, 5')
    a('s_add_u32 s38, s38, s39')
    if g.WK == 2:
        a('s_lshl_b32 s37, s46, 4')
        a('s_add_u32 s38, s38, s37')

def store_rounds(a, g, src, srd_, soff='0'):
    for t in range(g.nt):
        a(f'buffer_store_dwordx4 v[{src+4*t}:{src+4*t+3}], v{g.tg[t]}, s[{srd_}:{srd_+3}], {soff} offen')

def l1_setup_m(a, c):
    a('s_and_b32 s41, s2, 7')
    a('s_lshl_b32 s41, s41, 1')
    a('s_and_b32 s47, s43, 1')
    a('s_add_u32 s41, s41, s47')
    a('s_lshr_b32 s47, s43, 1')
    a('s_lshl_b32 s47, s47, 4')
    a('s_add_u32 s41, s41, s47')
    a('s_and_b32 s47, s41, 15')
    a('s_lshl_b32 s47, s47, 7')
    a('s_mov_b32 s39, s47')

def l1_setup_ab(a, c):
    a('s_cmp_ge_u32 s41, 16')
    a('s_cselect_b32 s30, s32, s30')
    a('s_cselect_b32 s31, s33, s31')
    srd(a, 8, 30, 0, S * S * 2)
    srd(a, 12, 4, WS_NT, S * D * 2)

def l1_setup(a, c):
    a('s_cmp_ge_u32 s41, 16')
    a('s_cselect_b32 s35, 0x80000000, 0')
    a('s_cselect_b32 s36, 1280, 0')
    srd(a, 20, 4, WS_MOD, 6 * D * 2)
    srd(a, 24, 4, WS_PQ, S * 2 * D * 2)

def setup_m(sh):
    def f(a, c):
        a(f's_lshl_b32 s47, s41, {sh}')
        a('s_mov_b32 s39, s47')
    return f

def setup_ab(aoff, asz, boff, bsz):
    def f(a, c):
        srd(a, 8, 4, aoff, asz)
        srd(a, 12, 4, boff, bsz)
    return f

def l1_pre0(a, c, g):
    R = g.R
    vc = R.alloc()
    a('s_lshl_b32 s60, s44, 1')
    a(f'v_lshl_add_u32 v{vc}, v{g.vg}, 3, s60')
    g.sa = R.alloc(20, 2); g.ca = R.alloc(20, 2); g.ft = R.alloc()
    a('s_mov_b32 s61, 1280')
    for nb in range(g.NB):
        a(f'buffer_load_dwordx2 v[{g.sa+10+2*nb}:{g.sa+10+2*nb+1}], v{vc}, s[20:23], 0 offen offset:{32*nb}')
        g.issued.append(10**6)
    for nb in range(g.NB):
        a(f'buffer_load_dwordx2 v[{g.ca+10+2*nb}:{g.ca+10+2*nb+1}], v{vc}, s[20:23], s61 offen offset:{32*nb}')
        g.issued.append(10**6)
    f = Rec(g)
    unpack_inplace(f, g.sa, 10)
    unpack_inplace(f, g.ca, 10)
    plus1_round(f, g.ca, 20, g.ft)
    for i in range(20):
        f(f'v_xor_b32 v{g.ca+i}, s35, v{g.ca+i}')
        f(f'v_xor_b32 v{g.sa+i}, s35, v{g.sa+i}')

def l1_touch(a, c, g):
    nl = 32 - K0_PFL
    if nl == 0 or os.environ.get('TOUCH', '0') == '0':
        return
    vt0, vt1, vt2 = g.tmp
    per = nl // 16 if nl >= 16 else 1
    a('s_lshl_b32 s60, s42, 4')
    a('s_lshl_b32 s61, s40, 2')
    a('s_add_u32 s60, s60, s61')
    a('s_add_u32 s60, s60, s47')
    a(f'v_add_u32 v{vt0}, s60, v{g.vg}')
    a(f'v_lshlrev_b32 v{vt0}, 12, v{vt0}')
    a(f'v_lshl_add_u32 v{vt0}, v{g.vi16}, 7, v{vt0}')
    g.tdump = g.R.alloc(); g.taddr = g.R.alloc()
    a(f'v_mov_b32 v{g.taddr}, v{vt0}')
    f = Rec(g)
    for j in range((nl + 15) // 16):
        off = (K0_PFL + 16 * j) * 128
        f(f's_mov_b32 s62, {off}')
        f(f'buffer_load_dword v{g.tdump}, v{g.taddr}, s[8:11], s62 offen')

def l1_pre1(a, c, g):
    l1_touch(a, c, g)
    l1_pre0(a, c, g)
    row_sgpr(a, g)
    tr_setup(a, g, 's38', 2 * D * 2)

def l1_epi(a, c, g):
    SB = g.SB
    n = 2 * g.NB
    t = SB + 40
    for rb in g.rbs:
        al = acc_list(g, rb)
        for i in range(2 * n):
            a(f'v_mul_f32 v{t+i}, v{al[i]}, v{g.ca+i}')
            a(f'v_fmac_f32 v{t+i}, v{g.rs[rb]}, v{g.sa+i}')
        oo = SB + 60 + 10 * rb
        for i in range(n):
            a(f'v_cvt_pk_bf16_f32 v{oo+i}, v{t+2*i}, v{t+2*i+1}')
        tr_write(a, g, rb, oo)
    tr_read(a, g, SB)
    for t_ in range(g.nt):
        a(f's_waitcnt lgkmcnt({g.nt-1-t_})')
        a(f'buffer_store_dwordx4 v[{SB+4*t_}:{SB+4*t_+3}], v{g.tg[t_]}, s[24:27], s36 offen')


def res_pre0(goff, xsrd):
    def pre(a, c, g):
        R = g.R
        row_sgpr(a, g)
        tr_setup(a, g, 's38', D * 2)
        n = 4 * g.nt
        g.ga = R.alloc(2 * n, 4); g.x = R.alloc(2 * n, 4)
        a(f's_mov_b32 s61, {goff}')
        for t in range(g.nt):
            a(f'buffer_load_dwordx4 v[{g.ga+n+4*t}:{g.ga+n+4*t+3}], v{g.tc[t]}, s[20:23], s61 offen')
            g.issued.append(10**6)
        for t in range(g.nt):
            a(f'buffer_load_dwordx4 v[{g.x+n+4*t}:{g.x+n+4*t+3}], v{g.tg[t]}, s[{xsrd}:{xsrd+3}], 0 offen')
            g.issued.append(10**6)
        f = Rec(g)
        unpack_inplace(f, g.ga, n)
        unpack_inplace(f, g.x, n)
    return pre

def res_round(a, g, t, Y, yf, u, o):
    unpack(a, Y + 4 * t, yf, 4)
    for i in range(0, 8, 2):
        a(f'v_pk_mul_f32 v[{yf+i}:{yf+i+1}], v[{yf+i}:{yf+i+1}], v[{g.ga+8*t+i}:{g.ga+8*t+i+1}]')
    for i in range(4):
        a(f'v_cvt_pk_bf16_f32 v{u+i}, v{yf+2*i}, v{yf+2*i+1}')
    unpack(a, u, yf, 4)
    for i in range(0, 8, 2):
        a(f'v_pk_add_f32 v[{yf+i}:{yf+i+1}], v[{yf+i}:{yf+i+1}], v[{g.x+8*t+i}:{g.x+8*t+i+1}]')
    for i in range(4):
        a(f'v_cvt_pk_bf16_f32 v{o+i}, v{yf+2*i}, v{yf+2*i+1}')

def res_epi(osrd):
    def epi(a, c, g):
        SB = g.SB
        n = 2 * g.NB
        al = acc_list(g, 0)
        for i in range(n):
            a(f'v_cvt_pk_bf16_f32 v{SB+i}, v{al[2*i]}, v{al[2*i+1]}')
        tr_write(a, g, 0, SB)
        Y = SB + 12
        tr_read(a, g, Y)
        T = SB + 24
        for t in range(g.nt):
            a(f's_waitcnt lgkmcnt({g.nt-1-t})')
            o = T + 20 + 4 * t
            res_round(a, g, t, Y, T, T + 16, o)
            a(f'buffer_store_dwordx4 v[{o}:{o+3}], v{g.tg[t]}, s[{osrd}:{osrd+3}], 0 offen')
    return epi

def l2_pre1(a, c, g):
    res_pre0(2 * D * 2, 16)(a, c, g)
    R = g.R
    n = 4 * g.nt
    g.cb = R.alloc(2 * n, 4); g.ft = R.alloc()
    a('s_mov_b32 s61, 5120')
    for t in range(g.nt):
        a(f'buffer_load_dwordx4 v[{g.cb+n+4*t}:{g.cb+n+4*t+3}], v{g.tc[t]}, s[20:23], s61 offen')
        g.issued.append(10**6)
    f = Rec(g)
    unpack_inplace(f, g.cb, n)
    plus1_round(f, g.cb, 2 * n, g.ft)

def l2_epi(a, c, g):
    SB = g.SB
    n = 2 * g.NB
    al = acc_list(g, 0)
    for i in range(n):
        a(f'v_cvt_pk_bf16_f32 v{SB+i}, v{al[2*i]}, v{al[2*i+1]}')
    tr_write(a, g, 0, SB)
    Y = SB + 12
    tr_read(a, g, Y)
    T = SB + 24
    vs = g.tmp[0]
    a('s_lshl_b32 s57, s40, 11')
    a('s_add_u32 s57, s57, 49152')
    a(f'v_lshl_add_u32 v{vs}, v{g.vlane}, 3, s57')
    for t in range(g.nt):
        a(f's_waitcnt lgkmcnt({g.nt-1})')
        yf, gf, u = T, T + 8, T + 16
        o = T + 20 + 8 * t
        res_round(a, g, t, Y, yf, u, o)
        a(f'buffer_store_dwordx4 v[{o}:{o+3}], v{g.tg[t]}, s[24:27], 0 offen')
        unpack(a, o, yf, 4)
        for i in range(0, 8, 2):
            a(f'v_pk_mul_f32 v[{gf+i}:{gf+i+1}], v[{yf+i}:{yf+i+1}], v[{g.cb+8*t+i}:{g.cb+8*t+i+1}]')
        z = o + 4
        for i in range(4):
            a(f'v_cvt_pk_bf16_f32 v{z+i}, v{gf+2*i}, v{gf+2*i+1}')
        a(f'buffer_store_dwordx4 v[{z}:{z+3}], v{g.tg[t]}, s[28:31], 0 offen')
        st = T + 16
        a(f'v_pk_add_f32 v[{gf}:{gf+1}], v[{yf}:{yf+1}], v[{yf+2}:{yf+3}]')
        a(f'v_pk_add_f32 v[{gf+2}:{gf+3}], v[{yf+4}:{yf+5}], v[{yf+6}:{yf+7}]')
        a(f'v_pk_add_f32 v[{gf}:{gf+1}], v[{gf}:{gf+1}], v[{gf+2}:{gf+3}]')
        a(f'v_add_f32 v{st}, v{gf}, v{gf+1}')
        a(f'v_mul_f32 v{st+2}, 0x3e000000, v{st}')
        a(f'v_mov_b32 v{st+3}, v{st+2}')
        for i in range(0, 8, 2):
            a(f'v_pk_add_f32 v[{yf+i}:{yf+i+1}], v[{yf+i}:{yf+i+1}], v[{st+2}:{st+3}] neg_lo:[0,1] neg_hi:[0,1]')
        a(f'v_pk_mul_f32 v[{gf}:{gf+1}], v[{yf}:{yf+1}], v[{yf}:{yf+1}]')
        for i in range(2, 8, 2):
            a(f'v_pk_fma_f32 v[{gf}:{gf+1}], v[{yf+i}:{yf+i+1}], v[{yf+i}:{yf+i+1}], v[{gf}:{gf+1}]')
        a(f'v_add_f32 v{st+1}, v{gf}, v{gf+1}')
        a(f'ds_write_b64 v{vs}, v[{st}:{st+1}] offset:{512*t}')
    a('s_waitcnt lgkmcnt(0)')
    vr = g.tmp[1]
    a(f'v_mul_u32_u24 v{vr}, 80, v{g.vi16}')
    a(f'v_add_u32 v{vr}, s57, v{vr}')
    E = SB
    for j in range(5):
        a(f'ds_read_b128 v[{E+4*j}:{E+4*j+3}], v{vr} offset:{16*j}')
    a('s_waitcnt lgkmcnt(0)')
    Sg, M, mu, d = SB + 20, SB + 21, SB + 22, SB + 23
    a(f'v_add_f32 v{Sg}, v{E}, v{E+2}')
    a(f'v_add_f32 v{M}, v{E+1}, v{E+3}')
    for j in range(2, 10):
        a(f'v_add_f32 v{Sg}, v{Sg}, v{E+2*j}')
        a(f'v_add_f32 v{M}, v{M}, v{E+2*j+1}')
    a(f'v_mul_f32 v{mu}, 0x3c4ccccd, v{Sg}')
    a(f'v_mov_b32 v{SB+24}, 0')
    for j in range(10):
        a(f'v_fma_f32 v{d}, v{E+2*j}, 0.125, -v{mu}') if False else None
        a(f'v_mul_f32 v{d}, 0x3e000000, v{E+2*j}')
        a(f'v_sub_f32 v{d}, v{d}, v{mu}')
        a(f'v_fmac_f32 v{SB+24}, v{d}, v{d}')
    a(f'v_mov_b32 v{d}, 0x41000000')
    a(f'v_fmac_f32 v{M}, v{d}, v{SB+24}')
    a(f'v_add_u32 v{vr}, s38, v{g.vi16}')
    a(f'v_lshlrev_b32 v{vr}, 6, v{vr}')
    a('s_lshl_b32 s57, s42, 3')
    a(f'v_add_u32 v{vr}, s57, v{vr}')
    a(f'v_cmp_gt_u32 vcc, 16, v{g.vlane}')
    a(f'v_mov_b32 v{d}, 0x7ffffff0')
    a('s_nop 1')
    a(f'v_cndmask_b32 v{vr}, v{d}, v{vr}, vcc')
    srd(a, 60, 4, WS_ST, S * 64)
    a(f'buffer_store_dwordx2 v[{Sg}:{Sg+1}], v{vr}, s[60:63], 0 offen')

class Lst:
    def __init__(self):
        self.l = []
    def __call__(self, s):
        self.l.append(s)

def l2_hpre(a, c, g):
    vl = g.vlane
    srd(a, 72, 4, WS_W1T, F * D * 2)
    srd(a, 76, 4, WS_UW, 2 * F * 4)
    a(f'v_lshlrev_b32 v20, 4, v{vl}')
    a('v_add_u32 v21, 1024, v20')
    a(f'v_cmp_gt_u32 vcc, 16, v{vl}')
    a('v_mov_b32 v22, 0x7ffffff0')
    a('s_nop 1')
    a('v_cndmask_b32 v21, v22, v21, vcc')
    a('s_mov_b32 s80, 5120')
    a('s_mov_b32 s81, 3840')
    CBr, SBr, Wr = 24, 32, 40
    a(f'buffer_load_dwordx4 v[{CBr}:{CBr+3}], v20, s[20:23], s80 offen')
    a(f'buffer_load_dwordx4 v[{CBr+4}:{CBr+7}], v21, s[20:23], s80 offen')
    a(f'buffer_load_dwordx4 v[{SBr}:{SBr+3}], v20, s[20:23], s81 offen')
    a(f'buffer_load_dwordx4 v[{SBr+4}:{SBr+7}], v21, s[20:23], s81 offen')
    a('s_cmp_lt_u32 s50, 2')
    a('s_cselect_b32 s85, 4, 2')
    a('s_mul_i32 s82, s2, 6')
    a('s_add_u32 s82, s82, s50')
    a('s_mul_i32 s83, s82, 1280')
    a(f'buffer_load_dwordx4 v[{Wr}:{Wr+3}], v20, s[72:75], s83 offen')
    a(f'buffer_load_dwordx4 v[{Wr+4}:{Wr+7}], v21, s[72:75], s83 offen')
    a('s_add_u32 s83, s83, 5120')
    a(f'buffer_load_dwordx4 v[{Wr+8}:{Wr+11}], v20, s[72:75], s83 offen')
    a(f'buffer_load_dwordx4 v[{Wr+12}:{Wr+15}], v21, s[72:75], s83 offen')
    return 8

def l2_htail(c, g):
    vl = g.vlane
    CBr, SBr, Wr = 24, 32, 40
    CF, SF, WF, AC = 60, 76, 92, 108
    c0, c1, c2 = Lst(), Lst(), Lst()
    a = c0
    unpack(a, CBr, CF, 8)
    plus1_round(a, CF, 16, 23)
    unpack(a, SBr, SF, 8)
    a = c1
    for r in range(2):
        unpack(a, Wr + 8 * r, WF, 8)
        a(f'v_mul_f32 v{AC+2*r}, v{CF}, v{WF}')
        a(f'v_mul_f32 v{AC+2*r+1}, v{SF}, v{WF}')
        for i in range(1, 16):
            a(f'v_fmac_f32 v{AC+2*r}, v{CF+i}, v{WF+i}')
            a(f'v_fmac_f32 v{AC+2*r+1}, v{SF+i}, v{WF+i}')
    a('s_lshl_b32 s84, s50, 10')
    a(f's_add_u32 s84, s84, {g.XTRA}')
    a(f'v_lshl_add_u32 v20, v{vl}, 2, s84')
    for v in range(4):
        a(f'ds_write_b32 v20, v{AC+v} offset:{256*v}')
    a('s_waitcnt lgkmcnt(0)')
    a(f'v_and_b32 v21, 3, v{vl}')
    a('v_lshlrev_b32 v22, 8, v21')
    a('v_add_u32 v22, s84, v22')
    for j in range(16):
        a(f'ds_read_b128 v[{24+4*j}:{27+4*j}], v22 offset:{16*j}')
    a = c2
    a('s_waitcnt lgkmcnt(0)')
    for j in range(1, 64):
        a(f'v_add_f32 v24, v24, v{24+j}')
    a(f'v_and_b32 v20, 1, v{vl}')
    a('v_mul_u32_u24 v20, 6144, v20')
    a(f'v_lshrrev_b32 v21, 1, v{vl}')
    a('v_lshlrev_b32 v21, 2, v21')
    a('v_add_u32 v21, s82, v21')
    a('v_lshl_add_u32 v20, v21, 2, v20')
    a(f'v_cmp_gt_u32 vcc, s85, v{vl}')
    a('v_mov_b32 v22, 0x7ffffff0')
    a('s_nop 1')
    a('v_cndmask_b32 v20, v22, v20, vcc')
    a('buffer_store_dword v24, v20, s[76:79], 0 offen')
    return [c0.l, c1.l, c2.l]

def l2_setup(a, c):
    srd(a, 20, 4, WS_MOD, 6 * D * 2)
    srd(a, 24, 4, WS_X1, S * D * 2)
    srd(a, 16, 30, 0, S * D * 2)
    srd(a, 28, 4, WS_H2, S * D * 2)

L2 = dict(NWG=256, MPX=4, NT=8, WM=2, WK=2, NB=5, NST=10, BK=64, NBUF=4, lda=2 * D * 2, ldb=2 * D * 2, a_goff=D * 2, b_goff=D * 2,
          kargs=[(30, 'x')], setup=l2_setup, setup_m=setup_m(6), setup_ab=setup_ab(WS_PQ, S * 2 * D * 2, WS_CSH, D * 2 * D * 2), pre0=nop, pre1=with_touch(l2_pre1, WS_W1T, F * D * 2), GAP=1, NPRE=3, FPG=5, epi=l2_epi,  ka_bytes=2560, kb_bytes=2560, rot=(1, 3))

def l3_setup(a, c):
    srd(a, 24, 4, WS_HH, S * F * 2)

def l3_pre1(a, c, g):
    row_sgpr(a, g)
    tr_setup(a, g, 's38', F * 2)

def l3_hpre(a, c, g):
    vl = g.vlane
    srd(a, 72, 4, WS_ST, S * 64)
    srd(a, 76, 4, WS_UW, 2 * F * 4)
    a('s_lshl_b32 s80, s50, 5')
    a('s_add_u32 s80, s80, s47')
    a(f'v_and_b32 v20, 31, v{vl}')
    a('v_add_u32 v20, s80, v20')
    a('v_lshlrev_b32 v20, 6, v20')
    for j in range(4):
        a(f'buffer_load_dwordx4 v[{24+4*j}:{27+4*j}], v20, s[72:75], 0 offen offset:{16*j}')
    a('s_lshl_b32 s81, s44, 2')
    a(f'v_lshl_add_u32 v21, v{vl}, 4, s81')
    a('s_mov_b32 s82, 6144')
    a('buffer_load_dwordx4 v[48:51], v21, s[76:79], 0 offen')
    a('buffer_load_dwordx4 v[52:55], v21, s[76:79], s82 offen')
    return 6

def l3_htail(c, g):
    vl = g.vlane
    c0 = Lst()
    a = c0
    E = 24
    Sg, M, mu, d, q = 60, 61, 62, 63, 64
    a(f'v_add_f32 v{Sg}, v{E}, v{E+2}')
    a(f'v_add_f32 v{M}, v{E+1}, v{E+3}')
    for j in range(2, 8):
        a(f'v_add_f32 v{Sg}, v{Sg}, v{E+2*j}')
        a(f'v_add_f32 v{M}, v{M}, v{E+2*j+1}')
    a(f'v_mul_f32 v{mu}, 0x3acccccd, v{Sg}')
    a(f'v_mov_b32 v{q}, 0')
    for j in range(8):
        a(f'v_mul_f32 v{d}, 0x3c4ccccd, v{E+2*j}')
        a(f'v_sub_f32 v{d}, v{d}, v{mu}')
        a(f'v_fmac_f32 v{q}, v{d}, v{d}')
    a(f'v_mov_b32 v{d}, 0x42a00000')
    a(f'v_fmac_f32 v{M}, v{d}, v{q}')
    a(f'v_mul_f32 v{M}, 0x3acccccd, v{M}')
    a(f'v_cvt_pk_bf16_f32 v{d}, v{mu}, v{M}')
    a(f'v_lshlrev_b32 v67, 16, v{d}')
    a(f'v_and_b32 v{M}, {MASK}, v{d}')
    a(f'v_add_f32 v{M}, 0x3727c5ac, v{M}')
    a(f'v_cvt_pk_bf16_f32 v{M}, v{M}, v{M}')
    a(f'v_lshlrev_b32 v{M}, 16, v{M}')
    a(f'v_sqrt_f32 v{M}, v{M}')
    a('s_nop 0')
    a(f'v_cvt_pk_bf16_f32 v{M}, v{M}, v{M}')
    a(f'v_lshlrev_b32 v{M}, 16, v{M}')
    a(f'v_rcp_f32 v66, v{M}')
    a('s_nop 0')
    a('s_lshl_b32 s83, s50, 8')
    a(f's_add_u32 s83, s83, {g.XTRA}')
    a(f'v_and_b32 v20, 31, v{vl}')
    a('v_lshl_add_u32 v20, v20, 3, s83')
    a('ds_write_b64 v20, v[66:67]')
    a(f'v_lshlrev_b32 v21, 4, v{vl}')
    a(f'v_add_u32 v21, {g.XTRA + 1024}, v21')
    a('ds_write_b128 v21, v[48:51]')
    a('ds_write_b128 v21, v[52:55] offset:1024')
    return [c0.l]

def l3_epi(a, c, g):
    SB = g.SB
    n = 2 * g.NB
    vt0, vt1, vt2 = g.tmp
    a('s_lshl_b32 s57, s45, 8')
    a(f's_add_u32 s57, s57, {g.XTRA}')
    a(f'v_lshl_add_u32 v{vt0}, v{g.vi16}, 3, s57')
    a(f'v_lshlrev_b32 v{vt1}, 4, v{g.vg}')
    a(f'v_add_u32 v{vt1}, {g.XTRA + 1024}, v{vt1}')
    STt = SB + 64
    a(f'ds_read_b64 v[{STt}:{STt+1}], v{vt0}')
    a(f'ds_read_b64 v[{STt+2}:{STt+3}], v{vt0} offset:128')
    U, W = SB, SB + 24
    for nb in range(g.NB):
        a(f'ds_read_b128 v[{U+4*nb}:{U+4*nb+3}], v{vt1} offset:{64*nb}')
        a(f'ds_read_b128 v[{W+4*nb}:{W+4*nb+3}], v{vt1} offset:{1024+64*nb}')
    a('s_waitcnt lgkmcnt(0)')
    for rb in g.rbs:
        al = acc_list(g, rb)
        for i, r in enumerate(al):
            a(f'v_fma_f32 v{r}, -v{STt+2*rb+1}, v{U+i}, v{r}')
            a(f'v_fma_f32 v{r}, v{STt+2*rb}, v{r}, v{W+i}')
            a(f'v_max_f32 v{r}, 0, v{r}')
        oo = SB + 48 + 12 * rb
        oo = SB + 68 if rb else SB + 48
        for i in range(n):
            a(f'v_cvt_pk_bf16_f32 v{oo+i}, v{al[2*i]}, v{al[2*i+1]}')
        tr_write(a, g, rb, oo)
    tr_read(a, g, SB)
    for t_ in range(g.nt):
        a(f's_waitcnt lgkmcnt({g.nt-1-t_})')
        a(f'buffer_store_dwordx4 v[{SB+4*t_}:{SB+4*t_+3}], v{g.tg[t_]}, s[24:27], 0 offen')

L3 = dict(NWG=256, MPX=2, NT=16, WM=4, WK=1, NB=6, NST=10, BK=64, NBUF=5, lda=D * 2, ldb=D * 2, a_goff=0, b_goff=0,
          kargs=[], setup=l3_setup, setup_m=setup_m(7), setup_ab=setup_ab(WS_H2, S * D * 2, WS_W1T, F * D * 2), pre0=nop, pre1=with_touch(l3_pre1, WS_W2T, F * D * 2), GAP=1, NPRE=3, epi=l3_epi, h_pre=l3_hpre, h_tail=l3_htail, h_start=5, h_chunk=20, h_final_barrier=1, lds_extra=4096, ka_bytes=1280, kb_bytes=1280, rot=(1, 5))

def l4_setup(a, c):
    srd(a, 20, 4, WS_MOD, 6 * D * 2)
    srd(a, 24, 30, 0, S * D * 2)
    srd(a, 16, 4, WS_X1, S * D * 2)

L4 = dict(NWG=256, MPX=4, NT=8, WM=2, WK=2, NB=5, NST=12, BK=64, NBUF=4, lda=F * 2, ldb=F * 2, a_goff=F, b_goff=F,
          kargs=[(30, 'out')], setup=l4_setup, setup_m=setup_m(6), setup_ab=setup_ab(WS_HH, S * F * 2, WS_W2T, F * D * 2), pre0=nop, pre1=res_pre0(5 * D * 2, 16), GAP=1, NPRE=3, FPG=3, epi=res_epi(24), helper=False, ka_bytes=3072, kb_bytes=3072, rot=(1, 3))

L1 = dict(NWG=256, MPX=4, NT=8, WM=4, WK=1, NB=5, NST=32, BK=64, NBUF=6, PRE0=3, lda=S * 2, ldb=S * 2, a_goff=0, b_goff=0,
          kargs=[(30, 'cs'), (32, 'ss')], setup=l1_setup, setup_m=l1_setup_m, setup_ab=l1_setup_ab, pre0=nop, pre1=l1_pre1, epi=l1_epi, rowsum=True, a_nt=(os.environ.get('ANT', '0') == '1'), h_pre=l2_hpre, h_tail=l2_htail, h_start=(23 if os.environ.get('LOOP','0')=='1' else 8), h_chunk=(32 if os.environ.get('LOOP','0')=='1' else 20), lds_extra=4096, **(dict(cloop=5, ploop=(4, 3), FPG=6) if os.environ.get('LOOP','0')=='1' else {}), helper=False, ka_bytes=4096, kb_bytes=4096, rot=(2, 5))

def main(out, stamp=False):
    for L in (L1, L2, L3, L4):
        L['stamp'] = stamp
        L['rot'] = None
        if os.environ.get('VP', '0') == '1':
            if L is L2 or L is L4:
                L['VP'] = 6; L['VPBASE'] = 20
            if L is L3:
                L['VP'] = 6; L['VPBASE'] = 68
        if os.environ.get('PRE0'):
            L['PRE0'] = int(os.environ['PRE0'])
        if os.environ.get('PER'):
            L['PER'] = int(os.environ['PER'])
        L['fine'] = int(stamp) if stamp else 0
    hdr = open('adaLN_cond__spectral_fnet__dense_activation_relu__prompt.s.ref').read().split('\n')
    hdr = [l for l in hdr if l.startswith(';') and '@launch' not in l and 'Override' not in l and 'grid=ceil' not in l]
    a = Asm()
    descs = []
    launches = []
    nv = gen_k0(a, 'k0_kernel'); descs.append(kernel_desc('k0_kernel', nv)); launches.append(('k0_kernel', K0_GRID, K0_LDS))
    nv, lds = gen_gemm(a, 'l1_kernel', L1); descs.append(kernel_desc('l1_kernel', nv, 102)); launches.append(('l1_kernel', 256, lds))
    nv, lds = gen_gemm(a, 'l2_kernel', L2); descs.append(kernel_desc('l2_kernel', nv, 102)); launches.append(('l2_kernel', 256, lds))
    nv, lds = gen_gemm(a, 'l3_kernel', L3); descs.append(kernel_desc('l3_kernel', nv, 102)); launches.append(('l3_kernel', 256, lds))
    nv, lds = gen_gemm(a, 'l4_kernel', L4); descs.append(kernel_desc('l4_kernel', nv, 102)); launches.append(('l4_kernel', 256, lds))
    txt = '\n'.join(hdr) + '\n'
    for (k, g, l) in launches:
        blk = 256 if k[0] == 'k' else 512
        txt += f'; @launch kernel={k} grid=({g},1,1) block=({blk},1,1) lds={l}\n'
    txt += '.amdgcn_target "amdgcn-amd-amdhsa--gfx950"\n.text\n'
    txt += a.text()
    txt += '.section .rodata,"a"\n'
    txt += ''.join(descs)
    open(out, 'w').write(txt)

if __name__ == '__main__':
    main(sys.argv[1] if len(sys.argv) > 1 else 'adaLN_cond__spectral_fnet__dense_activation_relu__prompt.s', stamp=(sys.argv[2] if len(sys.argv) > 2 else False))
```
